```python
import torch

def _softmax(x, axis=-1):
    return torch.softmax(x, dim=axis)
def _gelu(x):
    return torch.nn.functional.gelu(x, approximate="tanh")
def _silu(x):
    return torch.nn.functional.silu(x)
def _sigmoid(x):
    return torch.sigmoid(x)
def _layernorm(x, axis=-1, eps=1e-5):
    m = x.mean(dim=axis, keepdim=True)
    v = x.var(dim=axis, keepdim=True, unbiased=False)
    return (x - m) / torch.sqrt(v + eps)
def _scatter_add(tgt, idx, src, axis=0):
    return tgt.clone().index_add_(axis, idx, src)
def _segment_sum(src, seg, n):
    out = torch.zeros((n,) + src.shape[1:], dtype=src.dtype)
    return out.index_add_(0, seg, src)
def _pad(x, pw):
    flat = tuple(v for pair in reversed(pw) for v in pair)
    return torch.nn.functional.pad(x, flat)

kernel_name = 'recurrent_scan__mha_block_cached__mixer_channel_mlp__prompt'

def setup_inputs():

    _w = (lambda a: (lambda t: t.to(torch.bfloat16) if t.is_floating_point() else t)(torch.as_tensor(a)))
    def _A_setup():
        B, Sq, D = 1, 2048, 512
        H, Sk, Dh = 32, 2048, 128
        return {
            "x": _w((lambda *s: torch.randn(*s, dtype=torch.bfloat16) * 0.05)(B, Sq, D)),
            "k_cache": _w((lambda *s: torch.randn(*s, dtype=torch.bfloat16) * 1.6)(B, H, Sk, Dh)),
            "v_cache": _w((lambda *s: torch.randn(*s, dtype=torch.bfloat16) * 0.8)(B, H, Sk, Dh)),
            "wq": _w((lambda *s: torch.randn(*s, dtype=torch.bfloat16) * 1.6)(D, H * Dh) * (D ** -0.5)),
            "wo": _w((lambda *s: torch.randn(*s, dtype=torch.bfloat16) * 0.8)(H * Dh, D) * ((H * Dh) ** -0.5)),
        }
    _A_in = _A_setup()

    def _B_setup():
        B, S, D, F = 1, 2048, 512, 1376
        return {
            "x": _w((lambda *s: torch.randn(*s, dtype=torch.bfloat16) * 0.05)(B, S, D)),
            "w1": _w((lambda *s: torch.randn(*s, dtype=torch.bfloat16) * 1.6)(D, F) * (D ** -0.5)),
            "b1": _w((lambda *s: torch.randn(*s, dtype=torch.bfloat16) * 0.8)(F)),
            "w2": _w((lambda *s: torch.randn(*s, dtype=torch.bfloat16) * 0.2)(F, D) * (F ** -0.5)),
            "b2": _w((lambda *s: torch.randn(*s, dtype=torch.bfloat16) * 0.2)(D)),
        }
    _B_in = _B_setup()

    return {
        "A_x": _A_in["x"],
        "A_k_cache": _A_in["k_cache"],
        "A_v_cache": _A_in["v_cache"],
        "A_wq": _A_in["wq"],
        "A_wo": _A_in["wo"],
        "B_x": _B_in["x"],
        "B_w1": _B_in["w1"],
        "B_b1": _B_in["b1"],
        "B_w2": _B_in["w2"],
        "B_b2": _B_in["b2"],
    }

def reference(A_x, A_k_cache, A_v_cache, A_wq, A_wo, B_x, B_w1, B_b1, B_w2, B_b2):
    def _A_ref(x, k_cache, v_cache, wq, wo):
        B, Sq, D = x.shape
        H, Dh = 32, 128
        q = (lambda x, *d: x.permute(*d))((x @ wq).reshape(B, Sq, H, Dh), 0, 2, 1, 3)
        scores = torch.einsum("bhqd,bhkd->bhqk", q, k_cache) * (Dh ** -0.5)
        p = _softmax(scores, axis=-1)
        o = torch.einsum("bhqk,bhkd->bhqd", p, v_cache)
        return (lambda x, *d: x.permute(*d))(o, 0, 2, 1, 3).reshape(B, Sq, H * Dh) @ wo

    def _B_ref(x, w1, b1, w2, b2):
        y = _layernorm(x, axis=-1)
        h = _gelu(torch.einsum("bsd,df->bsf", y, w1) + b1)
        return torch.einsum("bsf,fd->bsd", h, w2) + b2

    x = A_x
    xn = _layernorm(x, axis=-1)
    s = _A_ref(xn, A_k_cache, A_v_cache, A_wq, A_wo)
    g = _silu(_B_ref(xn, B_w1, B_b1, B_w2, B_b2))
    return x + s * g
```

```python
import re

TRANS = ('v_exp_f32', 'v_log_f32', 'v_rcp_f32', 'v_rsq_f32', 'v_sqrt_f32', 'v_sin_f32', 'v_cos_f32')


class Asm:
    def __init__(self):
        self.lines = []

    def __call__(self, s):
        for l in s.strip('\n').split('\n'):
            l = l.strip()
            if l:
                self.lines.append(l)

    def label(self, name):
        self.lines.append(name + ':')

    def text(self):
        out = []
        for l in self.lines:
            if l.endswith(':') or l.startswith('.') or l.startswith(';'):
                out.append(l)
            else:
                out.append('    ' + l)
        return '\n'.join(out) + '\n'


def v(i, n=1):
    return f'v{i}' if n == 1 else f'v[{i}:{i + n - 1}]'


def a(i, n=1):
    return f'a{i}' if n == 1 else f'a[{i}:{i + n - 1}]'


def s(i, n=1):
    return f's{i}' if n == 1 else f's[{i}:{i + n - 1}]'


_REG = re.compile(r'^(-|abs\()?([vas])(?:(\d+)|\[(\d+):(\d+)\])\)?$')


def regs(tok):
    tok = tok.strip()
    if tok in ('vcc', 'vcc_lo', 'vcc_hi'):
        return {'vcc'}
    if tok in ('m0', 'exec', 'scc'):
        return {tok}
    m = _REG.match(tok)
    if not m:
        return set()
    k = m.group(2)
    if m.group(3) is not None:
        return {k + m.group(3)}
    return {k + str(i) for i in range(int(m.group(4)), int(m.group(5)) + 1)}


class Ins:
    def __init__(self, text):
        self.text = text
        t = text.split(';')[0].strip()
        p = t.split(None, 1)
        self.op = p[0]
        rest = p[1] if len(p) > 1 else ''
        ops = []
        for tok in re.split(r',\s*', rest):
            ops.append(tok.strip())
        if ops:
            last = ops[-1].split()
            self.mods = last[1:] if last else []
            ops[-1] = last[0] if last else ''
        else:
            self.mods = []
        self.ops = ops
        op = self.op
        R = [regs(o) for o in ops]
        self.w = set(); self.r = set(); self.c = set(); self.ab = set()
        self.kind = 'other'; self.ws = 1; self.passes = 0
        allr = set().union(*R) if R else set()
        if op == 's_nop':
            self.kind = 'nop'; self.ws = int(ops[0], 0) + 1
        elif op.startswith('v_mfma'):
            self.kind = 'mfma'; self.w = R[0]; self.ab = R[1] | R[2]; self.c = R[3]; self.r = self.ab | self.c
            self.passes = 8 if '32x32x16' in op else 4
        elif op.startswith('v_cmp'):
            self.kind = 'valu'; self.w = R[0]; self.r = set().union(*R[1:])
            if op.startswith('v_cmpx'):
                self.w = self.w | {'exec'}
        elif op.startswith('v_readfirstlane') or op.startswith('v_readlane'):
            self.kind = 'readlane'; self.w = R[0]; self.r = set().union(*R[1:])
        elif op.startswith('v_permlane'):
            self.kind = 'permlane'; self.w = R[0] | R[1]; self.r = R[0] | R[1]
        elif op.startswith('v_'):
            self.kind = 'trans' if op.replace('_e32', '').replace('_e64', '') in TRANS else 'valu'
            if '_co_' in op:
                self.w = R[0] | R[1]; self.r = set().union(*R[2:])
            else:
                self.w = R[0]; self.r = set().union(*R[1:]) if len(R) > 1 else set()
            if op.startswith('v_fmac') or op.startswith('v_dot2c') or op.startswith('v_writelane'):
                self.r |= R[0]
            if op.startswith('v_cndmask') and len(R) == 3:
                self.r |= {'vcc'}
            self.dpp = any(m.startswith(('row_', 'quad_perm', 'wave_')) for m in self.mods) or '_dpp' in op
            if self.dpp:
                self.kind = 'dpp'
        elif op.startswith('ds_read') or op.startswith('ds_bpermute') or op.startswith('ds_swizzle'):
            self.kind = 'dsr'; self.w = R[0]; self.r = set().union(*R[1:])
        elif op.startswith('ds_'):
            self.kind = 'dsw'; self.r = allr
        elif op.startswith('buffer_load') or op.startswith('global_load'):
            if 'lds' in self.mods or '_lds_' in op:
                self.kind = 'dma'; self.r = allr | {'m0'}
            else:
                self.kind = 'vld'; self.w = R[0]; self.r = set().union(*R[1:])
        elif op.startswith('buffer_store') or op.startswith('global_store') or 'atomic' in op:
            self.kind = 'vst'; self.r = allr
            self.wide = op.endswith('x4') or op.endswith('x3')
            self.data = R[0] if op.startswith('buffer') else R[1]
            if 'atomic' in op and 'sc0' in self.mods:
                self.w = R[0]
        elif op.startswith('s_load') or op.startswith('s_memtime') or op.startswith('s_memrealtime'):
            self.kind = 'smem'; self.w = R[0]; self.r = set().union(*R[1:]) if len(R) > 1 else set()
        elif op.startswith(('s_cbranch', 's_branch')):
            self.kind = 'branch'
        elif op.startswith(('s_waitcnt', 's_barrier', 's_setprio', 's_endpgm', 's_sleep', 'buffer_wbl2', 'buffer_inv')):
            self.kind = 'other'
        elif op.startswith('s_cmp'):
            self.kind = 'salu'; self.r = allr
        elif op.startswith('s_'):
            self.kind = 'salu'; self.w = R[0]; self.r = set().union(*R[1:]) if len(R) > 1 else set()
            if 'saveexec' in op:
                self.w |= {'exec'}


VALU_KINDS = ('valu', 'trans', 'dpp', 'permlane', 'readlane')
VMEM_KINDS = ('vld', 'vst', 'dma')


def _vregs(x):
    return {r for r in x if r[0] in 'va' and r not in ('vcc',)}


def _sregs(x):
    return {r for r in x if r == 'vcc' or (r[0] == 's' and r != 'scc')}


def need(p, c):
    n = 0
    pv = p.kind in VALU_KINDS
    cv = c.kind in VALU_KINDS
    if p.kind == 'mfma':
        big = {8: 12, 4: 8}[p.passes]
        if c.kind == 'mfma':
            if p.w & c.ab:
                n = max(n, big)
            if p.w & c.c and not (p.w == c.c and p.passes == c.passes):
                n = max(n, big - 2)
            if p.w & c.w and not (p.w == c.c and p.passes == c.passes) and not (p.w & c.c):
                n = max(n, 0)
        elif cv or c.kind in VMEM_KINDS or c.kind in ('dsr', 'dsw'):
            if p.w & (c.r | c.w):
                n = max(n, big)
        if cv and (p.c & c.w):
            n = max(n, {8: 7, 4: 3}[p.passes])
    if pv:
        wv = _vregs(p.w); wsr = _sregs(p.w)
        if c.kind == 'mfma' and wv & c.r:
            n = max(n, 2)
        if p.kind == 'trans' and cv and c.kind != 'trans' and wv & c.r:
            n = max(n, 1)
        if c.kind in ('permlane', 'dpp') and wv & c.r:
            n = max(n, 2)
        if c.kind == 'readlane' and wv & c.r:
            n = max(n, 1)
        if c.kind in VMEM_KINDS and wsr & c.r:
            n = max(n, 5)
        if cv and wsr & c.r:
            n = max(n, 4 if c.kind == 'readlane' else 2)
        if 'exec' in p.w:
            if c.kind == 'mfma' or c.kind in ('readlane', 'permlane'):
                n = max(n, 4)
            if c.kind == 'dpp':
                n = max(n, 5)
    if p.kind == 'salu' and 'm0' in p.w and c.kind == 'dma':
        n = max(n, 1)
    if p.kind == 'vst' and getattr(p, 'wide', False) and (p.data & c.w):
        n = max(n, 2 if cv else 1)
    return n


def check(lines, window=24):
    ins = []; labels = {}
    for l in lines:
        t = l.split(';')[0].strip()
        if not t or t.startswith('.'):
            continue
        if t.endswith(':'):
            labels[t[:-1]] = len(ins)
            continue
        ins.append(Ins(t))
    probs = []

    def scan(seq, first_consumer):
        for j in range(first_consumer, len(seq)):
            c = seq[j]; d = 0
            for i in range(j - 1, max(-1, j - window), -1):
                p = seq[i]
                n = need(p, c)
                if n > d:
                    probs.append(f'need {n} have {d}: [{p.text}] -> [{c.text}]')
                d += p.ws
                if d >= 20:
                    break

    seq = []
    for x in ins:
        seq.append(x)
        if x.op in ('s_branch', 's_endpgm'):
            scan(seq, 0); seq = []
    scan(seq, 0)
    for k, x in enumerate(ins):
        if x.kind == 'branch':
            tgt = labels[x.ops[0]]
            pre = ins[max(0, k - window):k + 1]
            post = []
            for y in ins[tgt:tgt + window]:
                post.append(y)
                if y.op in ('s_branch', 's_endpgm'):
                    break
            scan(pre + post, len(pre))
    return sorted(set(probs))


def fix(lines, window=24):
    out = []; hist = []; added = 0
    for l in lines:
        t = l.split(';')[0].strip()
        if not t or t.startswith('.') or t.endswith(':'):
            out.append(l)
            continue
        c = Ins(t)
        d = 0; deficit = 0
        for p in reversed(hist[-window:]):
            n = need(p, c)
            deficit = max(deficit, n - d)
            d += p.ws
            if d >= 20:
                break
        if deficit > 0:
            nop = f's_nop {deficit - 1}'
            out.append(nop); hist.append(Ins(nop)); added += 1
        out.append(l); hist.append(c)
        if c.op in ('s_branch', 's_endpgm'):
            hist = []
    return out, added


def stamp_begin(A, sb=90):
    A(f's_memrealtime s[{sb}:{sb+1}]')
    A(f's_memtime s[{sb+2}:{sb+3}]')


def stamp_end(A, idx, vt, sb=90):
    A('s_waitcnt vmcnt(0)')
    A(f's_memrealtime s[{sb+4}:{sb+5}]')
    A(f's_memtime s[{sb+6}:{sb+7}]')
    A('s_load_dwordx2 s[80:81], s[0:1], 96')
    A('s_waitcnt lgkmcnt(0)')
    A('s_mov_b32 s82, 0x4000000\ns_mov_b32 s83, 0x20000')
    A(f's_sub_u32 s{sb+6}, s{sb+6}, s{sb+2}')
    A(f'v_lshrrev_b32 v{vt+4}, 6, v0')
    A(f'v_lshlrev_b32 v{vt+4}, 4, v{vt+4}')
    A(f's_lshl_b32 s84, s2, 6\ns_add_u32 s84, s84, {(48 << 20) + idx * 65536}')
    A(f'v_mov_b32 v{vt}, s{sb}\nv_mov_b32 v{vt+1}, s{sb+4}\nv_mov_b32 v{vt+2}, s{sb+6}\nv_mov_b32 v{vt+3}, 0')
    A(f'buffer_store_dwordx4 v[{vt}:{vt+3}], v{vt+4}, s[80:83], s84 offen')
```

```python
from asmlib import Asm, v, a, s

WS_O = 0
WS_H = 16 << 20
WS_Q = 32 << 20

SA, SB = 0, 32
NEGM = 64
ADK = 80
ADV = 84
VOK = 92
VOV = 96
LS = 98
LANE = 102
ONES = 103
LS2 = 120
T0 = 104
OACC = 128
QF = 0
KF = 64
VF = 128
SRD_K, SRD_V, SRD_WS = 4, 8, 12
SW, SHEAD, SQB, SOFF, SM0, SCNT = 20, 21, 22, 23, 24, 25
SFLIP = 65
MFMA = 'v_mfma_f32_16x16x32_bf16'
NG = 128


def stile(half, ql, kt):
    return (SA if half == 0 else SB) + 8 * (2 * ql + (kt >> 1)) + 4 * (kt & 1)


def period(A, j, first=False, tail=False, opts=None):
    o = opts or {}
    slot = j & 3
    gaps = [[] for _ in range(NG)]
    mf = [None] * NG
    needs = [None] * NG
    for half, g0 in ((0, 0), (1, 64)):
        if first or tail:
            continue
        for kt in range(4):
            for ql in range(2):
                qt = 2 * half + ql
                for ks in range(4):
                    g = g0 + 8 * kt + 4 * ql + ks
                    S = stile(half, ql, kt)
                    mf[g] = f'{MFMA} {v(S,4)}, {a(KF+4*(4*kt+ks),4)}, {a(QF+4*(4*qt+ks),4)}, {v(NEGM+4*qt,4) if ks == 0 else v(S,4)}'
                    if half == 0:
                        needs[g] = ('K', 4 * kt + ks)
    for half, g0 in ((1, 32), (0, 96)):
        if (half == 1 and first) or (half == 0 and tail):
            continue
        for dt in range(8):
            for ql in range(2):
                qt = 2 * half + ql
                for kp in range(2):
                    g = g0 + 4 * dt + 2 * ql + kp
                    O = OACC + 4 * (8 * qt + dt)
                    mf[g] = f'{MFMA} {v(O,4)}, {a(VF+4*(2*dt+kp),4)}, {v(stile(half, ql, 2*kp),4)}, {v(O,4)}'
                    if half == 0:
                        needs[g] = ('V', 2 * dt + kp)
    e0 = o.get('e0', 12)

    def sm(half, g0, lo, hi):
        order = [(kt, ql) for kt in range(4) for ql in range(2)]
        for n, (kt, ql) in enumerate(order):
            S = stile(half, ql, kt); lr = LS + 2 * half + ql
            for r in range(4):
                ge = g0 + 8 * n + 2 * r
                if lo <= ge < hi:
                    gaps[ge % NG].append((0, f'v_exp_f32 {v(S+r)}, {v(S+r)}'))
                summ = o.get('sum', 'add')
                if summ == 'add' and lo <= ge + 1 < hi:
                    gaps[(ge + 1) % NG].append((1, f'v_add_f32 {v(lr)}, {v(lr)}, {v(S+r)}'))
                if summ == 'pk' and r & 1 and lo <= ge + 1 < hi:
                    l2 = LS2 + 2 * (2 * half + ql)
                    gaps[(ge + 1) % NG].append((1, f'v_pk_add_f32 {v(l2,2)}, {v(l2,2)}, {v(S+r-1,2)}'))
                if summ == 'dot' and r & 1 and lo <= ge + 5 < hi:
                    dst = S - 4 * (kt & 1) + 2 * (kt & 1) + (r >> 1)
                    gaps[(ge + 5) % NG].append((1, f'v_dot2c_f32_bf16 {v(lr)}, {v(dst)}, {v(ONES)}'))
                if r & 1 and lo <= ge + 3 < hi:
                    dst = S - 4 * (kt & 1) + 2 * (kt & 1) + (r >> 1)
                    gaps[(ge + 3) % NG].append((2, f'v_cvt_pk_bf16_f32 {v(dst)}, {v(S+r-1)}, {v(S+r)}'))
    if not o.get('no_sm'):
        if not tail:
            sm(0, e0, 0, NG)
            sm(1, 64 + e0, 0, NG)
        if not first:
            sm(1, 64 + e0, NG, 2 * NG)
    reads = []
    if not tail and not o.get('no_lds'):
        for n in range(32):
            f, jh = n >> 1, n & 1
            dt, kp = f >> 1, f & 1
            off = slot * 16384 + (32 * kp + 16 * jh) * 256
            reads.append((o.get('vpos', lambda n: 36 + 2 * n)(n), ('V', f), f'ds_read_b64_tr_b16 {a(VF+4*f+2*jh,2)}, {v(ADV+dt)} offset:{off}'))
        for n in range(16):
            kt, ks = n >> 2, n & 3
            g = o.get('kpos', lambda n: 75 + 2 * n + 2 * (n >> 2) * 2 if n < 16 else 0)(n)
            if g >= NG:
                if first:
                    continue
                off = ((j - 1) & 3) * 16384 + kt * 4096
                reads.append((g - NG, ('Kl', n), f'ds_read_b128 {a(KF+4*n,4)}, {v(ADK+ks)} offset:{off}'))
                for gg in range(NG):
                    if needs[gg] == ('K', n):
                        needs[gg] = ('Kl', n)
            else:
                off = slot * 16384 + kt * 4096
                reads.append((g, ('K', n), f'ds_read_b128 {a(KF+4*n,4)}, {v(ADK+ks)} offset:{off}'))
        if o.get('no_k'):
            reads = [r for r in reads if r[1][0] != 'K']
            needs = [n if n and n[0] != 'K' else None for n in needs]
        if o.get('no_v'):
            reads = [r for r in reads if r[1][0] != 'V']
            needs = [n if n and n[0] != 'V' else None for n in needs]
        for g, tag, txt in reads:
            gaps[g % NG].append((o.get('rprio', lambda g: -1)(g), txt))
    if not tail:
        dslot = (j + 2) & 3
        if not o.get('no_bar'):
            gaps[1].append((-2, f's_waitcnt vmcnt({o.get("first_vm", 8) if first else 8})' if not o.get('no_dma') else 's_nop 0'))
            gaps[2].append((-2, 's_barrier'))
        if not o.get('no_dma'):
            gaps[o.get('km', 3)].append((-2, f's_add_u32 m0, {s(SM0)}, {dslot*16384}'))
            for i in range(4):
                gaps[o.get('kd', lambda i: 5 + 3 * i)(i)].append((-2, f'buffer_load_dwordx4 {v(VOK+i)}, {s(SRD_K,4)}, {s(SOFF)} offen offset:{1024*i} lds'))
            gaps[o.get('vm', 17)].append((-2, f's_add_u32 m0, {s(SM0)}, {65536+dslot*16384}'))
            for i in range(4):
                gaps[o.get('vd', lambda i: 19 + 3 * i)(i)].append((-2, f'buffer_load_dwordx4 {v(VOV+(i&1))}, {s(SRD_V,4)}, {s(SOFF)} offen offset:{1024*i} lds'))
            gaps[127].append((-2, f's_add_u32 {s(SOFF)}, {s(SOFF)}, 16384'))
    sr = sorted(reads, key=lambda r: r[0])
    order = [(g - NG, tag) for g, tag, _ in sr] + [(g, tag) for g, tag, _ in sr]
    nprev = len(sr)
    done = -1
    waits = {}
    lat = o.get('lat', 10)
    for g in range(NG):
        if needs[g] is None or not order:
            continue
        tag = needs[g]
        if tag[0] == 'K':
            cand = [i for i, (gg, tg) in enumerate(order) if tg == tag and i < nprev]
        else:
            cand = [i for i, (gg, tg) in enumerate(order) if tg == tag and i >= nprev]
        idx = max(cand)
        assert order[idx][0] < g - 2, (tag, g, order[idx])
        if idx > done:
            issued = [i for i, (gg, tg) in enumerate(order) if gg < g]
            old = [i for i, (gg, tg) in enumerate(order) if gg <= g - lat]
            cover = max(idx, max(old))
            n = max(issued) - cover
            assert n <= 15
            waits[g] = n
            done = cover
    last = 64 if tail else NG
    for g in range(last):
        if g == 0 and g in waits:
            A(f's_waitcnt lgkmcnt({waits[g]})')
        if mf[g] and not o.get('no_mfma'):
            A(mf[g])
        items = sorted(gaps[g], key=lambda x: x[0])
        if (g + 1) in waits:
            k = len([1 for pr, _ in items if pr < 0])
            items.insert(k, (0, f's_waitcnt lgkmcnt({waits[g+1]})'))
        for _, txt in items:
            A(txt)


def lane_setup(A, rot=False):
    L = LANE; t1 = T0; t2 = T0 + 1; t3 = T0 + 2; r = T0 + 4; base = T0 + 5; x = T0 + 6
    if not rot:
        A(f'v_and_b32 {v(L)}, 63, v0')
    A(f'v_lshrrev_b32 {v(t1)}, 4, {v(L)}')
    A(f'v_and_b32 {v(t2)}, 15, {v(L)}')
    for i in range(4):
        A(f'v_add_u32 {v(t3)}, {4*i}, {v(t1)}')
        A(f'v_xor_b32 {v(t3)}, {v(t3)}, {v(t2)}')
        A(f'v_lshlrev_b32 {v(t3)}, 4, {v(t3)}')
        A(f'v_lshl_add_u32 {v(VOK+i)}, {v(t1)}, 8, {v(t3)}')
        if rot:
            A(f's_xor_b32 s29, {s(SW)}, {i}')
            A('s_lshl_b32 s29, s29, 2')
            A(f'v_add_u32 {v(t3)}, s29, {v(t1)}')
            A(f'v_xor_b32 {v(t3)}, {v(t3)}, {v(t2)}')
            A(f'v_lshlrev_b32 {v(t3)}, 4, {v(t3)}')
        A(f'v_lshl_add_u32 {v(ADK+i)}, {v(t2)}, 8, {v(t3)}')
    for i in range(2):
        A(f'v_add_u32 {v(t3)}, {4*i}, {v(t1)}')
        A(f'v_lshlrev_b32 {v(t3)}, 1, {v(t3)}')
        A(f'v_xor_b32 {v(t3)}, {v(t3)}, {v(t2)}')
        A(f'v_lshlrev_b32 {v(t3)}, 4, {v(t3)}')
        A(f'v_lshl_add_u32 {v(VOV+i)}, {v(t1)}, 8, {v(t3)}')
    A(f'v_lshrrev_b32 {v(r)}, 2, {v(L)}')
    A(f'v_and_b32 {v(t3)}, 3, {v(L)}')
    A(f'v_lshlrev_b32 {v(t3)}, 3, {v(t3)}')
    A(f'v_lshl_add_u32 {v(base)}, {v(r)}, 8, {v(t3)}')
    A(f'v_add_u32 {v(base)}, 0x10000, {v(base)}')
    A(f'v_and_b32 {v(x)}, 7, {v(r)}')
    for dt in range(8):
        A(f'v_xor_b32 {v(t3)}, {dt}, {v(x)}')
        A(f'v_lshl_add_u32 {v(ADV+dt)}, {v(t3)}, 5, {v(base)}')


def kv_dma(A, which, slot, soff, srd=None):
    if which == 'K':
        A(f's_add_u32 m0, {s(SM0)}, {slot*16384}')
        A('s_nop 0')
        for i in range(4):
            A(f'buffer_load_dwordx4 {v(VOK+i)}, {s(srd or SRD_K,4)}, {s(soff)} offen offset:{1024*i} lds')
    else:
        A(f's_add_u32 m0, {s(SM0)}, {65536+slot*16384}')
        A('s_nop 0')
        for i in range(4):
            A(f'buffer_load_dwordx4 {v(VOV+(i&1))}, {s(SRD_V,4)}, {s(soff)} offen offset:{1024*i} lds')


def xlane(A, op, reg, tmp):
    for sw in ('v_permlane32_swap_b32', 'v_permlane16_swap_b32'):
        A(f'v_mov_b32 {v(tmp)}, {v(reg)}')
        A('s_nop 1')
        A(f'{sw} {v(reg)}, {v(tmp)}')
        A(f'{op} {v(reg)}, {v(reg)}, {v(tmp)}')


def attn_start(A, k0=3*16384):
    for i in range(4):
        A(f'v_add_u32 {v(T0+16+i)}, {k0}, {v(ADK+i)}')
    for n in range(16):
        A(f'ds_read_b128 {a(KF+4*n,4)}, {v(T0+16+(n&3))} offset:{(n>>2)*4096}')
    for i in range(128):
        A(f'v_mov_b32 {v(OACC+i)}, 0')
    for i in range(4):
        A(f'v_mov_b32 {v(LS+i)}, 0')
    for i in range(8):
        A(f'v_mov_b32 {v(LS2+i)}, 0')
    A(f'v_mov_b32 {v(ONES)}, 0x3f803f80')
    A('s_waitcnt lgkmcnt(0)')
    for qt in range(4):
        for kt in range(4):
            S = stile(qt >> 1, qt & 1, kt)
            for ks in range(4):
                A(f'{MFMA} {v(S,4)}, {a(KF+4*(4*kt+ks),4)}, {a(QF+4*(4*qt+ks),4)}, {0 if ks == 0 else v(S,4)}')
    for qt in range(4):
        S = stile(qt >> 1, qt & 1, 0); m = T0 + 2 * qt
        A(f'v_max3_f32 {v(m)}, {v(S)}, {v(S+1)}, {v(S+2)}')
        for i in range(3, 15, 2):
            A(f'v_max3_f32 {v(m)}, {v(m)}, {v(S+i)}, {v(S+i+1)}')
        A(f'v_max_f32 {v(m)}, {v(m)}, {v(S+15)}')
        xlane(A, 'v_max_f32', m, m + 1)
        for i in range(4):
            A(f'v_sub_f32 {v(NEGM+4*qt+i)}, 0, {v(m)}')
        for i in range(16):
            A(f'v_sub_f32 {v(S+i)}, {v(S+i)}, {v(m)}')


def attn_loop(A, opts=None):
    for j in range(4):
        period(A, j, first=(j == 0), opts=opts)
    A(f's_mov_b32 {s(SCNT)}, 7')
    A.label('L_attn_loop')
    for j in range(4, 8):
        period(A, j, opts=opts)
    A(f's_sub_u32 {s(SCNT)}, {s(SCNT)}, 1')
    A(f's_cmp_lg_u32 {s(SCNT)}, 0')
    A('s_cbranch_scc1 L_attn_loop')
    period(A, 32, tail=True, opts=opts)


def attn_store(A, opts=None):
    lo = T0 + 8
    if (opts or {}).get('sum') == 'pk':
        for qt in range(4):
            A(f'v_add_f32 {v(LS+qt)}, {v(LS2+2*qt)}, {v(LS2+2*qt+1)}')
    A(f'v_lshlrev_b32 {v(lo)}, 4, {v(LANE)}')
    for qt in range(4):
        xlane(A, 'v_add_f32', LS + qt, T0)
        A(f'v_rcp_f32 {v(T0+4+qt)}, {v(LS+qt)}')
    A(f's_lshl_b32 s30, {s(SQB)}, 4')
    A(f's_lshl_b32 s31, {s(SW)}, 2')
    A('s_add_u32 s30, s30, s31')
    A('s_lshl_b32 s30, s30, 10')
    A(f's_lshl_b32 s31, {s(SHEAD)}, 19')
    A('s_add_u32 s30, s30, s31')
    A(f's_lshl_b32 s31, {s(SFLIP)}, 6')
    A('s_add_u32 s30, s30, s31')
    A('s_xor_b32 s31, s30, 2048')
    n = 0
    for k in range(4):
        for qt in range(4):
            b = OACC + (qt * 8 + 2 * k) * 4
            d = SA + 4 * (n % 4); n += 1
            for i in range(8):
                A(f'v_mul_f32 {v(b+i)}, {v(b+i)}, {v(T0+4+qt)}')
            for i in range(4):
                A(f'v_cvt_pk_bf16_f32 {v(d+i)}, {v(b+2*i)}, {v(b+2*i+1)}')
            A(f'buffer_store_dwordx4 {v(d,4)}, {v(lo)}, {s(SRD_WS,4)}, s{30+(qt>>1)} offen offset:{(qt&1)*1024}')
        if k < 3:
            A('s_add_u32 s30, s30, 0x20000')
            A('s_add_u32 s31, s31, 0x20000')
```

```python
from asmlib import Asm, v, a, s, stamp_begin, stamp_end

MFMA = 'v_mfma_f32_16x16x32_bf16'
WS_O = 0
WS_H = 16 << 20
O_BYTES = 16 << 20
H_BYTES = 128 * 43 * 1024
NP = 22
RING = 4
AHEAD = 3

ACC = 0
AF = 64
VB = 128
VA = 129
RA = 133
XR = 136
T = 152
BF = 0


def k3(A, name='out_kernel', opts=None):
    o = opts or {}
    A(f'.globl {name}\n.p2align 8\n.type {name},@function')
    A.label(name)
    A('s_cmp_ge_u32 s2, 256')
    A('s_cbranch_scc1 L_k3_end')
    if o.get('stamp') is not None:
        stamp_begin(A)
        A('v_mov_b32 v175, v0')
    A('s_load_dwordx2 s[32:33], s[0:1], 0')
    A('s_load_dwordx2 s[34:35], s[0:1], 32')
    A('s_load_dwordx4 s[36:39], s[0:1], 64')
    A('s_load_dwordx2 s[40:41], s[0:1], 80')
    A('s_load_dwordx2 s[42:43], s[0:1], 96')
    A(f'v_lshrrev_b32 {v(T)}, 6, v0')
    A(f'v_and_b32 {v(T+1)}, 63, v0')
    A('s_and_b32 s20, s2, 7')
    A('s_lshl_b32 s20, s20, 2')
    A(f'v_readfirstlane_b32 s22, {v(T)}')
    A('s_bfe_u32 s21, s2, 0x20003')
    A('s_add_u32 s20, s20, s21')
    A('s_lshr_b32 s21, s2, 5')
    if o.get('same'):
        A('s_mov_b32 s20, 0\ns_mov_b32 s21, 0')
    if o.get('map2'):
        A('s_and_b32 s21, s2, 7\ns_lshr_b32 s20, s2, 3')
    if o.get('map3'):
        A('s_and_b32 s20, s2, 3\ns_lshl_b32 s20, s20, 3\ns_bfe_u32 s21, s2, 0x30003\ns_add_u32 s20, s20, s21\ns_bfe_u32 s21, s2, 0x10002\ns_lshl_b32 s21, s21, 2\ns_lshr_b32 s24, s2, 6\ns_add_u32 s21, s21, s24')
    L = T + 1
    A(f'v_lshlrev_b32 {v(VB)}, 4, {v(L)}')
    A(f'v_lshrrev_b32 {v(T+2)}, 3, {v(L)}')
    A(f'v_bfe_u32 {v(T+3)}, {v(L)}, 4, 1')
    A(f'v_lshlrev_b32 {v(T+3)}, 2, {v(T+3)}')
    A(f'v_and_b32 {v(T+4)}, 7, {v(L)}')
    A(f'v_xor_b32 {v(T+3)}, {v(T+3)}, {v(T+4)}')
    A(f'v_lshlrev_b32 {v(T+3)}, 4, {v(T+3)}')
    A(f'v_lshl_add_u32 {v(VA)}, {v(T+2)}, 10, {v(T+3)}')
    for i in range(1, 4):
        A(f'v_add_u32 {v(VA+i)}, {7168*i}, {v(VA)}')
    A(f'v_lshrrev_b32 {v(T+2)}, 2, {v(L)}')
    A(f'v_bfe_u32 {v(T+3)}, {v(L)}, 3, 1')
    A(f'v_and_b32 {v(T+4)}, 3, {v(L)}')
    A(f'v_lshlrev_b32 {v(T+4)}, 4, {v(T+4)}')
    A(f'v_lshl_add_u32 {v(T+4)}, {v(T+2)}, 7, {v(T+4)}')
    A('s_lshl_b32 s23, s22, 15')
    A(f'v_add_u32 {v(T+4)}, s23, {v(T+4)}')
    A(f'v_lshl_add_u32 {v(RA)}, {v(T+3)}, 6, {v(T+4)}')
    A(f'v_xor_b32 {v(RA+1)}, 64, {v(RA)}')
    for i in range(64):
        A(f'v_mov_b32 {v(ACC+i)}, 0')
    A('s_waitcnt lgkmcnt(0)')
    A('s_cmp_eq_u32 s22, 3')
    A('s_cselect_b32 s4, s36, s34')
    A('s_cselect_b32 s5, s37, s35')
    A(f's_mov_b32 s6, {4096*1024}')
    A(f's_cselect_b32 s6, {1376*1024}, s6')
    A('s_mov_b32 s7, 0x20000')
    A(f's_cselect_b32 s24, {WS_H}, {WS_O}')
    A(f's_mov_b32 s10, {O_BYTES}')
    A(f's_cselect_b32 s10, {H_BYTES}, s10')
    A('s_cselect_b32 s26, 0, s22')
    A('s_add_u32 s8, s42, s24')
    A('s_addc_u32 s9, s43, 0')
    A('s_mov_b32 s11, 0x20000')
    A('s_mul_i32 s26, s26, 44')
    A('s_lshl_b32 s27, s26, 15')
    A('s_lshl_b32 s28, s21, 7')
    A('s_add_u32 s27, s27, s28')
    A('s_lshl_b32 s28, s20, 12')
    A('s_lshl_b32 s26, s26, 17')
    A('s_add_u32 s28, s28, s26')
    A('s_mov_b32 s48, 0x7000000')
    def issue_list(p):
        slot = p % RING
        out = []
        for kk in range(2):
            for qt in range(4):
                out.append(f'buffer_load_dwordx4 {a(BF+32*slot+4*(4*kk+qt),4)}, {v(VB)}, s[8:11], {"s48" if o.get("nob") else "s28"} offen offset:{1024*qt}')
            out[-1] += '\ns_add_u32 s28, s28, 0x20000'
            if kk == 1:
                out[-1] += f'\ns_add_u32 m0, s23, {slot*8192}'
        for half in range(2):
            for i in range(4):
                out.append(f'buffer_load_dwordx4 {v(VA+i)}, s[4:7], {"s48" if o.get("noa") else "s27"} offen offset:{1024*i} lds')
            out[-1] += '\ns_add_u32 s27, s27, 32768'
            if half == 0:
                out[-1] += f'\ns_add_u32 m0, s23, {slot*8192+4096}'
        if o.get('dropa'):
            out = [x.replace(x.split('\n')[0], 's_nop 0') if ' lds' in x.split('\n')[0] else x for x in out]
        if o.get('dropb'):
            out = [x.replace(x.split('\n')[0], 's_nop 0') if ' lds' not in x.split('\n')[0] else x for x in out]
        return out

    def issue(p):
        for x in issue_list(p):
            A(x)

    def read_list(p):
        slot = p % RING; st = p & 1
        out = []
        for nt in range(4):
            for kk in range(2):
                for jh in range(2):
                    off = slot * 8192 + (32 * kk + 16 * jh) * 128 + 8 * (nt & 1)
                    out.append(f'ds_read_b64_tr_b16 {v(AF+32*st+4*(4*kk+nt)+2*jh,2)}, {v(RA+(nt>>1))} offset:{off}')
        return out

    for p in range(AHEAD):
        issue(p)
    A('s_mov_b32 s12, s32\ns_mov_b32 s13, s33\ns_mov_b32 s14, 0x200000\ns_mov_b32 s15, 0x20000')
    A('s_mov_b32 s16, s38\ns_mov_b32 s17, s39\ns_mov_b32 s18, 1024\ns_mov_b32 s19, 0x20000')
    A('s_lshl_b32 s44, s20, 2')
    A('s_add_u32 s44, s44, s22')
    A('s_lshl_b32 s44, s44, 14')
    A('s_lshl_b32 s45, s21, 7')
    A('s_add_u32 s44, s44, s45')
    A(f'v_and_b32 {v(T+2)}, 15, {v(L)}')
    A(f'v_lshrrev_b32 {v(T+3)}, 4, {v(L)}')
    A(f'v_lshlrev_b32 {v(T+3)}, 4, {v(T+3)}')
    A(f'v_lshl_add_u32 {v(T+5)}, {v(T+2)}, 10, {v(T+3)}')
    for np_ in range(2):
        A(f'buffer_load_dwordx4 {v(XR+4*np_,4)}, {v(T+5)}, s[12:15], s44 offen offset:{64*np_}')
        A(f'buffer_load_dwordx4 {v(XR+8+4*np_,4)}, {v(T+3)}, s[16:19], s45 offen offset:{64*np_}')
    extra = 4
    A(f's_waitcnt vmcnt({16*(AHEAD-1)+extra})')
    for x in read_list(0):
        A(x)
    for p in range(NP):
        fill = [[] for _ in range(32)]
        if p + AHEAD < NP:
            for i, x in enumerate(issue_list(p + AHEAD)):
                fill[i].append(x)
        if p + 1 < NP:
            later = 16 * (min(p + AHEAD, NP - 1) - (p + 1)) + (extra if p + 1 < AHEAD else 0)
            fill[15].append(f's_waitcnt vmcnt({later})')
            for i, x in enumerate(read_list(p + 1)):
                fill[16 + i].append(x)
        slot = p % RING; st = p & 1
        g = 0
        for nt in range(4):
            if nt < 3:
                A(f's_waitcnt lgkmcnt({[12, 0, 0][nt]})') if nt < 2 else None
            for qt in range(4):
                for kk in range(2):
                    c = ACC + 4 * (4 * nt + qt)
                    A(f'{MFMA} {v(c,4)}, {v(AF+32*st+4*(4*kk+nt),4)}, {a(BF+32*slot+4*(4*kk+qt),4)}, {v(c,4)}')
                    for x in fill[g]:
                        A(x)
                    g += 1
    A(f'v_add_u32 {v(T+6)}, s23, {v(VB)}')
    for qt in range(4):
        for nt in range(4):
            A(f'ds_write_b128 {v(T+6)}, {v(ACC+4*(4*nt+qt),4)} offset:{(4*qt+nt)*1024}')
    A('s_lshl_b32 s46, s22, 12')
    A(f'v_add_u32 {v(T+6)}, s46, {v(VB)}')
    A(f'v_add_u32 {v(T+7)}, 0x10000, {v(T+6)}')
    A('s_waitcnt lgkmcnt(0)')
    A('s_barrier')
    for src in range(4):
        for nt in range(4):
            A(f'ds_read_b128 {v(ACC+16*src+4*nt,4)}, {v(T+6+(src>>1))} offset:{(src&1)*32768+nt*1024}')
    A('s_mov_b32 s12, s40\ns_mov_b32 s13, s41')
    A('s_mov_b32 s47, 0xbfb8aa3b')
    A('s_waitcnt vmcnt(0) lgkmcnt(0)')
    for np_ in range(2):
        for e in range(2):
            nt = 2 * np_ + e
            for r in range(4):
                i = 4 * nt + r
                j = 4 * e + r
                xs = XR + 4 * np_ + (j >> 1); bs = XR + 8 + 4 * np_ + (j >> 1)
                t0, t1 = T + 8, T + 9
                if j & 1:
                    A(f'v_and_b32 {v(t0)}, 0xffff0000, {v(bs)}')
                    A(f'v_and_b32 {v(t1)}, 0xffff0000, {v(xs)}')
                else:
                    A(f'v_lshlrev_b32 {v(t0)}, 16, {v(bs)}')
                    A(f'v_lshlrev_b32 {v(t1)}, 16, {v(xs)}')
                A(f'v_add_f32 {v(ACC+48+i)}, {v(ACC+48+i)}, {v(t0)}')
                A(f'v_add_f32 {v(ACC+i)}, {v(ACC+i)}, {v(ACC+16+i)}')
                A(f'v_mul_f32 {v(t0)}, s47, {v(ACC+48+i)}')
                A(f'v_add_f32 {v(ACC+i)}, {v(ACC+i)}, {v(ACC+32+i)}')
                A(f'v_exp_f32 {v(t0)}, {v(t0)}')
                A(f'v_mul_f32 {v(ACC+i)}, {v(ACC+i)}, {v(ACC+48+i)}')
                A(f'v_add_f32 {v(t0)}, 1.0, {v(t0)}')
                A(f'v_rcp_f32 {v(t0)}, {v(t0)}')
                A('s_nop 0')
                A(f'v_fma_f32 {v(ACC+i)}, {v(ACC+i)}, {v(t0)}, {v(t1)}')
        d = T + 12 + 4 * np_
        for k in range(4):
            A(f'v_cvt_pk_bf16_f32 {v(d+k)}, {v(ACC+8*np_+2*k)}, {v(ACC+8*np_+2*k+1)}')
        A(f'buffer_store_dwordx4 {v(d,4)}, {v(T+5)}, s[12:15], s44 offen offset:{64*np_}')
    if o.get('stamp') is not None:
        A('v_mov_b32 v0, v175')
        stamp_end(A, o['stamp'], 168)
    A.label('L_k3_end')
    A('s_endpgm')


def k3_desc(A, name='out_kernel'):
    A(f'.amdhsa_kernel {name}\n.amdhsa_next_free_vgpr 304\n.amdhsa_next_free_sgpr 100\n.amdhsa_accum_offset 176')
    A('.amdhsa_group_segment_fixed_size 0\n.amdhsa_kernarg_size 104\n.amdhsa_user_sgpr_count 2\n.amdhsa_user_sgpr_kernarg_segment_ptr 1\n.amdhsa_system_sgpr_workgroup_id_x 1\n.end_amdhsa_kernel')


if __name__ == '__main__':
    from asmlib import check, fix
    for nm, o in {'base': {}, 'same': dict(same=1), 'nob': dict(nob=1), 'noa': dict(noa=1), 'none': dict(noa=1, nob=1), 'map2': dict(map2=1), 'map3': dict(map3=1),
                  'dropa': dict(dropa=1, same=1), 'dropb': dict(dropb=1, same=1), 'dropab': dict(dropa=1, dropb=1)}.items():
        A = Asm()
        A('; @launch kernel=out_kernel grid=(256,1,1) block=(256,1,1) lds=131072')
        A('.amdgcn_target "amdgcn-amd-amdhsa--gfx950"\n.text')
        k3(A, opts=dict(o, stamp=0))
        A('.section .rodata,"a"\n.p2align 6')
        k3_desc(A)
        A.lines, n = fix(A.lines)
        p = check(A.lines)
        print(nm, len(A.lines), 'lines, nops', n, 'hazards', p[:5])
        open(f'k3_{nm}.s', 'w').write(A.text())
```

```python
from asmlib import Asm, v, a, s
from gen_attn16 import *

X_RING = 0
W_RING = 65536
K0_LDS = 139264
CS_LDS = 155648
VXO = 0
VWQ = 8
VW1 = 12
RX = 14
RWQ = 16
RW1 = 20
B1R = 24
CSR = 32
PT = 64
XB = 0
AR = 64
ONESA = 96
HB, HE, SUM, GRAM, CSQ, CS1 = 128, 160, 176, 192, 208, 216
SRD_X, SRD_WQ, SRD_W1, SRD_K0, SRD_H, SRD_B1 = 16, 40, 44, 48, 52, 56
SXM, SXO, SWQO, SW1O, SM1, SFLIP = 60, 61, 62, 63, 64, 65
NPOS = 14


def p1_lane_setup(A):
    L = LANE; t1, t2, t3, t4 = PT, PT + 1, PT + 2, PT + 3
    A(f'v_lshrrev_b32 {v(t1)}, 3, {v(L)}')
    A(f'v_lshrrev_b32 {v(t2)}, 4, {v(L)}')
    A(f'v_and_b32 {v(t3)}, 7, {v(L)}')
    for i in range(8):
        A(f'v_add_u32 {v(t4)}, {4*(i&1)}, {v(t2)}')
        A(f'v_xor_b32 {v(t4)}, {v(t4)}, {v(t3)}')
        A(f'v_lshlrev_b32 {v(t4)}, 4, {v(t4)}')
        A(f'v_add_u32 {v(VXO+i)}, {8*i}, {v(t1)}')
        A(f'v_xor_b32 {v(VXO+i)}, {s(SFLIP)}, {v(VXO+i)}')
        A(f'v_lshl_add_u32 {v(VXO+i)}, {v(VXO+i)}, 10, {v(t4)}')
        if i & 3:
            A(f'v_subrev_u32 {v(VXO+i)}, {1024*(i&3)}, {v(VXO+i)}')
    A(f'v_and_b32 {v(t3)}, 15, {v(L)}')
    A(f'v_lshlrev_b32 {v(t4)}, 2, {v(t2)}')
    A(f'v_xor_b32 {v(t4)}, {v(t4)}, {v(t3)}')
    A(f'v_lshlrev_b32 {v(t4)}, 4, {v(t4)}')
    A(f'v_lshl_add_u32 {v(VWQ)}, {v(t2)}, 13, {v(t4)}')
    for i in range(1, 4):
        A(f'v_add_u32 {v(VWQ+i)}, {4*i*8192 - 1024*i}, {v(VWQ)}')
    A(f's_lshl_b32 s30, {s(SHEAD)}, 6')
    A(f's_lshr_b32 s31, {s(SHEAD)}, 1')
    A('s_add_u32 s31, s31, 32')
    A('s_lshl_b32 s31, s31, 6')
    A('s_movk_i32 s29, 2752')
    A(f'v_mov_b32 {v(PT+5)}, s31')
    for i in range(2):
        A(f'v_and_b32 {v(t3)}, 7, {v(L)}')
        A(f'v_and_b32 {v(t4)}, 1, {v(t2)}')
        A(f'v_lshlrev_b32 {v(t4)}, 1, {v(t4)}')
        A(f'v_xor_b32 {v(t3)}, {v(t3)}, {v(t4)}')
        if i:
            A(f'v_xor_b32 {v(t3)}, 4, {v(t3)}')
        A(f'v_and_b32 {v(t4)}, 3, {v(t3)}')
        A(f'v_lshlrev_b32 {v(t4)}, 4, {v(t4)}')
        A(f'v_mov_b32 {v(PT+4)}, s30')
        A(f'v_cmp_gt_u32 vcc, 4, {v(t3)}')
        A(f'v_cndmask_b32 {v(PT+4)}, {v(PT+5)}, {v(PT+4)}, vcc')
        A(f'v_add_u32 {v(t4)}, {v(t4)}, {v(PT+4)}')
        A(f'v_mad_u32_u24 {v(VW1+i)}, {v(t1)}, s29, {v(t4)}')
    A(f'v_add_u32 {v(VW1+1)}, {8*2752 - 1024}, {v(VW1+1)}')
    A(f'v_and_b32 {v(t3)}, 15, {v(L)}')
    A(f'v_lshrrev_b32 {v(t4)}, 1, {v(t3)}')
    A(f'v_lshlrev_b32 {v(t3)}, 7, {v(t3)}')
    A(f'v_add_u32 {v(t3)}, {s(SXM)}, {v(t3)}')
    for kk in range(2):
        A(f'v_add_u32 {v(t1)}, {4*kk}, {v(t2)}')
        A(f'v_xor_b32 {v(t1)}, {v(t1)}, {v(t4)}')
        A(f'v_lshl_add_u32 {v(RX+kk)}, {v(t1)}, 4, {v(t3)}')
    A(f'v_bfe_u32 {v(t3)}, {v(L)}, 2, 2')
    A(f'v_lshl_add_u32 {v(t1)}, {v(t2)}, 3, {v(t3)}')
    A(f'v_and_b32 {v(PT+4)}, 1, {v(t2)}')
    A(f'v_and_b32 {v(t2)}, 3, {v(L)}')
    A(f'v_lshlrev_b32 {v(PT+5)}, 4, {v(t2)}')
    A(f'v_lshl_add_u32 {v(PT+5)}, {v(t1)}, 8, {v(PT+5)}')
    A(f'v_add_u32 {v(PT+5)}, {W_RING}, {v(PT+5)}')
    for k in range(4):
        A(f's_xor_b32 s29, {s(SW)}, {k}')
        A(f'v_xor_b32 {v(t4)}, s29, {v(t3)}')
        A(f'v_lshl_add_u32 {v(RWQ+k)}, {v(t4)}, 6, {v(PT+5)}')
    A(f'v_lshrrev_b32 {v(t3)}, 1, {v(t3)}')
    A(f'v_lshl_add_u32 {v(t3)}, {v(PT+4)}, 1, {v(t3)}')
    A(f'v_lshlrev_b32 {v(t2)}, 3, {v(t2)}')
    A(f'v_lshl_add_u32 {v(t2)}, {v(t1)}, 7, {v(t2)}')
    A(f'v_add_u32 {v(t2)}, {W_RING + 16384}, {v(t2)}')
    for u in range(4):
        A(f'v_xor_b32 {v(t4)}, {u}, {v(t3)}')
        A(f'v_lshl_add_u32 {v(RW1+u)}, {v(t4)}, 5, {v(t2)}')
    A(f'v_mov_b32 {v(t1)}, 0x3f803f80')
    for i in range(4):
        A(f'v_accvgpr_write_b32 {a(ONESA+i)}, {v(t1)}')


class VM:
    def __init__(self):
        self.ops = []

    def add(self, tag):
        self.ops.append(tag)

    def wait_for(self, tags):
        idx = max(i for i, t in enumerate(self.ops) if t in tags)
        n = len(self.ops) - 1 - idx
        n = min(n, 63)
        return n


def x_dma(c):
    out = []
    for i in range(8):
        pre = f's_add_u32 m0, {s(SXM)}, {X_RING + (c & 1)*32768 + (i >> 2)*4096}\n' if i & 3 == 0 else ''
        post = f'\ns_add_u32 {s(SXO)}, {s(SXO)}, 128' if i == 7 else ''
        out.append((pre, f'buffer_load_dwordx4 {v(VXO+i)}, {s(SRD_X,4)}, {s(SXO)} offen offset:{1024*(i&3)} lds' + post))
    return out


def w_dma(c):
    sl = W_RING + (c % 3) * 24576
    out = []
    for i in range(4):
        pre = f's_add_u32 m0, {s(SM0)}, {sl}\n' if i == 0 else ''
        post = f'\ns_add_u32 {s(SWQO)}, {s(SWQO)}, {64*8192}' if i == 3 else ''
        out.append((pre, f'buffer_load_dwordx4 {v(VWQ+i)}, {s(SRD_WQ,4)}, {s(SWQO)} offen offset:{1024*i} lds' + post))
    for i in range(2):
        pre = f's_add_u32 m0, {s(SM1)}, {sl + 16384}\n' if i == 0 else ''
        post = f'\ns_add_u32 {s(SW1O)}, {s(SW1O)}, {64*2752}' if i == 1 else ''
        out.append((pre, f'buffer_load_dwordx4 {v(VW1+i)}, {s(SRD_W1,4)}, {s(SW1O)} offen offset:{1024*i} lds' + post))
    return out


def kv_list(which, slot, srd=None):
    out = []
    for i in range(4):
        if which == 'K':
            pre = f's_add_u32 m0, {s(SM0)}, {slot*16384}\n' if i == 0 else ''
            out.append((pre, f'buffer_load_dwordx4 {v(VOK+i)}, {s(srd or SRD_K,4)}, {s(SOFF)} offen offset:{1024*i} lds'))
        else:
            pre = f's_add_u32 m0, {s(SM0)}, {65536+slot*16384}\n' if i == 0 else ''
            out.append((pre, f'buffer_load_dwordx4 {v(VOV+(i&1))}, {s(SRD_V,4)}, {s(SOFF)} offen offset:{1024*i} lds'))
    return out


def tile_reads(c, t):
    out = []
    for kk in range(2):
        for jh in range(2):
            dst = a(AR + 8 * (t % 4) + 4 * kk + 2 * jh, 2)
            if t < 8:
                off = (c % 3) * 24576 + (32 * kk + 4 * jh) * 256 + 8 * (t & 1)
                out.append(f'ds_read_b64_tr_b16 {dst}, {v(RWQ+(t>>1))} offset:{off}')
            else:
                off = (c % 3) * 24576 + (32 * kk + 4 * jh) * 128
                out.append(f'ds_read_b64_tr_b16 {dst}, {v(RW1+t-8)} offset:{off}')
    return out


def x_reads(c):
    out = []
    for kk in range(2):
        for qt in range(4):
            out.append(f'ds_read_b128 {a(XB+32*(c&1)+4*(4*kk+qt),4)}, {v(RX+kk)} offset:{X_RING+(c&1)*32768+qt*2048}')
    return out


def tile_mfmas(c, pos):
    xs = XB + 32 * (c & 1)
    out = []

    def mm(acc, A_, B_, kk):
        out.append(f'{MFMA} {acc}, {A_}, {B_}, {0 if (c == 0 and kk == 0) else acc}')
    xf = lambda kk, qt: a(xs + 4 * (4 * kk + qt), 4)
    ones = a(ONESA, 4)
    if pos < 12:
        wf = lambda kk: a(AR + 8 * (pos % 4) + 4 * kk, 4)
        nq = 2 if pos >= 10 else 4
        for qt in range(nq):
            if pos < 8:
                acc = v(OACC + 4 * (8 * qt + pos), 4)
            elif pos < 10:
                acc = a(HB + 4 * (4 * (pos - 8) + qt), 4)
            else:
                acc = a(HE + 4 * (2 * (pos - 10) + qt), 4)
            for kk in range(2):
                mm(acc, wf(kk), xf(kk, qt), kk)
        if pos < 2 or pos >= 8:
            acc = a(CSQ + 4 * pos, 4) if pos < 2 else a(CS1 + 4 * (pos - 8), 4)
            for kk in range(2):
                mm(acc, wf(kk), ones, kk)
    else:
        for qt in (2 * (pos - 12), 2 * (pos - 12) + 1):
            for kk in range(2):
                mm(a(SUM + 4 * qt, 4), ones, xf(kk, qt), kk)
            for kk in range(2):
                mm(a(GRAM + 4 * qt, 4), xf(kk, qt), xf(kk, qt), kk)
    return out


def phase1(A, vm):
    lds = []
    done = [-1]

    def lds_wait(tag):
        idx = max(i for i, t in enumerate(lds) if t == tag)
        if idx > done[0]:
            n = len(lds) - 1 - idx
            A(f's_waitcnt lgkmcnt({min(n, 15)})')
            done[0] = idx

    A(f's_waitcnt vmcnt({vm.wait_for([("x", 0), ("W", 0)])})')
    A('s_barrier')
    for r in x_reads(0):
        A(r); lds.append(('x', 0))
    for t in range(2):
        for r in tile_reads(0, t):
            A(r); lds.append(('t', 0, t))
    lds_wait(('x', 0))
    for pre, ins in x_dma(2):
        A(pre + ('s_nop 0\n' if pre else '') + ins); vm.add(('x', 2))
    for c in range(8):
        for pos in range(NPOS):
            mf = tile_mfmas(c, pos)
            fill = [[] for _ in mf]
            slot = [0]

            def put(txt, tag=None, kind=None, at=None):
                i = slot[0] if at is None else at
                fill[i].append((txt, tag, kind))
                if at is None:
                    slot[0] += 1

            def put_dma(lst, tag):
                for pre, ins in lst:
                    if pre:
                        fill[max(slot[0] - 1, 0)].append((pre.strip(), None, None))
                        slot[0] = max(slot[0], 1)
                    put(ins, tag, 'vm')
            if pos == 12:
                if c < 7:
                    put(('vmwait', [('W', c + 1)]))
                put('s_barrier')
            nxt = (c, pos + 2) if pos + 2 < 12 else ((c + 1, pos - 12) if pos >= 12 and c < 7 else None)
            if nxt:
                for r in tile_reads(*nxt):
                    put(r, ('t',) + nxt, 'lds')
            if c < 7:
                if pos == 0:
                    put(('vmwait', [('x', c + 1)]))
                if pos in (0, 1):
                    for r in x_reads(c + 1)[4 * pos:4 * pos + 4]:
                        put(r, ('x', c + 1), 'lds')
            if pos in (4, 5, 6, 7) and c + 3 <= 7:
                put_dma(x_dma(c + 3)[2 * (pos - 4):2 * (pos - 4) + 2], ('x', c + 3))
            if pos in (12, 13) and c + 3 <= 7:
                put_dma(w_dma(c + 3)[2 * (pos - 12) + 0:2 + 4 * (pos - 12)], ('W', c + 3))
            if c == 7 and pos in (0, 1, 2):
                lst = [kv_list('K', 0), kv_list('V', 0), kv_list('K', 1)][pos]
                put_dma(lst, ('kv', 0 if pos < 2 else 1))
                if pos == 1:
                    fill[-1].append((f's_add_u32 {s(SOFF)}, {s(SOFF)}, 16384', None, None))
            if c == 7 and pos == 12:
                put_dma(kv_list('V', 1), ('kv', 1))
                fill[-1].append((f's_add_u32 {s(SOFF)}, {s(SOFF)}, 16384', None, None))
            if pos < 12:
                lds_wait(('t', c, pos))
            for m, fl in zip(mf, fill):
                A(m)
                for txt, tag, kind in fl:
                    if isinstance(txt, tuple):
                        A(f's_waitcnt vmcnt({vm.wait_for(txt[1])})')
                        continue
                    A(txt)
                    if kind == 'lds':
                        lds.append(tag)
                    elif kind == 'vm':
                        vm.add(tag)


def p1_epilogue(A, vm):
    L = LANE
    lo = PT; t0 = PT + 1; t1 = PT + 2; t2 = PT + 3; t3 = PT + 4
    NMU, AQ, AH = T0, T0 + 4, T0 + 8
    A(f'v_lshlrev_b32 {v(lo)}, 4, {v(L)}')
    A(f's_lshl_b32 s29, {s(SW)}, 11')
    A(f's_add_u32 s29, s29, {CS_LDS}')
    A(f'v_add_u32 {v(t0)}, s29, {v(lo)}')
    for e in range(2):
        A(f'ds_write_b128 {v(t0)}, {a(CSQ+4*e,4)} offset:{1024*e}')
    A(f'v_and_b32 {v(t1)}, 3, {v(L)}')
    for k in range(1, 4):
        A(f'v_cmp_eq_u32 s[{66+2*k}:{67+2*k}], {k}, {v(t1)}')
    A(f'v_bfe_u32 {v(t1)}, {v(L)}, 2, 2')
    A(f'v_lshrrev_b32 {v(t2)}, 4, {v(L)}')
    A(f'v_cmp_eq_u32 s[74:75], {v(t1)}, {v(t2)}')
    A('s_mov_b32 s76, 0x3b000000')
    A('s_mov_b32 s77, 0x3727c5ac')
    A('s_mov_b32 s78, 0x3e0293ee')
    A('s_waitcnt lgkmcnt(0)')
    A('s_barrier')
    for k in range(4):
        A(f's_xor_b32 s29, {s(SW)}, {k}')
        A('s_lshl_b32 s29, s29, 11')
        A(f's_add_u32 s29, s29, {CS_LDS}')
        A(f'v_add_u32 {v(t0)}, s29, {v(lo)}')
        for e in range(2):
            A(f'ds_read_b128 {v(CSR+4*(2*k+e),4)}, {v(t0)} offset:{1024*e}')
    for qt in range(4):
        g = PT + 8
        for r in range(4):
            A(f'v_accvgpr_read_b32 {v(g+r)}, {a(GRAM+4*qt+r)}')
        A(f'v_accvgpr_read_b32 {v(t1)}, {a(SUM+4*qt)}')
        for k in range(1, 4):
            A(f'v_cndmask_b32 {v(g)}, {v(g)}, {v(g+k)}, s[{66+2*k}:{67+2*k}]')
        A(f'v_cndmask_b32 {v(g)}, 0, {v(g)}, s[74:75]')
        xlane(A, 'v_add_f32', g, g + 1)
        A(f'v_mul_f32 {v(t1)}, s76, {v(t1)}')
        A(f'v_mul_f32 {v(g)}, s76, {v(g)}')
        A(f'v_fma_f32 {v(g)}, -{v(t1)}, {v(t1)}, {v(g)}')
        A(f'v_max_f32 {v(g)}, 0, {v(g)}')
        A(f'v_add_f32 {v(t2)}, s77, {v(g)}')
        A(f'v_rsq_f32 {v(t2)}, {v(t2)}')
        A(f'v_sub_f32 {v(NMU+qt)}, 0, {v(t1)}')
        A(f'v_mul_f32 {v(g)}, {v(g)}, {v(t2)}')
        A(f'v_fma_f32 {v(g)}, {v(g)}, {v(t2)}, s77')
        A(f'v_rsq_f32 {v(g)}, {v(g)}')
        A(f'v_mul_f32 {v(AQ+qt)}, s78, {v(t2)}')
        A(f'v_mul_f32 {v(AH+qt)}, {v(g)}, {v(t2)}')
    A('s_waitcnt lgkmcnt(0)')
    for qt in range(4):
        for k in range(4):
            b = OACC + 4 * (8 * qt + 2 * k)
            for i in range(8):
                A(f'v_fma_f32 {v(b+i)}, {v(NMU+qt)}, {v(CSR+8*k+i)}, {v(b+i)}')
            for i in range(8):
                A(f'v_mul_f32 {v(b+i)}, {v(AQ+qt)}, {v(b+i)}')
            for i in range(4):
                A(f'v_cvt_pk_bf16_f32 {v(b+i)}, {v(b+2*i)}, {v(b+2*i+1)}')
            for i in range(4):
                A(f'v_accvgpr_write_b32 {a(QF+4*(4*qt+k)+i)}, {v(b+i)}')
    C1 = CSR; BB = CSR + 16
    A(f's_waitcnt vmcnt({vm.wait_for(["b1"])})')
    for i in range(16):
        A(f'v_accvgpr_read_b32 {v(C1+i)}, {a(CS1+i)}')
        src = B1R + (i >> 1)
        A(f'v_and_b32 {v(BB+i)}, 0xffff0000, {v(src)}' if i & 1 else f'v_lshlrev_b32 {v(BB+i)}, 16, {v(src)}')
    A('s_mov_b32 s66, 0xc0135761')
    A('s_mov_b32 s67, 0xbdd2d3e8')
    A(f'v_mov_b32 {v(T0+12)}, s66')
    A(f's_lshl_b32 s29, {s(SQB)}, 4')
    A(f's_lshl_b32 s30, {s(SW)}, 2')
    A('s_add_u32 s29, s29, s30')
    A('s_lshl_b32 s29, s29, 10')
    A(f's_lshl_b32 s30, {s(SFLIP)}, 6')
    A(f's_lshl_b32 s31, {s(SHEAD)}, 17')
    A('s_add_u32 s31, s31, s29')
    A('s_add_u32 s68, s31, s30')
    A('s_xor_b32 s69, s68, 2048')
    A(f's_lshr_b32 s31, {s(SHEAD)}, 1')
    A('s_add_u32 s31, s31, 32')
    A('s_lshl_b32 s31, s31, 17')
    A('s_add_u32 s31, s31, s29')
    A('s_add_u32 s70, s31, s30')
    n = 0
    for pair, nq in ((0, 4), (1, 2)):
        for qt in range(nq):
            w = OACC + 16 * (n % 4); u = w + 8; n += 1
            for i in range(8):
                e, r = i >> 2, i & 3
                src = (HB + 4 * (4 * e + qt) + r) if pair == 0 else (HE + 4 * (2 * e + qt) + r)
                A(f'v_accvgpr_read_b32 {v(w+i)}, {a(src)}')
            for i in range(8):
                A(f'v_fma_f32 {v(w+i)}, {v(NMU+qt)}, {v(C1+8*pair+i)}, {v(w+i)}')
            for i in range(8):
                A(f'v_fma_f32 {v(w+i)}, {v(AH+qt)}, {v(w+i)}, {v(BB+8*pair+i)}')
            for i in range(8):
                A(f'v_mul_f32 {v(u+i)}, {v(w+i)}, {v(w+i)}')
            for i in range(8):
                A(f'v_fma_f32 {v(u+i)}, {v(u+i)}, s67, {v(T0+12)}')
            for i in range(8):
                A(f'v_mul_f32 {v(u+i)}, {v(u+i)}, {v(w+i)}')
            for i in range(8):
                A(f'v_exp_f32 {v(u+i)}, {v(u+i)}')
            for i in range(8):
                A(f'v_add_f32 {v(u+i)}, 1.0, {v(u+i)}')
            for i in range(8):
                A(f'v_rcp_f32 {v(u+i)}, {v(u+i)}')
            for i in range(8):
                A(f'v_mul_f32 {v(w+i)}, {v(w+i)}, {v(u+i)}')
            for i in range(4):
                A(f'v_cvt_pk_bf16_f32 {v(u+i)}, {v(w+2*i)}, {v(w+2*i+1)}')
            so = 70 if pair else (68 if qt < 2 else 69)
            A(f'buffer_store_dwordx4 {v(u,4)}, {v(lo)}, {s(SRD_H,4)}, s{so} offen offset:{1024*(qt&1)}')
            vm.add('hst')
```

```python
import sys
from asmlib import Asm, v, a, s, check, fix, stamp_begin, stamp_end
from gen_attn16 import *
from gen_p1 import *
import gen_k3

VLIST = sorted([39 + 4 * i for i in range(20)] + [41 + 8 * i for i in range(7)] + [45 + 8 * i for i in range(5)])
KLIST = [77, 85, 93, 101, 105, 109, 113, 117, 119, 123, 127, 131, 135, 139, 143, 147]
PLAN = dict(vpos=lambda n: VLIST[n], kpos=lambda n: KLIST[n], km=4, kd=lambda i: [5, 9, 23, 27][i], vm=28, vd=lambda i: [31, 35, 37, 33][i])
HEADER = open('recurrent_scan__mha_block_cached__mixer_channel_mlp__prompt.s.ref').read().split('; Override')[0]


def srd(A, d, lo, hi, off, nbytes):
    if off is None:
        A(f's_mov_b32 s{d}, s{lo}\ns_mov_b32 s{d+1}, s{hi}')
    else:
        A(f's_add_u32 s{d}, s{lo}, {off}\ns_addc_u32 s{d+1}, s{hi}, 0')
    A(f's_mov_b32 s{d+2}, {nbytes}\ns_mov_b32 s{d+3}, 0x20000')


def k2(A, o):
    name = 'attn_kernel'
    st = o.get('stamp')
    A(f'.globl {name}\n.p2align 8\n.type {name},@function')
    A.label(name)
    A('s_cmp_ge_u32 s2, 256')
    A('s_cbranch_scc1 L_k2_end')
    if st:
        stamp_begin(A)
    A('s_load_dwordx8 s[32:39], s[0:1], 0')
    A('s_load_dwordx4 s[68:71], s[0:1], 48')
    A('s_load_dwordx2 s[72:73], s[0:1], 96')
    A(f'v_lshrrev_b32 {v(T0)}, 6, v0')
    A('s_and_b32 s26, s2, 7')
    A('s_lshl_b32 s26, s26, 2')
    A('s_bfe_u32 s27, s2, 0x20003')
    A(f'v_readfirstlane_b32 {s(SW)}, {v(T0)}')
    A(f's_add_u32 {s(SHEAD)}, s26, s27')
    A(f's_lshr_b32 {s(SQB)}, s2, 5')
    A(f's_and_b32 {s(SFLIP)}, {s(SHEAD)}, 1')
    A(f's_lshl_b32 {s(SFLIP)}, {s(SFLIP)}, 5')
    A(f's_lshl_b32 {s(SM0)}, {s(SW)}, 12')
    A(f's_lshl_b32 {s(SM1)}, {s(SW)}, 11')
    A(f's_lshl_b32 {s(SXM)}, {s(SW)}, 13')
    A(f's_lshl_b32 {s(SXO)}, {s(SQB)}, 18')
    A(f's_lshl_b32 s26, {s(SW)}, 16')
    A(f's_add_u32 {s(SXO)}, {s(SXO)}, s26')
    A(f's_lshl_b32 {s(SWQO)}, {s(SW)}, 17')
    A(f's_lshl_b32 s26, {s(SHEAD)}, 8')
    A(f's_add_u32 {s(SWQO)}, {s(SWQO)}, s26')
    A(f's_mul_i32 {s(SW1O)}, {s(SW)}, {16*2752}')
    A(f's_mov_b32 {s(SOFF)}, {s(SM0)}')
    A(f'v_and_b32 {v(LANE)}, 63, v0')
    p1_lane_setup(A)
    A('s_waitcnt lgkmcnt(0)')
    srd(A, SRD_X, 32, 33, None, 2 << 20)
    srd(A, SRD_WQ, 38, 39, None, 4 << 20)
    srd(A, SRD_W1, 68, 69, None, 512 * 2752)
    vm = VM()

    def run(lst, tag):
        for pre, ins in lst:
            A(pre + ('s_nop 0\n' if pre else '') + ins); vm.add(tag)
    run(x_dma(0), ('x', 0)); run(w_dma(0), ('W', 0))
    run(x_dma(1), ('x', 1)); run(w_dma(1), ('W', 1)); run(w_dma(2), ('W', 2))
    lane_setup(A, rot=True)
    A(f's_lshl_b32 s26, {s(SHEAD)}, 19')
    A('s_add_u32 s27, s26, 16384')
    srd(A, SRD_K, 34, 35, 's27', 524288 - 16384)
    srd(A, SRD_K0, 34, 35, 's26', 16384)
    srd(A, SRD_V, 36, 37, 's26', 524288)
    srd(A, SRD_WS, 72, 73, None, 16 << 20)
    srd(A, SRD_H, 72, 73, WS_H, 43 * 128 * 1024)
    srd(A, SRD_B1, 70, 71, None, 2752)
    A(f's_add_u32 m0, {s(SM0)}, {K0_LDS}')
    A('s_nop 0')
    for i in range(4):
        A(f'buffer_load_dwordx4 {v(VOK+i)}, {s(SRD_K0,4)}, {s(SOFF)} offen offset:{1024*i} lds'); vm.add('k0')
    A(f'v_lshrrev_b32 {v(PT)}, 4, {v(LANE)}')
    A(f'v_lshlrev_b32 {v(PT)}, 3, {v(PT)}')
    A(f's_lshl_b32 s26, {s(SHEAD)}, 6')
    A(f's_lshr_b32 s27, {s(SHEAD)}, 1')
    A('s_add_u32 s27, s27, 32')
    A('s_lshl_b32 s27, s27, 6')
    for u in range(4):
        A(f'buffer_load_dwordx2 {v(B1R+2*u,2)}, {v(PT)}, {s(SRD_B1,4)}, s{26+(u>>1)} offen offset:{32*(u&1)}'); vm.add('b1')
    phase1(A, vm)
    if st:
        A('s_memtime s[86:87]')
    p1_epilogue(A, vm)
    if st:
        A('s_memtime s[88:89]')
    attn_start(A, K0_LDS)
    opts = dict(PLAN, first_vm=vm.wait_for([('kv', 0)]))
    if st:
        A('s_memtime s[98:99]')
    attn_loop(A, opts)
    if st:
        A('s_memtime s[100:101]')
    attn_store(A, opts)
    if st:
        A(f's_lshl_b32 s85, {s(SW)}, 6')
        A('v_mov_b32 v0, s85')
        A('s_waitcnt lgkmcnt(0)')
        A('s_sub_u32 s100, s100, s98\ns_sub_u32 s98, s98, s88\ns_sub_u32 s88, s88, s86\ns_sub_u32 s86, s86, s92')
        stamp_end(A, 0, 0)
        A('v_mov_b32 v8, s86\nv_mov_b32 v9, s88\nv_mov_b32 v10, s98\nv_mov_b32 v11, s100')
        A('s_add_u32 s84, s84, 0x8000')
        A('buffer_store_dwordx4 v[8:11], v4, s[80:83], s84 offen')
    A.label('L_k2_end')
    A('s_endpgm')


def build(o):
    A = Asm()
    for l in HEADER.strip().split('\n'):
        A.lines.append(l)
    A('; @launch kernel=attn_kernel grid=(256,1,1) block=(256,1,1) lds=163840')
    A('; @launch kernel=out_kernel grid=(256,1,1) block=(256,1,1) lds=131072')
    A('.amdgcn_target "amdgcn-amd-amdhsa--gfx950"\n.text')
    k2(A, o)
    gen_k3.k3(A, opts=dict(stamp=1) if o.get('stamp') else {})
    A('.section .rodata,"a"\n.p2align 6')
    A('.amdhsa_kernel attn_kernel\n.amdhsa_next_free_vgpr 512\n.amdhsa_next_free_sgpr 102\n.amdhsa_accum_offset 256')
    A('.amdhsa_group_segment_fixed_size 0\n.amdhsa_kernarg_size 104\n.amdhsa_user_sgpr_count 2\n.amdhsa_user_sgpr_kernarg_segment_ptr 1\n.amdhsa_system_sgpr_workgroup_id_x 1\n.end_amdhsa_kernel')
    A('.p2align 6')
    gen_k3.k3_desc(A)
    A.lines, n = fix(A.lines)
    p = check(A.lines)
    print(len(A.lines), 'lines; nops', n, 'hazards', p[:8])
    return A.text()


if __name__ == '__main__':
    open('all_stamp.s', 'w').write(build(dict(stamp=1)))
    t = build({})
    open('all.s', 'w').write(t)
    open('recurrent_scan__mha_block_cached__mixer_channel_mlp__prompt.s', 'w').write(t)
```

```python
from asmlib import Asm, v, a, s

WS_O = 0
WS_H = 16 << 20
WS_Q = 32 << 20

SA, SB = 0, 32
NEGM = 64
ADK = 80
ADV = 84
VOK = 92
VOV = 96
LS = 98
LANE = 102
ONES = 103
LS2 = 120
T0 = 104
OACC = 128
QF = 0
KF = 64
VF = 128
SRD_K, SRD_V, SRD_WS = 4, 8, 12
SW, SHEAD, SQB, SOFF, SM0, SCNT = 20, 21, 22, 23, 24, 25
SFLIP = 65
MFMA = 'v_mfma_f32_16x16x32_bf16'
NG = 128


def stile(half, ql, kt):
    return (SA if half == 0 else SB) + 8 * (2 * ql + (kt >> 1)) + 4 * (kt & 1)


def period(A, j, first=False, tail=False, opts=None, vmn=8, dma_k=True, dma_v=True, extra=(), k_next=True):
    o = opts or {}
    slot = j & 3
    gaps = [[] for _ in range(NG)]
    mf = [None] * NG
    needs = [None] * NG
    for half, g0 in ((0, 0), (1, 64)):
        if first or tail:
            continue
        for kt in range(4):
            for ql in range(2):
                qt = 2 * half + ql
                for ks in range(4):
                    g = g0 + 8 * kt + 4 * ql + ks
                    S = stile(half, ql, kt)
                    mf[g] = f'{MFMA} {v(S,4)}, {a(KF+4*(4*kt+ks),4)}, {a(QF+4*(4*qt+ks),4)}, {v(NEGM+4*qt,4) if ks == 0 else v(S,4)}'
                    if half == 0:
                        needs[g] = ('K', 4 * kt + ks)
    for half, g0 in ((1, 32), (0, 96)):
        if (half == 1 and first) or (half == 0 and tail):
            continue
        for dt in range(8):
            for ql in range(2):
                qt = 2 * half + ql
                for kp in range(2):
                    g = g0 + 4 * dt + 2 * ql + kp
                    O = OACC + 4 * (8 * qt + dt)
                    mf[g] = f'{MFMA} {v(O,4)}, {a(VF+4*(2*dt+kp),4)}, {v(stile(half, ql, 2*kp),4)}, {v(O,4)}'
                    if half == 0:
                        needs[g] = ('V', 2 * dt + kp)
    e0 = o.get('e0', 12)

    def sm(half, g0, lo, hi):
        order = [(kt, ql) for kt in range(4) for ql in range(2)]
        for n, (kt, ql) in enumerate(order):
            S = stile(half, ql, kt); lr = LS + 2 * half + ql
            for r in range(4):
                ge = g0 + 8 * n + 2 * r
                if lo <= ge < hi:
                    gaps[ge % NG].append((0, f'v_exp_f32 {v(S+r)}, {v(S+r)}'))
                summ = o.get('sum', 'add')
                if summ == 'add' and lo <= ge + 1 < hi:
                    gaps[(ge + 1) % NG].append((1, f'v_add_f32 {v(lr)}, {v(lr)}, {v(S+r)}'))
                if summ == 'pk' and r & 1 and lo <= ge + 1 < hi:
                    l2 = LS2 + 2 * (2 * half + ql)
                    gaps[(ge + 1) % NG].append((1, f'v_pk_add_f32 {v(l2,2)}, {v(l2,2)}, {v(S+r-1,2)}'))
                if summ == 'dot' and r & 1 and lo <= ge + 5 < hi:
                    dst = S - 4 * (kt & 1) + 2 * (kt & 1) + (r >> 1)
                    gaps[(ge + 5) % NG].append((1, f'v_dot2c_f32_bf16 {v(lr)}, {v(dst)}, {v(ONES)}'))
                if r & 1 and lo <= ge + 3 < hi:
                    dst = S - 4 * (kt & 1) + 2 * (kt & 1) + (r >> 1)
                    gaps[(ge + 3) % NG].append((2, f'v_cvt_pk_bf16_f32 {v(dst)}, {v(S+r-1)}, {v(S+r)}'))
    if not o.get('no_sm'):
        if not tail:
            sm(0, e0, 0, NG)
            sm(1, 64 + e0, 0, NG)
        if not first:
            sm(1, 64 + e0, NG, 2 * NG)
    reads = []; prev = []
    if not tail and not o.get('no_lds'):
        for n in range(32):
            f, jh = n >> 1, n & 1
            dt, kp = f >> 1, f & 1
            off = slot * 16384 + (32 * kp + 16 * jh) * 256
            reads.append((o.get('vpos', lambda n: 36 + 2 * n)(n), ('V', f), f'ds_read_b64_tr_b16 {a(VF+4*f+2*jh,2)}, {v(ADV+dt)} offset:{off}'))
        for n in range(16):
            kt, ks = n >> 2, n & 3
            g = o.get('kpos', lambda n: 75 + 2 * n + 2 * (n >> 2) * 2 if n < 16 else 0)(n)
            if g >= NG:
                if first:
                    continue
                off = ((j - 1) & 3) * 16384 + kt * 4096
                reads.append((g - NG, ('Kl', n), f'ds_read_b128 {a(KF+4*n,4)}, {v(ADK+ks)} offset:{off}'))
                for gg in range(NG):
                    if needs[gg] == ('K', n):
                        needs[gg] = ('Kl', n)
            else:
                off = slot * 16384 + kt * 4096
                reads.append((g, ('K', n), f'ds_read_b128 {a(KF+4*n,4)}, {v(ADK+ks)} offset:{off}'))
        if o.get('no_k'):
            reads = [r for r in reads if r[1][0] != 'K']
            needs = [n if n and n[0] != 'K' else None for n in needs]
        if o.get('no_v'):
            reads = [r for r in reads if r[1][0] != 'V']
            needs = [n if n and n[0] != 'V' else None for n in needs]
        prev = sorted(reads, key=lambda r: r[0])
        if not k_next:
            reads = [r for r in reads if r[1][0] != 'K']
        for g, tag, txt in reads:
            gaps[g % NG].append((o.get('rprio', lambda g: -1)(g), txt))
    if not tail:
        dslot = (j + 2) & 3
        if not o.get('no_bar'):
            gaps[1].append((-2, f's_waitcnt vmcnt({vmn})' if not o.get('no_dma') else 's_nop 0'))
            gaps[2].append((-2, 's_barrier'))
        for g, txt in extra:
            gaps[g].append((-2, txt))
        if not o.get('no_dma') and dma_k:
            gaps[o.get('km', 3)].append((-2, f's_add_u32 m0, {s(SM0)}, {dslot*16384}'))
            for i in range(4):
                gaps[o.get('kd', lambda i: 5 + 3 * i)(i)].append((-2, f'buffer_load_dwordx4 {v(VOK+i)}, {s(SRD_K,4)}, {s(SOFF)} offen offset:{1024*i} lds'))
        if not o.get('no_dma') and dma_v:
            gaps[o.get('vm', 17)].append((-2, f's_add_u32 m0, {s(SM0)}, {65536+dslot*16384}'))
            for i in range(4):
                gaps[o.get('vd', lambda i: 19 + 3 * i)(i)].append((-2, f'buffer_load_dwordx4 {v(VOV+(i&1))}, {s(SRD_V,4)}, {s(SOFF)} offen offset:{1024*i} lds'))
            gaps[127].append((-2, f's_add_u32 {s(SOFF)}, {s(SOFF)}, 16384'))
    sr = sorted(reads, key=lambda r: r[0])
    order = [(g - NG, tag) for g, tag, _ in prev] + [(g, tag) for g, tag, _ in sr]
    nprev = len(prev)
    done = -1
    waits = {}
    lat = o.get('lat', 10)
    for g in range(NG):
        if needs[g] is None or not order:
            continue
        tag = needs[g]
        if tag[0] == 'K':
            cand = [i for i, (gg, tg) in enumerate(order) if tg == tag and i < nprev]
        else:
            cand = [i for i, (gg, tg) in enumerate(order) if tg == tag and i >= nprev]
        idx = max(cand)
        assert order[idx][0] < g - 2, (tag, g, order[idx])
        if idx > done:
            issued = [i for i, (gg, tg) in enumerate(order) if gg < g]
            old = [i for i, (gg, tg) in enumerate(order) if gg <= g - lat]
            cover = max(idx, max(old))
            n = max(issued) - cover
            assert n <= 15
            waits[g] = n
            done = cover
    last = 64 if tail else NG
    for g in range(last):
        if g == 0 and g in waits:
            A(f's_waitcnt lgkmcnt({waits[g]})')
        if mf[g] and not o.get('no_mfma'):
            A(mf[g])
        items = sorted(gaps[g], key=lambda x: x[0])
        if (g + 1) in waits:
            k = len([1 for pr, _ in items if pr < 0])
            items.insert(k, (0, f's_waitcnt lgkmcnt({waits[g+1]})'))
        for _, txt in items:
            A(txt)


def lane_setup(A, rot=False):
    L = LANE; t1 = T0; t2 = T0 + 1; t3 = T0 + 2; r = T0 + 4; base = T0 + 5; x = T0 + 6
    if not rot:
        A(f'v_and_b32 {v(L)}, 63, v0')
    A(f'v_lshrrev_b32 {v(t1)}, 4, {v(L)}')
    A(f'v_and_b32 {v(t2)}, 15, {v(L)}')
    for i in range(4):
        A(f'v_add_u32 {v(t3)}, {4*i}, {v(t1)}')
        A(f'v_xor_b32 {v(t3)}, {v(t3)}, {v(t2)}')
        A(f'v_lshlrev_b32 {v(t3)}, 4, {v(t3)}')
        A(f'v_lshl_add_u32 {v(VOK+i)}, {v(t1)}, 8, {v(t3)}')
        if rot:
            A(f's_xor_b32 s29, {s(SW)}, {i}')
            A('s_lshl_b32 s29, s29, 2')
            A(f'v_add_u32 {v(t3)}, s29, {v(t1)}')
            A(f'v_xor_b32 {v(t3)}, {v(t3)}, {v(t2)}')
            A(f'v_lshlrev_b32 {v(t3)}, 4, {v(t3)}')
        A(f'v_lshl_add_u32 {v(ADK+i)}, {v(t2)}, 8, {v(t3)}')
    for i in range(2):
        A(f'v_add_u32 {v(t3)}, {4*i}, {v(t1)}')
        A(f'v_lshlrev_b32 {v(t3)}, 1, {v(t3)}')
        A(f'v_xor_b32 {v(t3)}, {v(t3)}, {v(t2)}')
        A(f'v_lshlrev_b32 {v(t3)}, 4, {v(t3)}')
        A(f'v_lshl_add_u32 {v(VOV+i)}, {v(t1)}, 8, {v(t3)}')
    A(f'v_lshrrev_b32 {v(r)}, 2, {v(L)}')
    A(f'v_and_b32 {v(t3)}, 3, {v(L)}')
    A(f'v_lshlrev_b32 {v(t3)}, 3, {v(t3)}')
    A(f'v_lshl_add_u32 {v(base)}, {v(r)}, 8, {v(t3)}')
    A(f'v_add_u32 {v(base)}, 0x10000, {v(base)}')
    A(f'v_and_b32 {v(x)}, 7, {v(r)}')
    for dt in range(8):
        A(f'v_xor_b32 {v(t3)}, {dt}, {v(x)}')
        A(f'v_lshl_add_u32 {v(ADV+dt)}, {v(t3)}, 5, {v(base)}')


def kv_dma(A, which, slot, soff, srd=None):
    if which == 'K':
        A(f's_add_u32 m0, {s(SM0)}, {slot*16384}')
        A('s_nop 0')
        for i in range(4):
            A(f'buffer_load_dwordx4 {v(VOK+i)}, {s(srd or SRD_K,4)}, {s(soff)} offen offset:{1024*i} lds')
    else:
        A(f's_add_u32 m0, {s(SM0)}, {65536+slot*16384}')
        A('s_nop 0')
        for i in range(4):
            A(f'buffer_load_dwordx4 {v(VOV+(i&1))}, {s(SRD_V,4)}, {s(soff)} offen offset:{1024*i} lds')


def xlane(A, op, reg, tmp):
    for sw in ('v_permlane32_swap_b32', 'v_permlane16_swap_b32'):
        A(f'v_mov_b32 {v(tmp)}, {v(reg)}')
        A('s_nop 1')
        A(f'{sw} {v(reg)}, {v(tmp)}')
        A(f'{op} {v(reg)}, {v(reg)}, {v(tmp)}')


def attn_start(A, k0=3*16384):
    for i in range(4):
        A(f'v_add_u32 {v(T0+16+i)}, {k0}, {v(ADK+i)}')
    for n in range(16):
        A(f'ds_read_b128 {a(KF+4*n,4)}, {v(T0+16+(n&3))} offset:{(n>>2)*4096}')
    for i in range(128):
        A(f'v_mov_b32 {v(OACC+i)}, 0')
    for i in range(4):
        A(f'v_mov_b32 {v(LS+i)}, 0')
    A('s_waitcnt lgkmcnt(0)')
    for qt in range(4):
        for kt in range(4):
            S = stile(qt >> 1, qt & 1, kt)
            for ks in range(4):
                A(f'{MFMA} {v(S,4)}, {a(KF+4*(4*kt+ks),4)}, {a(QF+4*(4*qt+ks),4)}, {0 if ks == 0 else v(S,4)}')
    for qt in range(4):
        S = stile(qt >> 1, qt & 1, 0); m = T0 + 2 * qt
        A(f'v_max3_f32 {v(m)}, {v(S)}, {v(S+1)}, {v(S+2)}')
        for i in range(3, 15, 2):
            A(f'v_max3_f32 {v(m)}, {v(m)}, {v(S+i)}, {v(S+i+1)}')
        A(f'v_max_f32 {v(m)}, {v(m)}, {v(S+15)}')
        xlane(A, 'v_max_f32', m, m + 1)
        for i in range(4):
            A(f'v_sub_f32 {v(NEGM+4*qt+i)}, 0, {v(m)}')
        for i in range(16):
            A(f'v_sub_f32 {v(S+i)}, {v(S+i)}, {v(m)}')


def attn_loop(A, opts=None, pf=()):
    period(A, 0, first=True, opts=opts, vmn=opts.get('first_vm', 8))
    A(f's_mov_b32 {s(SCNT)}, 7')
    A.label('L_attn_loop')
    for j in range(1, 5):
        period(A, j, opts=opts)
    A(f's_sub_u32 {s(SCNT)}, {s(SCNT)}, 1')
    A(f's_cmp_lg_u32 {s(SCNT)}, 0')
    A('s_cbranch_scc1 L_attn_loop')
    early = [5, 9, 23, 27, 31, 35, 37, 33]
    late = [49 + 8 * i for i in range(8)]
    n0 = min(len(pf), 6); n1 = min(len(pf) - n0, 8)
    p0 = list(zip([41, 57, 73, 89, 121, 125], pf[:n0]))
    p1 = list(zip(sorted(early), pf[n0:n0 + n1]))
    p2 = list(zip(sorted(early) + late, pf[n0 + n1:]))
    nv = lambda l: sum(1 for _, x in l if x.startswith('buffer'))
    period(A, 29, opts=opts, dma_k=False, extra=p0)
    period(A, 30, opts=opts, dma_k=False, dma_v=False, extra=p1, vmn=4 + nv(p0))
    period(A, 31, opts=opts, dma_k=False, dma_v=False, extra=p2, vmn=nv(p0) + nv(p1), k_next=False)
    period(A, 32, tail=True, opts=opts)


def attn_store(A, opts=None):
    lo = T0 + 8
    if (opts or {}).get('sum') == 'pk':
        for qt in range(4):
            A(f'v_add_f32 {v(LS+qt)}, {v(LS2+2*qt)}, {v(LS2+2*qt+1)}')
    A(f'v_lshlrev_b32 {v(lo)}, 4, {v(LANE)}')
    for qt in range(4):
        xlane(A, 'v_add_f32', LS + qt, T0)
        A(f'v_rcp_f32 {v(T0+4+qt)}, {v(LS+qt)}')
    A(f's_lshl_b32 s30, {s(SQB)}, 4')
    A(f's_lshl_b32 s31, {s(SW)}, 2')
    A('s_add_u32 s30, s30, s31')
    A('s_lshl_b32 s30, s30, 10')
    A(f's_lshl_b32 s31, {s(SHEAD)}, 19')
    A('s_add_u32 s30, s30, s31')
    A(f's_lshl_b32 s31, {s(SFLIP)}, 6')
    A('s_add_u32 s30, s30, s31')
    A('s_xor_b32 s31, s30, 2048')
    n = 0
    for k in range(4):
        for qt in range(4):
            b = OACC + (qt * 8 + 2 * k) * 4
            d = SA + 4 * (n % 4); n += 1
            for i in range(8):
                A(f'v_mul_f32 {v(b+i)}, {v(b+i)}, {v(T0+4+qt)}')
            for i in range(4):
                A(f'v_cvt_pk_bf16_f32 {v(d+i)}, {v(b+2*i)}, {v(b+2*i+1)}')
            A(f'buffer_store_dwordx4 {v(d,4)}, {v(lo)}, {s(SRD_WS,4)}, s{30+(qt>>1)} offen offset:{(qt&1)*1024}{(opts or {}).get("stmod", "")}')
        if k < 3:
            A('s_add_u32 s30, s30, 0x20000')
            A('s_add_u32 s31, s31, 0x20000')
```

```python
from asmlib import Asm, v, a, s, stamp_begin, stamp_end

MFMA = 'v_mfma_f32_16x16x32_bf16'
WS_O = 0
WS_H = 16 << 20
WS_X = 24 << 20
X_BYTES = 12 << 20
O_BYTES = 16 << 20
H_BYTES = 128 * 43 * 1024
NS = 22
RING = 5
BBASE = RING * 16384

ACC = 0
AF = 64
BF = 128
VB = 192
VA = 193
RA = 197
RB = 201
XR = 212
T = 228


def k3(A, name='out_kernel', opts=None):
    o = opts or {}
    A(f'.globl {name}\n.p2align 8\n.type {name},@function')
    A.label(name)
    A('s_cmp_ge_u32 s2, 256')
    A('s_cbranch_scc1 L_k3_end')
    if o.get('stamp') is not None:
        stamp_begin(A)
    A('s_load_dwordx2 s[34:35], s[0:1], 32')
    A('s_load_dwordx4 s[36:39], s[0:1], 64')
    A('s_load_dwordx4 s[40:43], s[0:1], 88')
    A('s_load_dwordx2 s[32:33], s[0:1], 0')
    A('s_load_dwordx2 s[44:45], s[0:1], 80')
    L = T + 1
    A(f'v_lshrrev_b32 {v(T)}, 6, v0')
    A(f'v_and_b32 {v(L)}, 63, v0')
    A('s_and_b32 s20, s2, 3')
    A('s_bfe_u32 s21, s2, 0x10002')
    A(f'v_readfirstlane_b32 s22, {v(T)}')
    A('s_lshl_b32 s21, s21, 3')
    A('s_bfe_u32 s23, s2, 0x30003')
    A('s_add_u32 s21, s21, s23')
    A('s_lshr_b32 s23, s2, 6')
    A(f'v_lshlrev_b32 {v(VB)}, 4, {v(L)}')
    A(f'v_lshrrev_b32 {v(T+2)}, 4, {v(L)}')
    A(f'v_and_b32 {v(T+3)}, 15, {v(L)}')
    A(f'v_lshlrev_b32 {v(T+4)}, 2, {v(T+2)}')
    A(f'v_xor_b32 {v(T+3)}, {v(T+3)}, {v(T+4)}')
    A(f'v_lshlrev_b32 {v(T+3)}, 4, {v(T+3)}')
    A(f'v_lshl_add_u32 {v(VA)}, {v(T+2)}, 10, {v(T+3)}')
    for i in range(1, 4):
        A(f'v_add_u32 {v(VA+i)}, {3072*i}, {v(VA)}')
    A('s_lshl_b32 s24, s22, 12')
    A('s_cmp_eq_u32 s20, 3')
    A('s_cselect_b32 s26, 0, s20')
    A('s_mul_i32 s26, s26, 43')
    A('s_lshl_b32 s27, s26, 15')
    A('s_lshl_b32 s28, s22, 14')
    A('s_add_u32 s27, s27, s28')
    A('s_lshl_b32 s28, s23, 8')
    A('s_add_u32 s27, s27, s28')
    A('s_lshr_b32 s28, s22, 1')
    A('s_add_u32 s28, s28, s26')
    A('s_lshl_b32 s28, s28, 17')
    A('s_lshl_b32 s29, s21, 13')
    A('s_add_u32 s28, s28, s29')
    A('s_and_b32 s29, s22, 1')
    A('s_lshl_b32 s30, s29, 12')
    A('s_add_u32 s28, s28, s30')
    A('s_waitcnt lgkmcnt(0)')
    A('s_cmp_eq_u32 s20, 3')
    A('s_cselect_b32 s4, s36, s34')
    A('s_cselect_b32 s5, s37, s35')
    A(f's_mov_b32 s6, {4096*1024}')
    A(f's_cselect_b32 s6, {1376*1024}, s6')
    A('s_mov_b32 s7, 0x20000')
    A(f's_cselect_b32 s25, {WS_H}, {WS_O}')
    A(f's_mov_b32 s10, {O_BYTES}')
    A(f's_cselect_b32 s10, {H_BYTES}, s10')
    A('s_add_u32 s8, s42, s25')
    A('s_addc_u32 s9, s43, 0')
    A('s_mov_b32 s11, 0x20000')

    A('s_mov_b32 s68, 0x7000000')
    sob = 's68' if o.get('nob') else 's28'
    soa = 's68' if o.get('noa') else 's27'

    def issue_list(st):
        slot = st % RING
        out = []
        for i in range(4):
            pre = f's_add_u32 m0, s24, {BBASE + slot*16384}' if i == 0 else None
            out.append((pre, f'buffer_load_dwordx4 {v(VB)}, s[8:11], {sob} offen offset:{1024*i} lds' + ('\ns_add_u32 s28, s28, 0x40000' if i == 3 else '')))
        for i in range(4):
            pre = f's_add_u32 m0, s24, {slot*16384}' if i == 0 else None
            out.append((pre, f'buffer_load_dwordx4 {v(VA+i)}, s[4:7], {soa} offen offset:{1024*i} lds' + ('\ns_add_u32 s27, s27, 0x10000' if i == 3 else '')))
        return out

    def issue(st):
        for pre, x in issue_list(st):
            if pre:
                A(pre + '\ns_nop 0')
            A(x)

    def read_list(st):
        slot = st % RING; se = st & 1; win = slot // 4; off0 = (slot % 4) * 16384
        out = []
        nk = 1 if st == NS - 1 else 2
        for kk in range(nk):
            for qt in range(4):
                out.append(f'ds_read_b128 {v(BF+32*se+4*(4*kk+qt),4)}, {v(RB+4*win+qt)} offset:{off0 + kk*8192}')
        for nt in range(4):
            for kk in range(nk):
                for jh in range(2):
                    off = off0 + (32 * kk + 16 * jh) * 256 + 8 * (nt & 1)
                    out.append(f'ds_read_b64_tr_b16 {v(AF+32*se+4*(4*kk+nt)+2*jh,2)}, {v(RA+2*win+(nt>>1))} offset:{off}')
        return out

    issue(0)
    A(f'v_lshrrev_b32 {v(T+2)}, 2, {v(L)}')
    A(f'v_and_b32 {v(T+3)}, 3, {v(T+2)}')
    A(f'v_and_b32 {v(T+4)}, 3, {v(L)}')
    A(f'v_lshlrev_b32 {v(T+4)}, 4, {v(T+4)}')
    A(f'v_lshl_add_u32 {v(T+4)}, {v(T+2)}, 8, {v(T+4)}')
    A('s_and_b32 s30, s22, 2')
    for k in range(2):
        A(f's_add_u32 s31, s30, {k}')
        A(f'v_xor_b32 {v(T+5)}, s31, {v(T+3)}')
        A(f'v_lshl_add_u32 {v(RA+k)}, {v(T+5)}, 6, {v(T+4)}')
        A(f'v_add_u32 {v(RA+2+k)}, 0x10000, {v(RA+k)}')
    A('s_lshl_b32 s30, s29, 2')
    for qt in range(4):
        A(f's_xor_b32 s31, s20, {qt}')
        A('s_add_u32 s31, s31, s30')
        A('s_lshl_b32 s31, s31, 10')
        A(f's_add_u32 s31, s31, {BBASE}')
        A(f'v_add_u32 {v(RB+qt)}, s31, {v(VB)}')
        A(f'v_add_u32 {v(RB+4+qt)}, 0x10000, {v(RB+qt)}')
    AH = RING if o.get('deep') else RING - 1
    for st in range(1, AH):
        issue(st)
    A('s_mov_b32 s12, s32\ns_mov_b32 s13, s33\ns_mov_b32 s14, 0x200000\ns_mov_b32 s15, 0x20000')
    A('s_mov_b32 s16, s38\ns_mov_b32 s17, s39\ns_mov_b32 s18, 1024\ns_mov_b32 s19, 0x20000')
    A('s_lshl_b32 s46, s21, 3')
    A('s_add_u32 s46, s46, s30')
    A('s_add_u32 s46, s46, s20')
    A('s_lshl_b32 s46, s46, 14')
    A('s_lshl_b32 s47, s23, 8')
    A('s_lshr_b32 s31, s22, 1')
    A('s_lshl_b32 s31, s31, 7')
    A('s_add_u32 s47, s47, s31')
    A('s_add_u32 s46, s46, s47')
    A(f'v_and_b32 {v(T+2)}, 15, {v(L)}')
    A(f'v_lshrrev_b32 {v(T+3)}, 4, {v(L)}')
    A(f'v_lshlrev_b32 {v(T+3)}, 4, {v(T+3)}')
    A(f'v_lshl_add_u32 {v(T+5)}, {v(T+2)}, 10, {v(T+3)}')
    for np_ in range(2):
        A(f'buffer_load_dwordx4 {v(XR+4*np_,4)}, {v(T+5)}, s[12:15], s46 offen offset:{64*np_}')
        A(f'buffer_load_dwordx4 {v(XR+8+4*np_,4)}, {v(T+3)}, s[16:19], s47 offen offset:{64*np_}')
    extra = 4
    A(f's_waitcnt vmcnt({8*(AH-1)+extra})')
    A('s_barrier')
    if o.get('stamp') is not None:
        A('s_memrealtime s[70:71]')
    for x in read_list(0):
        A(x)
    for st in range(NS):
        nk = 1 if st == NS - 1 else 2
        mf = []
        for nt in range(4):
            for qt in range(4):
                for kk in range(nk):
                    c = ACC + 4 * (4 * nt + qt)
                    mf.append(f'{MFMA} {v(c,4)}, {v(AF+32*(st&1)+4*(4*kk+nt),4)}, {v(BF+32*(st&1)+4*(4*kk+qt),4)}, {0 if st == 0 and kk == 0 else v(c,4)}')
        fill = [[] for _ in mf]
        if st + 1 < NS:
            newest = min(st + AH - 1, NS - 1)
            later = 8 * (newest - (st + 1)) + (extra if st + 1 < AH else 0)
            A(f's_waitcnt vmcnt({later}) lgkmcnt(0)')
            fill[0].append('s_barrier')
            rl = read_list(st + 1)
            for i, x in enumerate(rl):
                fill[1 + i].append(x)
            if st + AH < NS:
                pos = [3, 7, 11, 15, 19, 23, 27, 30]
                for i, (pre, x) in enumerate(issue_list(st + AH)):
                    if pre:
                        fill[pos[i] - 1].append(pre)
                    fill[pos[i]].append(x)
        else:
            A('s_waitcnt lgkmcnt(0)')
        for m, fl in zip(mf, fill):
            A(m)
            for x in fl:
                A(x)
    if o.get('stamp') is not None:
        A('s_memrealtime s[72:73]')
    A(f's_add_u32 s48, s42, {WS_X}')
    A('s_addc_u32 s49, s43, 0')
    A(f's_mov_b32 s50, {X_BYTES}\ns_mov_b32 s51, 0x20000')
    A('s_lshl_b32 s30, s21, 2')
    A('s_add_u32 s30, s30, s23')
    A(f's_mul_i32 s52, s30, {4*49152}')
    A('s_add_u32 s52, s52, s24')
    for j in (1, 2, 3):
        A(f's_xor_b32 s31, s20, {j}')
        A('s_mul_i32 s31, s31, 49152')
        A('s_add_u32 s31, s31, s52')
        A(f's_add_u32 s31, s31, {(j-1)*16384}')
        for nt in range(4):
            for r in range(4):
                A(f'v_min_u32 {v(ACC+4*(4*nt+j)+r)}, -2, {v(ACC+4*(4*nt+j)+r)}')
            A(f'buffer_store_dwordx4 {v(ACC+4*(4*nt+j),4)}, {v(VB)}, s[48:51], s31 offen offset:{1024*nt} sc1')
    A('s_mul_i32 s54, s20, 49152')
    A('s_add_u32 s54, s54, s52')
    A('s_add_u32 s55, s54, 16384')
    A('s_add_u32 s56, s54, 32768')
    A('s_mov_b32 s12, s44\ns_mov_b32 s13, s45')
    A('s_mov_b32 s47, 0xbfb8aa3b')
    for j in (1, 2, 3):
        A(f's_cmp_eq_u32 s20, {3 ^ j}')
        A(f's_cselect_b64 s[{60+2*j}:{61+2*j}], -1, 0')
    A('s_mov_b32 s57, 0x40000')
    if o.get('stamp') is not None:
        A('s_memrealtime s[74:75]')
    R = AF
    A.label('L_k3_poll')
    for j in (1, 2, 3):
        for nt in range(4):
            A(f'buffer_load_dwordx4 {v(R+16*(j-1)+4*nt,4)}, {v(VB)}, s[48:51], s{53+j} offen offset:{1024*nt} sc1')
    A('s_sub_u32 s57, s57, 1')
    for j in range(3):
        A(f's_waitcnt vmcnt({8-4*j})')
        b = R + 16 * j
        A(f'v_max3_u32 {v(T+6)}, {v(b)}, {v(b+1)}, {v(b+2) if j == 0 else v(T+6)}')
        rest = list(range(3 if j == 0 else 2, 16))
        while rest:
            x = rest.pop(0)
            y = rest.pop(0) if rest else x
            A(f'v_max3_u32 {v(T+6)}, {v(b+x)}, {v(b+y)}, {v(T+6)}')
    A(f'v_cmp_eq_u32 vcc, -1, {v(T+6)}')
    A('s_cmp_eq_u32 s57, 0')
    A('s_cbranch_scc1 L_k3_go')
    A('s_cbranch_vccnz L_k3_poll')
    A.label('L_k3_go')
    if o.get('stamp') is not None:
        A('s_memrealtime s[76:77]')
    G = BF
    for np_ in range(2):
        idx = [(2 * np_ + e, r) for e in range(2) for r in range(4)]
        own = lambda nt, r: ACC + 16 * nt + r
        for j, (nt, r) in enumerate(idx):
            g = G + 8 * np_ + j
            A(f'v_cndmask_b32 {v(g)}, {v(own(nt,r))}, {v(R+4*nt+r)}, s[62:63]')
            A(f'v_add_f32 {v(own(nt,r))}, {v(own(nt,r))}, {v(R+4*nt+r)}')
            A(f'v_cndmask_b32 {v(g)}, {v(g)}, {v(R+16+4*nt+r)}, s[64:65]')
            A(f'v_add_f32 {v(R+16+4*nt+r)}, {v(R+16+4*nt+r)}, {v(R+32+4*nt+r)}')
            A(f'v_cndmask_b32 {v(g)}, {v(g)}, {v(R+32+4*nt+r)}, s[66:67]')
            A(f'v_add_f32 {v(own(nt,r))}, {v(own(nt,r))}, {v(R+16+4*nt+r)}')
        for j, (nt, r) in enumerate(idx):
            g = G + 8 * np_ + j; t0 = G + 16 + j; t1 = G + 24 + j
            xs = XR + 4 * np_ + (j >> 1); bs = XR + 8 + 4 * np_ + (j >> 1)
            A(f'v_sub_f32 {v(own(nt,r))}, {v(own(nt,r))}, {v(g)}')
            A(f'v_and_b32 {v(t0)}, 0xffff0000, {v(bs)}' if j & 1 else f'v_lshlrev_b32 {v(t0)}, 16, {v(bs)}')
            A(f'v_and_b32 {v(t1)}, 0xffff0000, {v(xs)}' if j & 1 else f'v_lshlrev_b32 {v(t1)}, 16, {v(xs)}')
            A(f'v_add_f32 {v(g)}, {v(g)}, {v(t0)}')
            A(f'v_mul_f32 {v(t0)}, s47, {v(g)}')
            A(f'v_exp_f32 {v(t0)}, {v(t0)}')
            A(f'v_mul_f32 {v(g)}, {v(g)}, {v(own(nt,r))}')
        for j in range(8):
            A(f'v_add_f32 {v(G+16+j)}, 1.0, {v(G+16+j)}')
        for j in range(8):
            A(f'v_rcp_f32 {v(G+16+j)}, {v(G+16+j)}')
        for j in range(8):
            A(f'v_fma_f32 {v(G+8*np_+j)}, {v(G+8*np_+j)}, {v(G+16+j)}, {v(G+24+j)}')
        d = G + 32 + 4 * np_
        for k in range(4):
            A(f'v_cvt_pk_bf16_f32 {v(d+k)}, {v(G+8*np_+2*k)}, {v(G+8*np_+2*k+1)}')
        A(f'buffer_store_dwordx4 {v(d,4)}, {v(T+5)}, s[12:15], s46 offen offset:{64*np_}')
    if o.get('stamp') is not None:
        A('s_lshl_b32 s85, s22, 6\nv_mov_b32 v0, s85')
        stamp_end(A, o['stamp'], 8)
        A('s_sub_u32 s76, s76, s74\ns_sub_u32 s74, s74, s72\ns_sub_u32 s72, s72, s70\ns_sub_u32 s70, s70, s90')
        A('v_mov_b32 v16, s70\nv_mov_b32 v17, s72\nv_mov_b32 v18, s74\nv_mov_b32 v19, s76')
        A('s_add_u32 s84, s84, 0x8000')
        A('buffer_store_dwordx4 v[16:19], v12, s[80:83], s84 offen')
    A.label('L_k3_end')
    A('s_endpgm')


def k3_desc(A, name='out_kernel'):
    A(f'.amdhsa_kernel {name}\n.amdhsa_next_free_vgpr 240\n.amdhsa_next_free_sgpr 100\n.amdhsa_accum_offset 240')
    A('.amdhsa_group_segment_fixed_size 0\n.amdhsa_kernarg_size 104\n.amdhsa_user_sgpr_count 2\n.amdhsa_user_sgpr_kernarg_segment_ptr 1\n.amdhsa_system_sgpr_workgroup_id_x 1\n.end_amdhsa_kernel')


if __name__ == '__main__':
    from asmlib import check, fix
    for nm, o in {'base': {}, 'deep': dict(deep=1)}.items():
        A = Asm()
        A('; @launch kernel=out_kernel grid=(256,1,1) block=(256,1,1) lds=163840')
        A('.amdgcn_target "amdgcn-amd-amdhsa--gfx950"\n.text')
        k3(A, opts=dict(o, stamp=0))
        A('.section .rodata,"a"\n.p2align 6')
        k3_desc(A)
        A.lines, n = fix(A.lines)
        p = check(A.lines)
        print(nm, len(A.lines), 'lines, nops', n, 'hazards', p[:5])
        open(f'k3b_{nm}.s', 'w').write(A.text())
```

```python
from asmlib import Asm, v, a, s
from gen_attn16 import *

X_RING = 0
W_RING = 65536
K0_LDS = 139264
CS_LDS = 155648
VXO = 0
VWQ = 8
VW1 = 12
RX = 14
RWQ = 16
RW1 = 20
B1R = 24
CSR = 32
PT = 64
XB = 0
AR = 64
ONESA = 96
HB, HE, SUM, GRAM, CSQ, CS1 = 128, 160, 176, 192, 208, 216
SRD_X, SRD_WQ, SRD_W1, SRD_K0, SRD_H, SRD_B1 = 16, 40, 44, 48, 52, 56
SXM, SXO, SWQO, SW1O, SM1, SFLIP = 60, 61, 62, 63, 64, 65
SROT, SXT, SXT2, SWQT, SW1T = 28, 74, 75, 76, 77
NPOS = 14


def p1_lane_setup(A):
    L = LANE; t1, t2, t3, t4 = PT, PT + 1, PT + 2, PT + 3
    A(f'v_lshrrev_b32 {v(t1)}, 3, {v(L)}')
    A(f'v_lshrrev_b32 {v(t2)}, 4, {v(L)}')
    A(f'v_and_b32 {v(t3)}, 7, {v(L)}')
    for i in range(2):
        A(f'v_add_u32 {v(t4)}, {4*i}, {v(t2)}')
        A(f'v_xor_b32 {v(t4)}, {v(t4)}, {v(t3)}')
        A(f'v_lshlrev_b32 {v(t4)}, 4, {v(t4)}')
        A(f'v_lshl_add_u32 {v(VXO+i)}, {v(t1)}, 10, {v(t4)}')
    A(f'v_add_u32 {v(VXO+1)}, 7168, {v(VXO+1)}')
    for i in range(2):
        A(f'v_add_u32 {v(VXO+2+i)}, 14336, {v(VXO+i)}')
    A(f'v_and_b32 {v(t3)}, 15, {v(L)}')
    A(f'v_lshlrev_b32 {v(t4)}, 2, {v(t2)}')
    A(f'v_xor_b32 {v(t4)}, {v(t4)}, {v(t3)}')
    A(f'v_lshlrev_b32 {v(t4)}, 4, {v(t4)}')
    A(f'v_lshl_add_u32 {v(VWQ)}, {v(t2)}, 13, {v(t4)}')
    for i in range(1, 4):
        A(f'v_add_u32 {v(VWQ+i)}, {4*i*8192 - 1024*i}, {v(VWQ)}')
    A(f's_lshl_b32 s30, {s(SHEAD)}, 6')
    A(f's_lshr_b32 s31, {s(SHEAD)}, 1')
    A('s_add_u32 s31, s31, 32')
    A('s_lshl_b32 s31, s31, 6')
    A('s_movk_i32 s29, 2752')
    A(f'v_mov_b32 {v(PT+5)}, s31')
    for i in range(2):
        A(f'v_and_b32 {v(t3)}, 7, {v(L)}')
        A(f'v_and_b32 {v(t4)}, 1, {v(t2)}')
        A(f'v_lshlrev_b32 {v(t4)}, 1, {v(t4)}')
        A(f'v_xor_b32 {v(t3)}, {v(t3)}, {v(t4)}')
        if i:
            A(f'v_xor_b32 {v(t3)}, 4, {v(t3)}')
        A(f'v_and_b32 {v(t4)}, 3, {v(t3)}')
        A(f'v_lshlrev_b32 {v(t4)}, 4, {v(t4)}')
        A(f'v_mov_b32 {v(PT+4)}, s30')
        A(f'v_cmp_gt_u32 vcc, 4, {v(t3)}')
        A(f'v_cndmask_b32 {v(PT+4)}, {v(PT+5)}, {v(PT+4)}, vcc')
        A(f'v_add_u32 {v(t4)}, {v(t4)}, {v(PT+4)}')
        A(f'v_mad_u32_u24 {v(VW1+i)}, {v(t1)}, s29, {v(t4)}')
    A(f'v_add_u32 {v(VW1+1)}, {8*2752 - 1024}, {v(VW1+1)}')


def p1_read_setup(A):
    L = LANE; t1, t2, t3, t4 = PT, PT + 1, PT + 2, PT + 3
    A(f'v_lshrrev_b32 {v(t2)}, 4, {v(L)}')
    A(f'v_and_b32 {v(t3)}, 15, {v(L)}')
    A(f'v_lshrrev_b32 {v(t4)}, 1, {v(t3)}')
    A(f'v_lshlrev_b32 {v(t3)}, 7, {v(t3)}')
    A(f'v_add_u32 {v(t3)}, {s(SXM)}, {v(t3)}')
    for kk in range(2):
        A(f'v_add_u32 {v(t1)}, {4*kk}, {v(t2)}')
        A(f'v_xor_b32 {v(t1)}, {v(t1)}, {v(t4)}')
        A(f'v_lshl_add_u32 {v(RX+kk)}, {v(t1)}, 4, {v(t3)}')
    A(f'v_bfe_u32 {v(t3)}, {v(L)}, 2, 2')
    A(f'v_lshl_add_u32 {v(t1)}, {v(t2)}, 3, {v(t3)}')
    A(f'v_and_b32 {v(PT+4)}, 1, {v(t2)}')
    A(f'v_and_b32 {v(t2)}, 3, {v(L)}')
    A(f'v_lshlrev_b32 {v(PT+5)}, 4, {v(t2)}')
    A(f'v_lshl_add_u32 {v(PT+5)}, {v(t1)}, 8, {v(PT+5)}')
    A(f'v_add_u32 {v(PT+5)}, {W_RING}, {v(PT+5)}')
    for k in range(4):
        A(f's_xor_b32 s29, {s(SW)}, {k}')
        A(f'v_xor_b32 {v(t4)}, s29, {v(t3)}')
        A(f'v_lshl_add_u32 {v(RWQ+k)}, {v(t4)}, 6, {v(PT+5)}')
    A(f'v_lshrrev_b32 {v(t3)}, 1, {v(t3)}')
    A(f'v_lshl_add_u32 {v(t3)}, {v(PT+4)}, 1, {v(t3)}')
    A(f'v_lshlrev_b32 {v(t2)}, 3, {v(t2)}')
    A(f'v_lshl_add_u32 {v(t2)}, {v(t1)}, 7, {v(t2)}')
    A(f'v_add_u32 {v(t2)}, {W_RING + 16384}, {v(t2)}')
    for u in range(4):
        A(f'v_xor_b32 {v(t4)}, {u}, {v(t3)}')
        A(f'v_lshl_add_u32 {v(RW1+u)}, {v(t4)}, 5, {v(t2)}')
    A(f'v_mov_b32 {v(t1)}, 0x3f803f80')
    for i in range(4):
        A(f'v_accvgpr_write_b32 {a(ONESA+i)}, {v(t1)}')


class VM:
    def __init__(self):
        self.ops = []

    def add(self, tag):
        self.ops.append(tag)

    def wait_for(self, tags):
        idx = max(i for i, t in enumerate(self.ops) if t in tags)
        n = len(self.ops) - 1 - idx
        n = min(n, 63)
        return n


def x_dma(c):
    out = []
    for i in range(8):
        pre = f's_add_u32 m0, {s(SXM)}, {X_RING + (c & 1)*32768 + (i >> 2)*4096}\n' if i & 3 == 0 else ''
        if i == 0:
            pre = (f's_add_u32 s78, {s(SROT)}, {c}\ns_and_b32 s78, s78, 7\ns_lshl_b32 s78, s78, 7\n'
                   f's_add_u32 {s(SXT)}, {s(SXO)}, s78\ns_xor_b32 {s(SXT2)}, {s(SXT)}, 0x8000\n') + pre
        so = SXT if i < 4 else SXT2
        out.append((pre, f'buffer_load_dwordx4 {v(VXO+(i&3))}, {s(SRD_X,4)}, {s(so)} offen offset:{1024*(i&3)} lds'))
    return out


def w_dma(c):
    sl = W_RING + (c % 3) * 24576
    out = []
    for i in range(4):
        pre = ''
        if i == 0:
            pre = (f's_add_u32 s78, {s(SROT)}, {c}\ns_and_b32 s78, s78, 7\ns_lshl_b32 s79, s78, 19\n'
                   f's_add_u32 {s(SWQT)}, {s(SWQO)}, s79\ns_mul_i32 s79, s78, {64*2752}\ns_add_u32 {s(SW1T)}, {s(SW1O)}, s79\n'
                   f's_add_u32 m0, {s(SM0)}, {sl}\n')
        out.append((pre, f'buffer_load_dwordx4 {v(VWQ+i)}, {s(SRD_WQ,4)}, {s(SWQT)} offen offset:{1024*i} lds'))
    for i in range(2):
        pre = f's_add_u32 m0, {s(SM1)}, {sl + 16384}\n' if i == 0 else ''
        out.append((pre, f'buffer_load_dwordx4 {v(VW1+i)}, {s(SRD_W1,4)}, {s(SW1T)} offen offset:{1024*i} lds'))
    return out


def kv_list(which, slot, srd=None):
    out = []
    for i in range(4):
        if which == 'K':
            pre = f's_add_u32 m0, {s(SM0)}, {slot*16384}\n' if i == 0 else ''
            out.append((pre, f'buffer_load_dwordx4 {v(VOK+i)}, {s(srd or SRD_K,4)}, {s(SOFF)} offen offset:{1024*i} lds'))
        else:
            pre = f's_add_u32 m0, {s(SM0)}, {65536+slot*16384}\n' if i == 0 else ''
            out.append((pre, f'buffer_load_dwordx4 {v(VOV+(i&1))}, {s(SRD_V,4)}, {s(SOFF)} offen offset:{1024*i} lds'))
    return out


def tile_reads(c, t):
    out = []
    for kk in range(2):
        for jh in range(2):
            dst = a(AR + 8 * (t % 4) + 4 * kk + 2 * jh, 2)
            if t < 8:
                off = (c % 3) * 24576 + (32 * kk + 4 * jh) * 256 + 8 * (t & 1)
                out.append(f'ds_read_b64_tr_b16 {dst}, {v(RWQ+(t>>1))} offset:{off}')
            else:
                off = (c % 3) * 24576 + (32 * kk + 4 * jh) * 128
                out.append(f'ds_read_b64_tr_b16 {dst}, {v(RW1+t-8)} offset:{off}')
    return out


def x_reads(c):
    out = []
    for kk in range(2):
        for qt in range(4):
            out.append(f'ds_read_b128 {a(XB+32*(c&1)+4*(4*kk+qt),4)}, {v(RX+kk)} offset:{X_RING+(c&1)*32768+qt*2048}')
    return out


def tile_mfmas(c, pos):
    xs = XB + 32 * (c & 1)
    out = []

    def mm(acc, A_, B_, kk):
        out.append(f'{MFMA} {acc}, {A_}, {B_}, {0 if (c == 0 and kk == 0) else acc}')
    xf = lambda kk, qt: a(xs + 4 * (4 * kk + qt), 4)
    ones = a(ONESA, 4)
    if pos < 12:
        wf = lambda kk: a(AR + 8 * (pos % 4) + 4 * kk, 4)
        nq = 2 if pos >= 10 else 4
        for qt in range(nq):
            if pos < 8:
                acc = v(OACC + 4 * (8 * qt + pos), 4)
            elif pos < 10:
                acc = a(HB + 4 * (4 * (pos - 8) + qt), 4)
            else:
                acc = a(HE + 4 * (2 * (pos - 10) + qt), 4)
            for kk in range(2):
                mm(acc, wf(kk), xf(kk, qt), kk)
        if pos < 2 or pos >= 8:
            acc = a(CSQ + 4 * pos, 4) if pos < 2 else a(CS1 + 4 * (pos - 8), 4)
            for kk in range(2):
                mm(acc, wf(kk), ones, kk)
    else:
        for qt in (2 * (pos - 12), 2 * (pos - 12) + 1):
            for kk in range(2):
                mm(a(SUM + 4 * qt, 4), ones, xf(kk, qt), kk)
            for kk in range(2):
                mm(a(GRAM + 4 * qt, 4), xf(kk, qt), xf(kk, qt), kk)
    return out


def phase1(A, vm, diag=False, side=(), early=0):
    lds = []
    done = [-1]

    def lds_wait(tag):
        idx = max(i for i, t in enumerate(lds) if t == tag)
        if idx > done[0]:
            n = len(lds) - 1 - idx
            A(f's_waitcnt lgkmcnt({min(n, 15)})')
            done[0] = idx

    A(f's_waitcnt vmcnt({vm.wait_for([("x", 0), ("W", 0)])})')
    if diag:
        A('s_memrealtime s[66:67]\ns_waitcnt lgkmcnt(0)\nv_writelane_b32 v63, s66, 12')
    A('s_barrier')
    if diag:
        A('s_memrealtime s[66:67]\ns_waitcnt lgkmcnt(0)\nv_writelane_b32 v63, s66, 13')
    for r in x_reads(0):
        A(r); lds.append(('x', 0))
    for t in range(2):
        for r in tile_reads(0, t):
            A(r); lds.append(('t', 0, t))
    for c in range(8):
        if diag:
            A(f's_memrealtime s[{66+2*(c&1)}:{67+2*(c&1)}]')
            if c:
                A(f'v_writelane_b32 v63, s{66+2*((c-1)&1)}, {c-1}')
        for pos in range(NPOS):
            mf = tile_mfmas(c, pos)
            fill = [[] for _ in mf]
            slot = [0]

            def put(txt, tag=None, kind=None, at=None):
                i = slot[0] if at is None else at
                fill[i].append((txt, tag, kind))
                if at is None:
                    slot[0] += 1

            def put_dma(lst, tag):
                for pre, ins in lst:
                    if pre:
                        fill[max(slot[0] - 1, 0)].append((pre.strip(), None, None))
                        slot[0] = max(slot[0], 1)
                    put(ins, tag, 'vm')
            if pos == 12:
                if c < 7:
                    put(('vmwait', [('W', c + 1)]))
                put('s_barrier')
            nxt = (c, pos + 2) if pos + 2 < 12 else ((c + 1, pos - 12) if pos >= 12 and c < 7 else None)
            if nxt:
                for r in tile_reads(*nxt):
                    put(r, ('t',) + nxt, 'lds')
            if c < 7:
                if pos == 10:
                    put(('vmwait', [('x', c + 1)]))
                if pos in (10, 11):
                    for r in x_reads(c + 1)[4 * (pos - 10):4 * (pos - 10) + 4]:
                        put(r, ('x', c + 1), 'lds')
            if c == 0:
                plan0 = {0: (x_dma(1)[:4], ('x', 1)), 1: (x_dma(1)[4:], ('x', 1)), 2: (w_dma(1)[:3], ('W', 1)), 3: (w_dma(1)[3:], ('W', 1)),
                         4: (x_dma(2)[:4], ('x', 2)), 5: (x_dma(2)[4:], ('x', 2)), 6: (w_dma(2)[:3], ('W', 2)), 7: (w_dma(2)[3:], ('W', 2))}
                if early:
                    plan0 = {k - 4: x for k, x in plan0.items() if k >= 4}
                if pos in plan0:
                    put_dma(*plan0[pos])
            elif pos in (0, 1, 2, 3) and c + 2 <= 7:
                put_dma(x_dma(c + 2)[2 * pos:2 * pos + 2], ('x', c + 2))
            if pos in (12, 13) and c + 3 <= 7:
                put_dma(w_dma(c + 3)[2 * (pos - 12) + 0:2 + 4 * (pos - 12)], ('W', c + 3))
            if c == 6 and pos == 4:
                put_dma([(f's_add_u32 m0, {s(SM0)}, {K0_LDS}\n' if i == 0 else '',
                          f'buffer_load_dwordx4 {v(VOK+i)}, {s(SRD_K0,4)}, {s(SOFF)} offen offset:{1024*i} lds') for i in range(4)], 'k0')
            if c == 7 and pos in (0, 1, 2):
                lst = [kv_list('K', 0), kv_list('V', 0), kv_list('K', 1)][pos]
                put_dma(lst, ('kv', 0 if pos < 2 else 1))
                if pos == 1:
                    fill[-1].append((f's_add_u32 {s(SOFF)}, {s(SOFF)}, 16384', None, None))
            if c == 7 and pos == 12:
                put_dma(kv_list('V', 1), ('kv', 1))
                fill[-1].append((f's_add_u32 {s(SOFF)}, {s(SOFF)}, 16384', None, None))
            if pos < 12:
                lds_wait(('t', c, pos))
            for m, fl in zip(mf, fill):
                A(m)
                if not fl and side and (c, pos) >= (0, 8):
                    for _ in range(2):
                        if side:
                            txt, tag = side.pop(0)
                            A(txt)
                            if tag:
                                vm.add(tag)
                            if tag or txt.startswith('s_add_u32 m0'):
                                break
                for txt, tag, kind in fl:
                    if isinstance(txt, tuple):
                        A(f's_waitcnt vmcnt({vm.wait_for(txt[1])})')
                        continue
                    A(txt)
                    if kind == 'lds':
                        lds.append(tag)
                    elif kind == 'vm':
                        vm.add(tag)


def p1_epilogue(A, vm, stmod=''):
    L = LANE
    lo = PT; t0 = PT + 1; t1 = PT + 2; t2 = PT + 3; t3 = PT + 4
    NMU, AQ, AH = T0, T0 + 4, T0 + 8
    A(f'v_lshlrev_b32 {v(lo)}, 4, {v(L)}')
    A(f's_lshl_b32 s29, {s(SW)}, 11')
    A(f's_add_u32 s29, s29, {CS_LDS}')
    A(f'v_add_u32 {v(t0)}, s29, {v(lo)}')
    for e in range(2):
        A(f'ds_write_b128 {v(t0)}, {a(CSQ+4*e,4)} offset:{1024*e}')
    A(f'v_and_b32 {v(t1)}, 3, {v(L)}')
    for k in range(1, 4):
        A(f'v_cmp_eq_u32 s[{66+2*k}:{67+2*k}], {k}, {v(t1)}')
    A(f'v_bfe_u32 {v(t1)}, {v(L)}, 2, 2')
    A(f'v_lshrrev_b32 {v(t2)}, 4, {v(L)}')
    A(f'v_cmp_eq_u32 s[74:75], {v(t1)}, {v(t2)}')
    A('s_mov_b32 s76, 0x3b000000')
    A('s_mov_b32 s77, 0x3727c5ac')
    A('s_mov_b32 s78, 0x3e0293ee')
    A(f's_waitcnt vmcnt({vm.wait_for(["k0"])}) lgkmcnt(0)')
    A('s_barrier')
    for k in range(4):
        A(f's_xor_b32 s29, {s(SW)}, {k}')
        A('s_lshl_b32 s29, s29, 11')
        A(f's_add_u32 s29, s29, {CS_LDS}')
        A(f'v_add_u32 {v(t0)}, s29, {v(lo)}')
        for e in range(2):
            A(f'ds_read_b128 {v(CSR+4*(2*k+e),4)}, {v(t0)} offset:{1024*e}')
    for qt in range(4):
        g = PT + 8
        for r in range(4):
            A(f'v_accvgpr_read_b32 {v(g+r)}, {a(GRAM+4*qt+r)}')
        A(f'v_accvgpr_read_b32 {v(t1)}, {a(SUM+4*qt)}')
        for k in range(1, 4):
            A(f'v_cndmask_b32 {v(g)}, {v(g)}, {v(g+k)}, s[{66+2*k}:{67+2*k}]')
        A(f'v_cndmask_b32 {v(g)}, 0, {v(g)}, s[74:75]')
        xlane(A, 'v_add_f32', g, g + 1)
        A(f'v_mul_f32 {v(t1)}, s76, {v(t1)}')
        A(f'v_mul_f32 {v(g)}, s76, {v(g)}')
        A(f'v_fma_f32 {v(g)}, -{v(t1)}, {v(t1)}, {v(g)}')
        A(f'v_max_f32 {v(g)}, 0, {v(g)}')
        A(f'v_add_f32 {v(t2)}, s77, {v(g)}')
        A(f'v_rsq_f32 {v(t2)}, {v(t2)}')
        A(f'v_sub_f32 {v(NMU+qt)}, 0, {v(t1)}')
        A(f'v_mul_f32 {v(g)}, {v(g)}, {v(t2)}')
        A(f'v_fma_f32 {v(g)}, {v(g)}, {v(t2)}, s77')
        A(f'v_rsq_f32 {v(g)}, {v(g)}')
        A(f'v_mul_f32 {v(AQ+qt)}, s78, {v(t2)}')
        A(f'v_mul_f32 {v(AH+qt)}, {v(g)}, {v(t2)}')
    A('s_waitcnt lgkmcnt(0)')
    for qt in range(4):
        for k in range(4):
            b = OACC + 4 * (8 * qt + 2 * k)
            for i in range(8):
                A(f'v_fma_f32 {v(b+i)}, {v(NMU+qt)}, {v(CSR+8*k+i)}, {v(b+i)}')
            for i in range(8):
                A(f'v_mul_f32 {v(b+i)}, {v(AQ+qt)}, {v(b+i)}')
            for i in range(4):
                A(f'v_cvt_pk_bf16_f32 {v(b+i)}, {v(b+2*i)}, {v(b+2*i+1)}')
            for i in range(4):
                A(f'v_accvgpr_write_b32 {a(QF+4*(4*qt+k)+i)}, {v(b+i)}')
    C1 = CSR; BB = CSR + 16
    A(f's_waitcnt vmcnt({vm.wait_for(["b1"])})')
    for i in range(16):
        A(f'v_accvgpr_read_b32 {v(C1+i)}, {a(CS1+i)}')
        src = B1R + (i >> 1)
        A(f'v_and_b32 {v(BB+i)}, 0xffff0000, {v(src)}' if i & 1 else f'v_lshlrev_b32 {v(BB+i)}, 16, {v(src)}')
    A('s_mov_b32 s66, 0xc0135761')
    A('s_mov_b32 s67, 0xbdd2d3e8')
    A(f'v_mov_b32 {v(T0+12)}, s66')
    A(f's_lshl_b32 s29, {s(SQB)}, 4')
    A(f's_lshl_b32 s30, {s(SW)}, 2')
    A('s_add_u32 s29, s29, s30')
    A('s_lshl_b32 s29, s29, 10')
    A(f's_lshl_b32 s30, {s(SFLIP)}, 6')
    A(f's_lshl_b32 s31, {s(SHEAD)}, 17')
    A('s_add_u32 s31, s31, s29')
    A('s_add_u32 s68, s31, s30')
    A('s_xor_b32 s69, s68, 2048')
    A(f's_lshr_b32 s31, {s(SHEAD)}, 1')
    A('s_add_u32 s31, s31, 32')
    A('s_lshl_b32 s31, s31, 17')
    A('s_add_u32 s31, s31, s29')
    A('s_add_u32 s70, s31, s30')
    n = 0
    for pair, nq in ((0, 4), (1, 2)):
        for qt in range(nq):
            w = OACC + 16 * (n % 4); u = w + 8; n += 1
            for i in range(8):
                e, r = i >> 2, i & 3
                src = (HB + 4 * (4 * e + qt) + r) if pair == 0 else (HE + 4 * (2 * e + qt) + r)
                A(f'v_accvgpr_read_b32 {v(w+i)}, {a(src)}')
            for i in range(8):
                A(f'v_fma_f32 {v(w+i)}, {v(NMU+qt)}, {v(C1+8*pair+i)}, {v(w+i)}')
            for i in range(8):
                A(f'v_fma_f32 {v(w+i)}, {v(AH+qt)}, {v(w+i)}, {v(BB+8*pair+i)}')
            for i in range(8):
                A(f'v_mul_f32 {v(u+i)}, {v(w+i)}, {v(w+i)}')
            for i in range(8):
                A(f'v_fma_f32 {v(u+i)}, {v(u+i)}, s67, {v(T0+12)}')
            for i in range(8):
                A(f'v_mul_f32 {v(u+i)}, {v(u+i)}, {v(w+i)}')
            for i in range(8):
                A(f'v_exp_f32 {v(u+i)}, {v(u+i)}')
            for i in range(8):
                A(f'v_add_f32 {v(u+i)}, 1.0, {v(u+i)}')
            for i in range(8):
                A(f'v_rcp_f32 {v(u+i)}, {v(u+i)}')
            for i in range(8):
                A(f'v_mul_f32 {v(w+i)}, {v(w+i)}, {v(u+i)}')
            for i in range(4):
                A(f'v_cvt_pk_bf16_f32 {v(u+i)}, {v(w+2*i)}, {v(w+2*i+1)}')
            so = 70 if pair else (68 if qt < 2 else 69)
            A(f'buffer_store_dwordx4 {v(u,4)}, {v(lo)}, {s(SRD_H,4)}, s{so} offen offset:{1024*(qt&1)}{stmod}')
            vm.add('hst')
```

```python
import sys
from asmlib import Asm, v, a, s, check, fix, stamp_begin, stamp_end
from gen_attn16 import *
from gen_p1 import *
import gen_k3b as gen_k3

VLIST = sorted([39 + 4 * i for i in range(20)] + [41 + 8 * i for i in range(7)] + [45 + 8 * i for i in range(5)])
KLIST = [77, 85, 93, 101, 105, 109, 113, 117, 119, 123, 127, 131, 135, 139, 143, 147]
PLAN = dict(vpos=lambda n: VLIST[n], kpos=lambda n: KLIST[n], km=4, kd=lambda i: [5, 9, 23, 27][i], vm=28, vd=lambda i: [31, 35, 37, 33][i])
HEADER = open('recurrent_scan__mha_block_cached__mixer_channel_mlp__prompt.s.ref').read().split('; Override')[0]


def srd(A, d, lo, hi, off, nbytes):
    if off is None:
        A(f's_mov_b32 s{d}, s{lo}\ns_mov_b32 s{d+1}, s{hi}')
    else:
        A(f's_add_u32 s{d}, s{lo}, {off}\ns_addc_u32 s{d+1}, s{hi}, 0')
    A(f's_mov_b32 s{d+2}, {nbytes}\ns_mov_b32 s{d+3}, 0x20000')


def k2(A, o):
    name = 'attn_kernel'
    st = o.get('stamp')
    A(f'.globl {name}\n.p2align 8\n.type {name},@function')
    A.label(name)
    A('s_cmp_ge_u32 s2, 256')
    A('s_cbranch_scc1 L_k2_end')
    if st:
        stamp_begin(A)
    A('s_load_dwordx8 s[32:39], s[0:1], 0')
    A('s_load_dwordx4 s[68:71], s[0:1], 48')
    A('s_load_dwordx2 s[72:73], s[0:1], 96')
    A(f'v_lshrrev_b32 {v(T0)}, 6, v0')
    A('s_and_b32 s26, s2, 7')
    A('s_lshl_b32 s26, s26, 2')
    A('s_bfe_u32 s27, s2, 0x20003')
    A(f'v_readfirstlane_b32 {s(SW)}, {v(T0)}')
    A(f's_add_u32 {s(SHEAD)}, s26, s27')
    A(f's_lshr_b32 {s(SQB)}, s2, 5')
    A(f's_and_b32 {s(SFLIP)}, {s(SHEAD)}, 1')
    A(f's_lshl_b32 {s(SFLIP)}, {s(SFLIP)}, 5')
    A(f's_lshl_b32 {s(SM0)}, {s(SW)}, 12')
    A(f's_lshl_b32 {s(SM1)}, {s(SW)}, 11')
    A(f's_lshl_b32 {s(SXM)}, {s(SW)}, 13')
    A(f's_lshl_b32 {s(SXO)}, {s(SQB)}, 18')
    A(f's_lshl_b32 s26, {s(SW)}, 16')
    A(f's_add_u32 {s(SXO)}, {s(SXO)}, s26')
    A(f's_lshl_b32 s26, {s(SFLIP)}, 10')
    A(f's_add_u32 {s(SXO)}, {s(SXO)}, s26')
    A(f's_mov_b32 {s(SROT)}, {s(SQB)}' if o.get('rot') else f's_mov_b32 {s(SROT)}, 0')
    A(f's_lshl_b32 {s(SWQO)}, {s(SW)}, 17')
    A(f's_lshl_b32 s26, {s(SHEAD)}, 8')
    A(f's_add_u32 {s(SWQO)}, {s(SWQO)}, s26')
    A(f's_mul_i32 {s(SW1O)}, {s(SW)}, {16*2752}')
    A(f's_mov_b32 {s(SOFF)}, {s(SM0)}')
    A(f'v_and_b32 {v(LANE)}, 63, v0')
    if not o.get('nocpf'):
        A('s_getpc_b64 s[56:57]')
        A.label('L_code0')
        A('s_mov_b32 s58, L_code_end-L_code0')
        A('s_mov_b32 s59, 0x20000')
        A('s_lshr_b32 s26, s2, 3')
        A('s_lshl_b32 s26, s26, 2')
        A(f's_add_u32 s26, s26, {s(SW)}')
        A('s_lshl_b32 s26, s26, 9')
        A(f'v_lshlrev_b32 {v(PT+8)}, 3, {v(LANE)}')
        A(f'buffer_load_dwordx2 {v(PT+10,2)}, {v(PT+8)}, s[56:59], s26 offen')
    p1_lane_setup(A)
    A('s_waitcnt lgkmcnt(0)')
    if st:
        A('s_memrealtime s[66:67]\ns_waitcnt lgkmcnt(0)\nv_writelane_b32 v63, s66, 9')
    srd(A, SRD_X, 32, 33, None, 2 << 20)
    srd(A, SRD_WQ, 38, 39, None, 4 << 20)
    srd(A, SRD_W1, 68, 69, None, 512 * 2752)
    vm = VM()
    vm.add('code')

    def run(lst, tag):
        for pre, ins in lst:
            A(pre + ('s_nop 0\n' if pre else '') + ins); vm.add(tag)
    run(x_dma(0), ('x', 0)); run(w_dma(0), ('W', 0))
    if st:
        A('s_memrealtime s[66:67]\ns_waitcnt lgkmcnt(0)\nv_writelane_b32 v63, s66, 10')
    mode = o.get('pmode', 0)
    if mode & 1:
        run(x_dma(1), ('x', 1)); run(w_dma(1), ('W', 1))
    if mode & 2:
        P0, P1, P2, PD = PT + 8, PT + 9, PT + 10, PT + 11
        A(f'v_lshlrev_b32 {v(P0)}, 6, {v(LANE)}')
        A(f'v_lshrrev_b32 {v(P1)}, 2, {v(LANE)}')
        A(f'v_and_b32 {v(P2)}, 3, {v(LANE)}')
        A(f'v_lshlrev_b32 {v(P2)}, 6, {v(P2)}')
        A(f'v_lshl_add_u32 {v(P1)}, {v(P1)}, 13, {v(P2)}')
        A('s_bfe_u32 s26, s2, 0x20003')
        A('s_lshl_b32 s26, s26, 16')
        A(f's_lshl_b32 s27, {s(SQB)}, 18')
        A('s_add_u32 s26, s26, s27')
        A(f's_lshl_b32 s27, {s(SW)}, 14')
        A('s_add_u32 s26, s26, s27')
        for i in range(4):
            A(f'buffer_load_dword {v(PD)}, {v(P0)}, {s(SRD_X,4)}, s26 offen'); vm.add('pf')
            A('s_add_u32 s26, s26, 4096')
        A(f's_lshl_b32 s27, {s(SQB)}, 19')
        A(f's_add_u32 s27, s27, {s(SWQO)}')
        A(f'buffer_load_dword {v(PD)}, {v(P1)}, {s(SRD_WQ,4)}, s27 offen'); vm.add('pf')
        A(f's_mul_i32 s27, {s(SQB)}, {64*2752}')
        A(f's_add_u32 s27, s27, {s(SW1O)}')
        A(f'buffer_load_dword {v(PD)}, {v(VW1)}, {s(SRD_W1,4)}, s27 offen'); vm.add('pf')
        A(f'buffer_load_dword {v(PD)}, {v(VW1+1)}, {s(SRD_W1,4)}, s27 offen offset:1024'); vm.add('pf')
    p1_read_setup(A)
    if st:
        A('s_memrealtime s[66:67]\ns_waitcnt lgkmcnt(0)\nv_writelane_b32 v63, s66, 11')
    B = Asm()
    lane_setup(B, rot=True)
    B(f's_lshl_b32 s26, {s(SHEAD)}, 19')
    B('s_add_u32 s27, s26, 16384')
    srd(B, SRD_K, 34, 35, 's27', 524288 - 16384)
    srd(B, SRD_K0, 34, 35, 's26', 16384)
    srd(B, SRD_V, 36, 37, 's26', 524288)
    srd(B, SRD_WS, 72, 73, None, 16 << 20)
    srd(B, SRD_H, 72, 73, WS_H, 43 * 128 * 1024)
    srd(B, SRD_B1, 70, 71, None, 2752)
    B(f'v_lshrrev_b32 {v(PT)}, 4, {v(LANE)}')
    B(f'v_lshlrev_b32 {v(PT)}, 3, {v(PT)}')
    B(f's_lshl_b32 s26, {s(SHEAD)}, 6')
    B(f's_lshr_b32 s27, {s(SHEAD)}, 1')
    B('s_add_u32 s27, s27, 32')
    B('s_lshl_b32 s27, s27, 6')
    side = []
    for l in B.lines:
        if l.startswith('s_addc'):
            side[-1] = (side[-1][0] + '\n' + l, None)
        else:
            side.append((l, None))
    for u in range(4):
        side.append((f'buffer_load_dwordx2 {v(B1R+2*u,2)}, {v(PT)}, {s(SRD_B1,4)}, s{26+(u>>1)} offen offset:{32*(u&1)}', 'b1'))
    phase1(A, vm, diag=bool(st), side=side, early=mode & 1)
    assert not side
    if st:
        A('v_writelane_b32 v63, s68, 7')
        A('v_writelane_b32 v63, s90, 8')
        A('s_lshl_b32 s26, s2, 2\ns_add_u32 s26, s26, s20\ns_lshl_b32 s26, s26, 8\ns_add_u32 s26, s26, 0x3100000\ns_mov_b32 s14, 0x4000000')
        A(f'v_lshlrev_b32 v62, 2, {v(LANE)}')
        A('buffer_store_dword v63, v62, s[12:15], s26 offen'); vm.add('diag')
        A('s_memrealtime s[86:87]')
    p1_epilogue(A, vm, o.get('stmod', ''))
    if st:
        A('s_memrealtime s[88:89]')
    A('s_and_b32 s27, s2, 3')
    A('s_cmp_eq_u32 s27, 3')
    A('s_cselect_b32 s26, 64, 32')
    A('s_load_dwordx2 s[40:41], s[0:1], s26')
    A(f's_cselect_b32 s42, {1376*1024}, s42')
    A('s_cselect_b32 s27, 0, s27')
    A(f's_mul_i32 s61, s27, {1376*1024}')
    A('s_lshr_b32 s26, s2, 3')
    A('s_lshl_b32 s26, s26, 2')
    A(f's_add_u32 s26, s26, {s(SW)}')
    A('s_mul_i32 s26, s26, 11264')
    A('s_add_u32 s61, s61, s26')
    A(f's_add_u32 s44, {s(SRD_WS)}, {gen_k3.WS_X}')
    A(f's_addc_u32 s45, {s(SRD_WS+1)}, 0')
    A(f's_mov_b32 s46, {gen_k3.X_BYTES}')
    A('s_mul_i32 s62, s2, 49152')
    A(f's_mul_i32 s26, {s(SW)}, 12288')
    A('s_add_u32 s62, s62, s26')
    A(f'v_lshlrev_b32 {v(LS2+7)}, 4, {v(LANE)}')
    for i in range(4):
        A(f'v_mov_b32 {v(T0+12+i)}, -1')
    pf = []
    for i in range(12):
        pf.append(f'buffer_store_dwordx4 {v(T0+12,4)}, {v(LS2+7)}, s[44:47], s62 offen offset:{1024*(i&3)} sc1' + ('\ns_add_u32 s62, s62, 4096' if i & 3 == 3 else ''))
    if not o.get('nopf'):
        for i in range(11):
            pf.append(f'buffer_load_dwordx4 {v(T0+16,4)}, {v(LS2+7)}, s[40:43], s61 offen offset:{1024*(i&3)}' + ('\ns_add_u32 s61, s61, 4096' if i & 3 == 3 else ''))
    if not o.get('nocpf'):
        A('s_getpc_b64 s[56:57]')
        A.label('L_code1')
        A('s_add_u32 s56, s56, out_kernel-L_code1')
        A('s_addc_u32 s57, s57, 0')
        A('s_mov_b32 s58, L_code_end-out_kernel')
        A('s_lshr_b32 s63, s2, 3')
        A('s_lshl_b32 s63, s63, 2')
        A(f's_add_u32 s63, s63, {s(SW)}')
        A('s_lshl_b32 s63, s63, 8')
        A(f'v_lshlrev_b32 {v(LS2+6)}, 2, {v(LANE)}')
        pf.append(f'buffer_load_dword {v(T0+16)}, {v(LS2+6)}, s[56:59], s63 offen')
    attn_start(A, K0_LDS)
    opts = dict(PLAN, first_vm=vm.wait_for([('kv', 0)]), stmod=o.get('stmod', ''))
    if st:
        A('s_memrealtime s[98:99]')
    attn_loop(A, opts, pf)
    if st:
        A('s_memrealtime s[100:101]')
    attn_store(A, opts)
    if st:
        A(f's_lshl_b32 s85, {s(SW)}, 6')
        A('v_mov_b32 v0, s85')
        A('s_waitcnt lgkmcnt(0)')
        A('s_sub_u32 s100, s100, s98\ns_sub_u32 s98, s98, s88\ns_sub_u32 s88, s88, s86\ns_sub_u32 s86, s86, s90')
        stamp_end(A, 0, 0)
        A('v_mov_b32 v8, s86\nv_mov_b32 v9, s88\nv_mov_b32 v10, s98\nv_mov_b32 v11, s100')
        A('s_add_u32 s84, s84, 0x8000')
        A('buffer_store_dwordx4 v[8:11], v4, s[80:83], s84 offen')
    A.label('L_k2_end')
    A('s_endpgm')


def build(o):
    A = Asm()
    for l in HEADER.strip().split('\n'):
        A.lines.append(l)
    A('; @launch kernel=attn_kernel grid=(256,1,1) block=(256,1,1) lds=163840')
    A('; @launch kernel=out_kernel grid=(256,1,1) block=(256,1,1) lds=163840')
    A('.amdgcn_target "amdgcn-amd-amdhsa--gfx950"\n.text')
    k2(A, o)
    gen_k3.k3(A, opts=dict(o.get('k3', {}), **(dict(stamp=1) if o.get('stamp') else {})))
    A.label('L_code_end')
    A('.section .rodata,"a"\n.p2align 6')
    A('.amdhsa_kernel attn_kernel\n.amdhsa_next_free_vgpr 512\n.amdhsa_next_free_sgpr 102\n.amdhsa_accum_offset 256')
    A('.amdhsa_group_segment_fixed_size 0\n.amdhsa_kernarg_size 104\n.amdhsa_user_sgpr_count 2\n.amdhsa_user_sgpr_kernarg_segment_ptr 1\n.amdhsa_system_sgpr_workgroup_id_x 1\n.end_amdhsa_kernel')
    A('.p2align 6')
    gen_k3.k3_desc(A)
    A.lines, n = fix(A.lines)
    p = check(A.lines)
    print(len(A.lines), 'lines; nops', n, 'hazards', p[:8])
    return A.text()


if __name__ == '__main__':
    best = dict(stmod=' sc1', k3={}, pmode=1)
    variants = {'best': best, 'nopf': dict(best, nopf=1), 'nocpf': dict(best, nocpf=1), 'p0': dict(best, pmode=0)}
    for n, o in variants.items():
        open(f'all_{n}_stamp.s', 'w').write(build(dict(o, stamp=1)))
    t = build(best)
    open('all.s', 'w').write(t)
    open('recurrent_scan__mha_block_cached__mixer_channel_mlp__prompt.s', 'w').write(t)
```

```python
import re

TRANS = ('v_exp_f32', 'v_log_f32', 'v_rcp_f32', 'v_rsq_f32', 'v_sqrt_f32', 'v_sin_f32', 'v_cos_f32')


class Asm:
    def __init__(self):
        self.lines = []

    def __call__(self, s):
        for l in s.strip('\n').split('\n'):
            l = l.strip()
            if l:
                self.lines.append(l)

    def label(self, name):
        self.lines.append(name + ':')

    def text(self):
        out = []
        for l in self.lines:
            if l.endswith(':') or l.startswith('.') or l.startswith(';'):
                out.append(l)
            else:
                out.append('    ' + l)
        return '\n'.join(out) + '\n'


def v(i, n=1):
    return f'v{i}' if n == 1 else f'v[{i}:{i + n - 1}]'


def a(i, n=1):
    return f'a{i}' if n == 1 else f'a[{i}:{i + n - 1}]'


def s(i, n=1):
    return f's{i}' if n == 1 else f's[{i}:{i + n - 1}]'


_REG = re.compile(r'^(-|abs\()?([vas])(?:(\d+)|\[(\d+):(\d+)\])\)?$')


def regs(tok):
    tok = tok.strip()
    if tok in ('vcc', 'vcc_lo', 'vcc_hi'):
        return {'vcc'}
    if tok in ('m0', 'exec', 'scc'):
        return {tok}
    m = _REG.match(tok)
    if not m:
        return set()
    k = m.group(2)
    if m.group(3) is not None:
        return {k + m.group(3)}
    return {k + str(i) for i in range(int(m.group(4)), int(m.group(5)) + 1)}


class Ins:
    def __init__(self, text):
        self.text = text
        t = text.split(';')[0].strip()
        p = t.split(None, 1)
        self.op = p[0]
        rest = p[1] if len(p) > 1 else ''
        ops = []
        for tok in re.split(r',\s+', rest):
            ops.append(tok.strip())
        if ops:
            last = ops[-1].split()
            self.mods = last[1:] if last else []
            ops[-1] = last[0] if last else ''
        else:
            self.mods = []
        self.ops = ops
        op = self.op
        R = [regs(o) for o in ops]
        self.w = set(); self.r = set(); self.c = set(); self.ab = set()
        self.kind = 'other'; self.ws = 1; self.passes = 0
        allr = set().union(*R) if R else set()
        if op == 's_nop':
            self.kind = 'nop'; self.ws = int(ops[0], 0) + 1
        elif op.startswith('v_mfma'):
            self.kind = 'mfma'; self.w = R[0]; self.ab = R[1] | R[2]; self.c = R[3]; self.r = self.ab | self.c
            self.passes = 8 if '32x32x16' in op else 4
        elif op.startswith('v_cmp'):
            self.kind = 'valu'; self.w = R[0]; self.r = set().union(*R[1:])
            if op.startswith('v_cmpx'):
                self.w = self.w | {'exec'}
        elif op.startswith('v_readfirstlane') or op.startswith('v_readlane'):
            self.kind = 'readlane'; self.w = R[0]; self.r = set().union(*R[1:])
        elif op.startswith('v_permlane'):
            self.kind = 'permlane'; self.w = R[0] | R[1]; self.r = R[0] | R[1]
        elif op.startswith('v_'):
            self.kind = 'trans' if op.replace('_e32', '').replace('_e64', '') in TRANS else 'valu'
            if '_co_' in op:
                self.w = R[0] | R[1]; self.r = set().union(*R[2:])
            else:
                self.w = R[0]; self.r = set().union(*R[1:]) if len(R) > 1 else set()
            if op.startswith('v_fmac') or op.startswith('v_dot2c') or op.startswith('v_writelane'):
                self.r |= R[0]
            if op.startswith('v_cndmask') and len(R) == 3:
                self.r |= {'vcc'}
            self.dpp = any(m.startswith(('row_', 'quad_perm', 'wave_')) for m in self.mods) or '_dpp' in op
            if self.dpp:
                self.kind = 'dpp'
        elif op.startswith('ds_read') or op.startswith('ds_bpermute') or op.startswith('ds_swizzle'):
            self.kind = 'dsr'; self.w = R[0]; self.r = set().union(*R[1:])
        elif op.startswith('ds_'):
            self.kind = 'dsw'; self.r = allr
        elif op.startswith('buffer_load') or op.startswith('global_load'):
            if 'lds' in self.mods or '_lds_' in op:
                self.kind = 'dma'; self.r = allr | {'m0'}
            else:
                self.kind = 'vld'; self.w = R[0]; self.r = set().union(*R[1:])
        elif op.startswith('buffer_store') or op.startswith('global_store') or 'atomic' in op:
            self.kind = 'vst'; self.r = allr
            self.wide = op.endswith('x4') or op.endswith('x3')
            self.data = R[0] if op.startswith('buffer') else R[1]
            if 'atomic' in op and 'sc0' in self.mods:
                self.w = R[0]
        elif op.startswith('s_load') or op.startswith('s_memtime') or op.startswith('s_memrealtime'):
            self.kind = 'smem'; self.w = R[0]; self.r = set().union(*R[1:]) if len(R) > 1 else set()
        elif op.startswith(('s_cbranch', 's_branch')):
            self.kind = 'branch'
        elif op.startswith(('s_waitcnt', 's_barrier', 's_setprio', 's_endpgm', 's_sleep', 'buffer_wbl2', 'buffer_inv')):
            self.kind = 'other'
        elif op.startswith('s_cmp'):
            self.kind = 'salu'; self.r = allr
        elif op.startswith('s_'):
            self.kind = 'salu'; self.w = R[0]; self.r = set().union(*R[1:]) if len(R) > 1 else set()
            if 'saveexec' in op:
                self.w |= {'exec'}


VALU_KINDS = ('valu', 'trans', 'dpp', 'permlane', 'readlane')
VMEM_KINDS = ('vld', 'vst', 'dma')


def _vregs(x):
    return {r for r in x if r[0] in 'va' and r not in ('vcc',)}


def _sregs(x):
    return {r for r in x if r == 'vcc' or (r[0] == 's' and r != 'scc')}


def need(p, c):
    n = 0
    pv = p.kind in VALU_KINDS
    cv = c.kind in VALU_KINDS
    if p.kind == 'mfma':
        big = {8: 12, 4: 8}[p.passes]
        if c.kind == 'mfma':
            if p.w & c.ab:
                n = max(n, big)
            if p.w & c.c and not (p.w == c.c and p.passes == c.passes):
                n = max(n, big - 2)
            if p.w & c.w and not (p.w == c.c and p.passes == c.passes) and not (p.w & c.c):
                n = max(n, 0)
        elif cv or c.kind in VMEM_KINDS or c.kind in ('dsr', 'dsw'):
            if p.w & (c.r | c.w):
                n = max(n, big)
        if cv and (p.c & c.w):
            n = max(n, {8: 7, 4: 3}[p.passes])
    if pv:
        wv = _vregs(p.w); wsr = _sregs(p.w)
        if c.kind == 'mfma' and wv & c.r:
            n = max(n, 2)
        if p.kind == 'trans' and cv and c.kind != 'trans' and wv & c.r:
            n = max(n, 1)
        if c.kind in ('permlane', 'dpp') and wv & c.r:
            n = max(n, 2)
        if c.kind == 'readlane' and wv & c.r:
            n = max(n, 1)
        if c.kind in VMEM_KINDS and wsr & c.r:
            n = max(n, 5)
        if cv and wsr & c.r:
            n = max(n, 4 if c.kind == 'readlane' else 2)
        if 'exec' in p.w:
            if c.kind == 'mfma' or c.kind in ('readlane', 'permlane'):
                n = max(n, 4)
            if c.kind == 'dpp':
                n = max(n, 5)
    if p.kind == 'salu' and 'm0' in p.w and c.kind == 'dma':
        n = max(n, 1)
    if p.kind == 'vst' and getattr(p, 'wide', False) and (p.data & c.w):
        n = max(n, 2 if cv else 1)
    return n


def check(lines, window=24):
    ins = []; labels = {}
    for l in lines:
        t = l.split(';')[0].strip()
        if not t or t.startswith('.'):
            continue
        if t.endswith(':'):
            labels[t[:-1]] = len(ins)
            continue
        ins.append(Ins(t))
    probs = []

    def scan(seq, first_consumer):
        for j in range(first_consumer, len(seq)):
            c = seq[j]; d = 0
            for i in range(j - 1, max(-1, j - window), -1):
                p = seq[i]
                n = need(p, c)
                if n > d:
                    probs.append(f'need {n} have {d}: [{p.text}] -> [{c.text}]')
                d += p.ws
                if d >= 20:
                    break

    seq = []
    for x in ins:
        seq.append(x)
        if x.op in ('s_branch', 's_endpgm'):
            scan(seq, 0); seq = []
    scan(seq, 0)
    for k, x in enumerate(ins):
        if x.kind == 'branch':
            tgt = labels[x.ops[0]]
            pre = ins[max(0, k - window):k + 1]
            post = []
            for y in ins[tgt:tgt + window]:
                post.append(y)
                if y.op in ('s_branch', 's_endpgm'):
                    break
            scan(pre + post, len(pre))
    return sorted(set(probs))


def fix(lines, window=24):
    out = []; hist = []; added = 0
    for l in lines:
        t = l.split(';')[0].strip()
        if not t or t.startswith('.') or t.endswith(':'):
            out.append(l)
            continue
        c = Ins(t)
        d = 0; deficit = 0
        for p in reversed(hist[-window:]):
            n = need(p, c)
            deficit = max(deficit, n - d)
            d += p.ws
            if d >= 20:
                break
        if deficit > 0:
            nop = f's_nop {deficit - 1}'
            out.append(nop); hist.append(Ins(nop)); added += 1
        out.append(l); hist.append(c)
        if c.op in ('s_branch', 's_endpgm'):
            hist = []
    return out, added


def stamp_begin(A, sb=90):
    A(f's_memrealtime s[{sb}:{sb+1}]')
    A(f's_memtime s[{sb+2}:{sb+3}]')


def stamp_end(A, idx, vt, sb=90):
    A('s_waitcnt vmcnt(0)')
    A(f's_memrealtime s[{sb+4}:{sb+5}]')
    A(f's_memtime s[{sb+6}:{sb+7}]')
    A('s_load_dwordx2 s[80:81], s[0:1], 96')
    A('s_waitcnt lgkmcnt(0)')
    A('s_mov_b32 s82, 0x4000000\ns_mov_b32 s83, 0x20000')
    A(f's_sub_u32 s{sb+6}, s{sb+6}, s{sb+2}')
    A(f'v_lshrrev_b32 v{vt+4}, 6, v0')
    A(f'v_lshlrev_b32 v{vt+4}, 4, v{vt+4}')
    A(f's_lshl_b32 s84, s2, 6\ns_add_u32 s84, s84, {(48 << 20) + idx * 65536}')
    A(f'v_mov_b32 v{vt}, s{sb}\nv_mov_b32 v{vt+1}, s{sb+4}\nv_mov_b32 v{vt+2}, s{sb+6}\nv_mov_b32 v{vt+3}, 0')
    A(f'buffer_store_dwordx4 v[{vt}:{vt+3}], v{vt+4}, s[80:83], s84 offen')


def pk(op, dst, srcs):
    ops = []; lo = []; hi = []
    for x in srcs:
        if isinstance(x, tuple):
            kind, r = x[0], x[1]
            pre = 's' if kind == 'bs' else 'v'
            ops.append(f'{pre}[{r & ~1}:{(r & ~1) + 1}]'); lo.append(r & 1); hi.append(r & 1)
        elif isinstance(x, str):
            ops.append(x); lo.append(0); hi.append(0)
        else:
            assert x % 2 == 0
            ops.append(f'v[{x}:{x + 1}]'); lo.append(0); hi.append(1)
    assert dst % 2 == 0
    f = lambda l: '[' + ','.join(map(str, l)) + ']'
    return f'v_pk_{op}_f32 v[{dst}:{dst + 1}], ' + ', '.join(ops) + f' op_sel:{f(lo)} op_sel_hi:{f(hi)}'
```

```python
from asmlib import Asm, v, a, s, pk

WS_O = 0
WS_H = 16 << 20
WS_Q = 32 << 20

SA, SB = 0, 32
NEGM = 64
ADK = 80
ADV = 84
VOK = 92
VOV = 96
LS = 98
LANE = 102
ONES = 103
LS2 = 120
T0 = 104
OACC = 128
QF = 0
KF = 64
VF = 128
SRD_K, SRD_V, SRD_WS = 4, 8, 12
SW, SHEAD, SQB, SOFF, SM0, SCNT = 20, 21, 22, 23, 24, 25
SFLIP = 65
STHR, SARM = 27, 78
MFMA = 'v_mfma_f32_16x16x32_bf16'
NG = 128


def stile(half, ql, kt):
    return (SA if half == 0 else SB) + 8 * (2 * ql + (kt >> 1)) + 4 * (kt & 1)


def period(A, j, first=False, tail=False, opts=None, vmn=8, dma_k=True, dma_v=True, extra=(), k_next=True):
    o = opts or {}
    slot = j & 3
    gaps = [[] for _ in range(NG)]
    mf = [None] * NG
    needs = [None] * NG
    for half, g0 in ((0, 0), (1, 64)):
        if first or tail:
            continue
        for kt in range(4):
            for ql in range(2):
                qt = 2 * half + ql
                for ks in range(4):
                    g = g0 + 8 * kt + 4 * ql + ks
                    S = stile(half, ql, kt)
                    mf[g] = f'{MFMA} {v(S,4)}, {a(KF+4*(4*kt+ks),4)}, {a(QF+4*(4*qt+ks),4)}, {v(NEGM+4*qt,4) if ks == 0 else v(S,4)}'
                    if half == 0:
                        needs[g] = ('K', 4 * kt + ks)
    for half, g0 in ((1, 32), (0, 96)):
        if (half == 1 and first) or (half == 0 and tail):
            continue
        for dt in range(8):
            for ql in range(2):
                qt = 2 * half + ql
                for kp in range(2):
                    g = g0 + 4 * dt + 2 * ql + kp
                    O = OACC + 4 * (8 * qt + dt)
                    mf[g] = f'{MFMA} {v(O,4)}, {a(VF+4*(2*dt+kp),4)}, {v(stile(half, ql, 2*kp),4)}, {v(O,4)}'
                    if half == 0:
                        needs[g] = ('V', 2 * dt + kp)
    e0 = o.get('e0', 12)

    def sm(half, g0, lo, hi):
        order = [(kt, ql) for kt in range(4) for ql in range(2)]
        for n, (kt, ql) in enumerate(order):
            S = stile(half, ql, kt); lr = LS + 2 * half + ql
            for r in range(4):
                ge = g0 + 8 * n + 2 * r
                if lo <= ge < hi:
                    gaps[ge % NG].append((0, f'v_exp_f32 {v(S+r)}, {v(S+r)}'))
                summ = o.get('sum', 'add')
                if summ == 'add' and lo <= ge + 1 < hi:
                    gaps[(ge + 1) % NG].append((1, f'v_add_f32 {v(lr)}, {v(lr)}, {v(S+r)}'))
                if summ == 'pk' and r & 1 and lo <= ge + 1 < hi:
                    l2 = LS2 + 2 * (2 * half + ql)
                    gaps[(ge + 1) % NG].append((1, f'v_pk_add_f32 {v(l2,2)}, {v(l2,2)}, {v(S+r-1,2)}'))
                if summ == 'dot' and r & 1 and lo <= ge + 5 < hi:
                    dst = S - 4 * (kt & 1) + 2 * (kt & 1) + (r >> 1)
                    gaps[(ge + 5) % NG].append((1, f'v_dot2c_f32_bf16 {v(lr)}, {v(dst)}, {v(ONES)}'))
                if r & 1 and lo <= ge + 3 < hi:
                    dst = S - 4 * (kt & 1) + 2 * (kt & 1) + (r >> 1)
                    gaps[(ge + 3) % NG].append((2, f'v_cvt_pk_bf16_f32 {v(dst)}, {v(S+r-1)}, {v(S+r)}'))
    if not o.get('no_sm'):
        if not tail:
            sm(0, e0, 0, NG)
            sm(1, 64 + e0, 0, NG)
        if not first:
            sm(1, 64 + e0, NG, 2 * NG)
    reads = []; prev = []
    if not tail and not o.get('no_lds'):
        for n in range(32):
            f, jh = n >> 1, n & 1
            dt, kp = f >> 1, f & 1
            off = slot * 16384 + (32 * kp + 16 * jh) * 256
            reads.append((o.get('vpos', lambda n: 36 + 2 * n)(n), ('V', f), f'ds_read_b64_tr_b16 {a(VF+4*f+2*jh,2)}, {v(ADV+dt)} offset:{off}'))
        for n in range(16):
            kt, ks = n >> 2, n & 3
            g = o.get('kpos', lambda n: 75 + 2 * n + 2 * (n >> 2) * 2 if n < 16 else 0)(n)
            if g >= NG:
                if first:
                    continue
                off = ((j - 1) & 3) * 16384 + kt * 4096
                reads.append((g - NG, ('Kl', n), f'ds_read_b128 {a(KF+4*n,4)}, {v(ADK+ks)} offset:{off}'))
                for gg in range(NG):
                    if needs[gg] == ('K', n):
                        needs[gg] = ('Kl', n)
            else:
                off = slot * 16384 + kt * 4096
                reads.append((g, ('K', n), f'ds_read_b128 {a(KF+4*n,4)}, {v(ADK+ks)} offset:{off}'))
        if o.get('no_k'):
            reads = [r for r in reads if r[1][0] != 'K']
            needs = [n if n and n[0] != 'K' else None for n in needs]
        if o.get('no_v'):
            reads = [r for r in reads if r[1][0] != 'V']
            needs = [n if n and n[0] != 'V' else None for n in needs]
        prev = sorted(reads, key=lambda r: r[0])
        if not k_next:
            reads = [r for r in reads if r[1][0] != 'K']
        for g, tag, txt in reads:
            gaps[g % NG].append((o.get('rprio', lambda g: -1)(g), txt))
    if not tail:
        dslot = (j + 2) & 3
        if not o.get('no_bar'):
            gaps[1].append((-2, f's_waitcnt vmcnt({vmn})' if not o.get('no_dma') else 's_nop 0'))
            gaps[2].append((-2, 's_barrier'))
        for g, txt in extra:
            gaps[g].append((-2, txt))
        if not o.get('no_dma') and dma_k:
            gaps[o.get('km', 3)].append((-2, f's_add_u32 m0, {s(SM0)}, {dslot*16384}'))
            for i in range(4):
                gaps[o.get('kd', lambda i: 5 + 3 * i)(i)].append((-2, f'buffer_load_dwordx4 {v(VOK+i)}, {s(SRD_K,4)}, {s(SOFF)} offen offset:{1024*i} lds'))
        if not o.get('no_dma') and dma_v:
            gaps[o.get('vm', 17)].append((-2, f's_add_u32 m0, {s(SM0)}, {65536+dslot*16384}'))
            for i in range(4):
                gaps[o.get('vd', lambda i: 19 + 3 * i)(i)].append((-2, f'buffer_load_dwordx4 {v(VOV+(i&1))}, {s(SRD_V,4)}, {s(SOFF)} offen offset:{1024*i} lds'))
            gaps[127].append((-2, f's_add_u32 {s(SOFF)}, {s(SOFF)}, 16384'))
    sr = sorted(reads, key=lambda r: r[0])
    order = [(g - NG, tag) for g, tag, _ in prev] + [(g, tag) for g, tag, _ in sr]
    nprev = len(prev)
    done = -1
    waits = {}
    lat = o.get('lat', 10)
    for g in range(NG):
        if needs[g] is None or not order:
            continue
        tag = needs[g]
        if tag[0] == 'K':
            cand = [i for i, (gg, tg) in enumerate(order) if tg == tag and i < nprev]
        else:
            cand = [i for i, (gg, tg) in enumerate(order) if tg == tag and i >= nprev]
        idx = max(cand)
        assert order[idx][0] < g - 2, (tag, g, order[idx])
        if idx > done:
            issued = [i for i, (gg, tg) in enumerate(order) if gg < g]
            old = [i for i, (gg, tg) in enumerate(order) if gg <= g - lat]
            cover = max(idx, max(old))
            n = max(issued) - cover
            assert n <= 15
            waits[g] = n
            done = cover
    last = 64 if tail else NG
    for g in range(last):
        if g == 0 and g in waits:
            A(f's_waitcnt lgkmcnt({waits[g]})')
        if mf[g] and not o.get('no_mfma'):
            A(mf[g])
        items = sorted(gaps[g], key=lambda x: x[0])
        if (g + 1) in waits:
            k = len([1 for pr, _ in items if pr < 0])
            items.insert(k, (0, f's_waitcnt lgkmcnt({waits[g+1]})'))
        for _, txt in items:
            A(txt)


def lane_setup(A, rot=False):
    L = LANE; t1 = T0; t2 = T0 + 1; t3 = T0 + 2; r = T0 + 4; base = T0 + 5; x = T0 + 6
    if not rot:
        A(f'v_and_b32 {v(L)}, 63, v0')
    A(f'v_lshrrev_b32 {v(t1)}, 4, {v(L)}')
    A(f'v_and_b32 {v(t2)}, 15, {v(L)}')
    for i in range(4):
        A(f'v_add_u32 {v(t3)}, {4*i}, {v(t1)}')
        A(f'v_xor_b32 {v(t3)}, {v(t3)}, {v(t2)}')
        A(f'v_lshlrev_b32 {v(t3)}, 4, {v(t3)}')
        A(f'v_lshl_add_u32 {v(VOK+i)}, {v(t1)}, 8, {v(t3)}')
        if rot:
            A(f's_xor_b32 s29, {s(SW)}, {i}')
            A('s_lshl_b32 s29, s29, 2')
            A(f'v_add_u32 {v(t3)}, s29, {v(t1)}')
            A(f'v_xor_b32 {v(t3)}, {v(t3)}, {v(t2)}')
            A(f'v_lshlrev_b32 {v(t3)}, 4, {v(t3)}')
        A(f'v_lshl_add_u32 {v(ADK+i)}, {v(t2)}, 8, {v(t3)}')
    for i in range(2):
        A(f'v_add_u32 {v(t3)}, {4*i}, {v(t1)}')
        A(f'v_lshlrev_b32 {v(t3)}, 1, {v(t3)}')
        A(f'v_xor_b32 {v(t3)}, {v(t3)}, {v(t2)}')
        A(f'v_lshlrev_b32 {v(t3)}, 4, {v(t3)}')
        A(f'v_lshl_add_u32 {v(VOV+i)}, {v(t1)}, 8, {v(t3)}')
    A(f'v_lshrrev_b32 {v(r)}, 2, {v(L)}')
    A(f'v_and_b32 {v(t3)}, 3, {v(L)}')
    A(f'v_lshlrev_b32 {v(t3)}, 3, {v(t3)}')
    A(f'v_lshl_add_u32 {v(base)}, {v(r)}, 8, {v(t3)}')
    A(f'v_add_u32 {v(base)}, 0x10000, {v(base)}')
    A(f'v_and_b32 {v(x)}, 7, {v(r)}')
    for dt in range(8):
        A(f'v_xor_b32 {v(t3)}, {dt}, {v(x)}')
        A(f'v_lshl_add_u32 {v(ADV+dt)}, {v(t3)}, 5, {v(base)}')


def kv_dma(A, which, slot, soff, srd=None):
    if which == 'K':
        A(f's_add_u32 m0, {s(SM0)}, {slot*16384}')
        A('s_nop 0')
        for i in range(4):
            A(f'buffer_load_dwordx4 {v(VOK+i)}, {s(srd or SRD_K,4)}, {s(soff)} offen offset:{1024*i} lds')
    else:
        A(f's_add_u32 m0, {s(SM0)}, {65536+slot*16384}')
        A('s_nop 0')
        for i in range(4):
            A(f'buffer_load_dwordx4 {v(VOV+(i&1))}, {s(SRD_V,4)}, {s(soff)} offen offset:{1024*i} lds')


def xlane(A, op, reg, tmp):
    for sw in ('v_permlane32_swap_b32', 'v_permlane16_swap_b32'):
        A(f'v_mov_b32 {v(tmp)}, {v(reg)}')
        A('s_nop 1')
        A(f'{sw} {v(reg)}, {v(tmp)}')
        A(f'{op} {v(reg)}, {v(reg)}, {v(tmp)}')


def attn_start(A, k0=3*16384):
    for i in range(4):
        A(f'v_add_u32 {v(T0+16+i)}, {k0}, {v(ADK+i)}')
    for n in range(16):
        A(f'ds_read_b128 {a(KF+4*n,4)}, {v(T0+16+(n&3))} offset:{(n>>2)*4096}')
    for i in range(4):
        A(f'v_mov_b32 {v(LS+i)}, 0')
    zero = [f'v_mov_b32 {v(OACC+i)}, 0' for i in range(128)]
    for _ in range(24):
        A(zero.pop())

    def finish(qt):
        B = Asm()
        S = stile(qt >> 1, qt & 1, 0); m = T0 + 2 * qt
        B(f'v_max3_f32 {v(m)}, {v(S)}, {v(S+1)}, {v(S+2)}')
        for i in range(3, 15, 2):
            B(f'v_max3_f32 {v(m)}, {v(m)}, {v(S+i)}, {v(S+i+1)}')
        B(f'v_max_f32 {v(m)}, {v(m)}, {v(S+15)}')
        xlane(B, 'v_max_f32', m, m + 1)
        for i in range(4):
            B(f'v_sub_f32 {v(NEGM+4*qt+i)}, 0, {v(m)}')
        return [l for l in B.lines if not l.startswith('s_nop')]
    work = []
    for qt in range(4):
        for kt in range(4):
            S = stile(qt >> 1, qt & 1, kt)
            for ks in range(4):
                if qt == 0 and ks == 0:
                    A(f's_waitcnt lgkmcnt({12 - 4 * kt})')
                A(f'{MFMA} {v(S,4)}, {a(KF+4*(4*kt+ks),4)}, {a(QF+4*(4*qt+ks),4)}, {0 if ks == 0 else v(S,4)}')
                if kt == 1 and ks == 0 and qt > 0:
                    work += finish(qt - 1)
                if work:
                    A(work.pop(0))
                    if zero:
                        A(zero.pop())
                else:
                    for _ in range(2):
                        if zero:
                            A(zero.pop())
    for l in work + zero + finish(3):
        A(l)
    for qt in range(4):
        S = stile(qt >> 1, qt & 1, 0)
        for i in range(0, 16, 2):
            A(pk('add', S + i, [S + i, ('b', NEGM + 4 * qt)]))


def attn_loop(A, opts=None, pf=()):
    period(A, 0, first=True, opts=opts, vmn=opts.get('first_vm', 8), extra=opts.get('x0', ()))
    A(f's_mov_b32 {s(SCNT)}, 7')
    A.label('L_attn_loop')
    for j in range(1, 5):
        period(A, j, opts=opts, extra=opts.get('sig2', ()) if j == 2 else ())
    A(f's_sub_u32 {s(SCNT)}, {s(SCNT)}, 1')
    A(f's_cmp_lg_u32 {s(SCNT)}, 0')
    A('s_cbranch_scc1 L_attn_loop')
    early = [5, 9, 23, 27, 31, 35, 37, 33]
    late = [49 + 8 * i for i in range(8)]
    n0 = min(len(pf), 6); n1 = min(len(pf) - n0, 8)
    p0 = list(zip([41, 57, 73, 89, 121, 125], pf[:n0]))
    p1 = list(zip(sorted(early), pf[n0:n0 + n1]))
    p2 = list(zip(sorted(early) + late, pf[n0 + n1:]))
    nv = lambda l: sum(1 for _, x in l if x.startswith('buffer'))
    period(A, 29, opts=opts, dma_k=False, extra=p0)
    period(A, 30, opts=opts, dma_k=False, dma_v=False, extra=p1, vmn=4 + nv(p0))
    period(A, 31, opts=opts, dma_k=False, dma_v=False, extra=p2, vmn=nv(p0) + nv(p1), k_next=False)
    period(A, 32, tail=True, opts=opts)


def attn_store(A, opts=None):
    lo = T0 + 8
    A.label('L_attn_finish')
    A(f'v_lshlrev_b32 {v(lo)}, 4, {v(LANE)}')
    for qt in range(4):
        xlane(A, 'v_add_f32', LS + qt, T0)
    for qt in range(4):
        A(f'v_cmp_ngt_f32 s[{32+2*qt}:{33+2*qt}], {s(STHR)}, {v(LS+qt)}')
        A(f'v_rcp_f32 {v(T0+4+qt)}, {v(LS+qt)}')
    A('s_or_b64 s[32:33], s[32:33], s[34:35]')
    A('s_or_b64 s[36:37], s[36:37], s[38:39]')
    A('s_or_b64 s[32:33], s[32:33], s[36:37]')
    A(f's_and_b64 s[32:33], s[32:33], {s(SARM,2)}')
    A('s_cbranch_scc1 L_attn_exact')
    if (opts or {}).get('pre_finish'):
        A('s_barrier')
        opts['pre_finish'](A)
    A(f's_lshl_b32 s30, {s(SQB)}, 4')
    A(f's_lshl_b32 s31, {s(SW)}, 2')
    A('s_add_u32 s30, s30, s31')
    A('s_lshl_b32 s30, s30, 10')
    A(f's_lshl_b32 s31, {s(SHEAD)}, 19')
    A('s_add_u32 s30, s30, s31')
    A(f's_lshl_b32 s31, {s(SFLIP)}, 6')
    A('s_add_u32 s30, s30, s31')
    A('s_xor_b32 s31, s30, 2048')
    n = 0
    for k in range(4):
        for qt in range(4):
            b = OACC + (qt * 8 + 2 * k) * 4
            d = SA + 4 * (n % 4); n += 1
            for i in range(0, 8, 2):
                A(pk('mul', b + i, [b + i, ('b', T0 + 4 + qt)]))
            for i in range(4):
                A(f'v_cvt_pk_bf16_f32 {v(d+i)}, {v(b+2*i)}, {v(b+2*i+1)}')
            A(f'buffer_store_dwordx4 {v(d,4)}, {v(lo)}, {s(SRD_WS,4)}, s{30+(qt>>1)} offen offset:{(qt&1)*1024}{(opts or {}).get("stmod", "")}')
        if k < 3:
            A('s_add_u32 s30, s30, 0x20000')
            A('s_add_u32 s31, s31, 0x20000')


def attn_exact(A, srd_kfull):
    KO = T0 + 9; M = T0 + 12; AV = SA + 0
    A.label('L_attn_exact')
    A(f's_mov_b64 {s(SARM,2)}, 0')
    A('s_waitcnt vmcnt(0)')
    A(f'v_and_b32 {v(KO)}, 15, {v(LANE)}')
    A(f'v_lshrrev_b32 {v(T0)}, 4, {v(LANE)}')
    A(f'v_lshlrev_b32 {v(T0)}, 4, {v(T0)}')
    A(f'v_lshl_add_u32 {v(KO)}, {v(KO)}, 8, {v(T0)}')
    for ks in range(4):
        A(f's_xor_b32 s{32+ks}, {s(SW)}, {ks}')
        A(f's_lshl_b32 s{32+ks}, s{32+ks}, 6')
    A(f's_and_b32 s36, {s(SW)}, 1')
    A('s_lshl_b32 s36, s36, 14')
    A(f's_lshr_b32 s37, {s(SW)}, 1')
    A('s_lshl_b32 s37, s37, 16')
    A('s_add_u32 s36, s36, s37')
    A('s_sub_u32 s37, s36, 0x10000')
    for dt in range(8):
        A(f'v_add_u32 {v(ADV+dt)}, s37, {v(ADV+dt)}')
    for i in range(4):
        A(f'v_mov_b32 {v(M+i)}, 0xff800000')
        A(f'v_mov_b32 {v(LS+i)}, 0')
    for i in range(16):
        A(f'v_mov_b32 {v(NEGM+i)}, 0')
    for i in range(128):
        A(f'v_mov_b32 {v(OACC+i)}, 0')
    A('s_mov_b32 s38, 0')
    A.label('L_ex_sweep')
    A('s_mov_b32 s39, 0')
    A.label('L_ex_tile')
    for kt in range(4):
        for ks in range(4):
            A(f's_add_u32 s31, s39, s{32+ks}')
            A(f's_add_u32 s31, s31, {4096*kt}')
            A(f'buffer_load_dwordx4 {a(KF+4*(4*kt+ks),4)}, {v(KO)}, {s(srd_kfull,4)}, s31 offen')
    A('s_cmp_eq_u32 s38, 0')
    A('s_cbranch_scc1 L_ex_nov')
    for grp in range(4):
        A(f's_add_u32 m0, s36, {4096*grp}')
        A(f's_add_u32 s31, s39, {4096*grp}')
        for i in range(4):
            A(f'buffer_load_dwordx4 {v(VOV+(i&1))}, {s(SRD_V,4)}, s31 offen offset:{1024*i} lds')
    A.label('L_ex_nov')
    A('s_waitcnt vmcnt(0)')
    for qt in range(4):
        for kt in range(4):
            S = stile(qt >> 1, qt & 1, kt)
            for ks in range(4):
                A(f'{MFMA} {v(S,4)}, {a(KF+4*(4*kt+ks),4)}, {a(QF+4*(4*qt+ks),4)}, {v(NEGM+4*qt,4) if ks == 0 else v(S,4)}')
    A('s_cmp_eq_u32 s38, 0')
    A('s_cbranch_scc0 L_ex_pv')
    A('s_nop 7')
    for qt in range(4):
        S = stile(qt >> 1, qt & 1, 0)
        for i in range(0, 16, 2):
            A(f'v_max3_f32 {v(M+qt)}, {v(M+qt)}, {v(S+i)}, {v(S+i+1)}')
    A('s_branch L_ex_next')
    A.label('L_ex_pv')
    for n in range(32):
        f, jh = n >> 1, n & 1
        A(f'ds_read_b64_tr_b16 {a(VF+4*f+2*jh,2)}, {v(ADV+(f>>1))} offset:{(32*(f&1)+16*jh)*256}')
    for i in range(64):
        A(f'v_exp_f32 {v(SA+i)}, {v(SA+i)}')
    for i in range(64):
        A(f'v_add_f32 {v(LS+(i>>4))}, {v(LS+(i>>4))}, {v(SA+i)}')
    for i in range(32):
        A(f'v_cvt_pk_bf16_f32 {v(SA+8*(i>>2)+(i&3))}, {v(SA+2*i)}, {v(SA+2*i+1)}')
    A('s_waitcnt lgkmcnt(0)')
    for qt in range(4):
        for dt in range(8):
            for kp in range(2):
                O = OACC + 4 * (8 * qt + dt)
                A(f'{MFMA} {v(O,4)}, {a(VF+4*(2*dt+kp),4)}, {v(stile(qt >> 1, qt & 1, 2*kp),4)}, {v(O,4)}')
    A.label('L_ex_next')
    A('s_add_u32 s39, s39, 16384')
    A('s_cmp_lt_u32 s39, 0x80000')
    A('s_cbranch_scc1 L_ex_tile')
    A('s_cmp_eq_u32 s38, 0')
    A('s_cbranch_scc0 L_ex_done')
    for qt in range(4):
        xlane(A, 'v_max_f32', M + qt, T0)
        for i in range(4):
            A(f'v_sub_f32 {v(NEGM+4*qt+i)}, 0, {v(M+qt)}')
    A('s_mov_b32 s38, 1')
    A('s_branch L_ex_sweep')
    A.label('L_ex_done')
    A('s_nop 7')
    A('s_branch L_attn_finish')
```

```python
from asmlib import Asm, v, a, s, pk
from gen_attn16 import *

X_RING = 0
W_RING = 65536
K0_LDS = 139264
CS_LDS = 155648
VXO = 0
VWQ = 8
VW1 = 12
RX = 14
RWQ = 16
RW1 = 20
B1R = 24
CSR = 32
PT = 64
XB = 0
AR = 64
ONESA = 96
HB, HE, SUM, GRAM, CSQ, CS1 = 128, 160, 176, 192, 208, 216
SRD_X, SRD_WQ, SRD_W1, SRD_K0, SRD_H, SRD_B1 = 16, 40, 44, 48, 52, 56
SXM, SXO, SWQO, SW1O, SM1, SFLIP = 60, 61, 62, 63, 64, 65
SROT, SXT, SXT2, SWQT, SW1T = 28, 74, 75, 76, 77
NPOS = 14


def p1_lane_setup(A, exp=None):
    L = LANE; t1, t2, t3, t4 = PT, PT + 1, PT + 2, PT + 3
    A(f'v_lshrrev_b32 {v(t1)}, 3, {v(L)}')
    A(f'v_lshrrev_b32 {v(t2)}, 4, {v(L)}')
    A(f'v_and_b32 {v(t3)}, 7, {v(L)}')
    for i in range(2):
        A(f'v_add_u32 {v(t4)}, {4*i}, {v(t2)}')
        A(f'v_xor_b32 {v(t4)}, {v(t4)}, {v(t3)}')
        A(f'v_lshlrev_b32 {v(t4)}, 4, {v(t4)}')
        A(f'v_lshl_add_u32 {v(VXO+i)}, {v(t1)}, 10, {v(t4)}')
    A(f'v_add_u32 {v(VXO+1)}, 7168, {v(VXO+1)}')
    for i in range(2):
        A(f'v_add_u32 {v(VXO+2+i)}, 14336, {v(VXO+i)}')
    A(f'v_and_b32 {v(t3)}, 15, {v(L)}')
    A(f'v_lshlrev_b32 {v(t4)}, 2, {v(t2)}')
    A(f'v_xor_b32 {v(t4)}, {v(t4)}, {v(t3)}')
    A(f'v_lshlrev_b32 {v(t4)}, 4, {v(t4)}')
    A(f'v_lshl_add_u32 {v(VWQ)}, {v(t2)}, 13, {v(t4)}')
    for i in range(1, 4):
        A(f'v_add_u32 {v(VWQ+i)}, {4*i*8192 - 1024*i}, {v(VWQ)}')
    A(f's_lshl_b32 s30, {s(SHEAD)}, 6')
    A(f's_lshr_b32 s31, {s(SHEAD)}, 1')
    A('s_add_u32 s31, s31, 32')
    A('s_lshl_b32 s31, s31, 6')
    A('s_movk_i32 s29, 2752')
    if exp == 'adj':
        A('s_lshl_b32 s30, s30, 1\ns_and_b32 s30, s30, 0x7ff\ns_add_u32 s31, s30, 64')
    if exp == 'same':
        A('s_mov_b32 s31, s30')
    if exp == 'al':
        A('s_lshl_b32 s30, s30, 1\ns_and_b32 s30, s30, 0x7ff\ns_add_u32 s31, s30, 64\ns_movk_i32 s29, 2688')
    A(f'v_mov_b32 {v(PT+5)}, s31')
    for i in range(2):
        A(f'v_and_b32 {v(t3)}, 7, {v(L)}')
        A(f'v_and_b32 {v(t4)}, 1, {v(t2)}')
        A(f'v_lshlrev_b32 {v(t4)}, 1, {v(t4)}')
        A(f'v_xor_b32 {v(t3)}, {v(t3)}, {v(t4)}')
        if i:
            A(f'v_xor_b32 {v(t3)}, 4, {v(t3)}')
        A(f'v_and_b32 {v(t4)}, 3, {v(t3)}')
        A(f'v_lshlrev_b32 {v(t4)}, 4, {v(t4)}')
        A(f'v_mov_b32 {v(PT+4)}, s30')
        A(f'v_cmp_gt_u32 vcc, 4, {v(t3)}')
        A(f'v_cndmask_b32 {v(PT+4)}, {v(PT+5)}, {v(PT+4)}, vcc')
        A(f'v_add_u32 {v(t4)}, {v(t4)}, {v(PT+4)}')
        A(f'v_mad_u32_u24 {v(VW1+i)}, {v(t1)}, s29, {v(t4)}')
    A(f'v_add_u32 {v(VW1+1)}, {8*2752 - 1024}, {v(VW1+1)}')


def p1_read_setup(A):
    L = LANE; t1, t2, t3, t4 = PT, PT + 1, PT + 2, PT + 3
    A(f'v_lshrrev_b32 {v(t2)}, 4, {v(L)}')
    A(f'v_and_b32 {v(t3)}, 15, {v(L)}')
    A(f'v_lshrrev_b32 {v(t4)}, 1, {v(t3)}')
    A(f'v_lshlrev_b32 {v(t3)}, 7, {v(t3)}')
    A(f'v_add_u32 {v(t3)}, {s(SXM)}, {v(t3)}')
    for kk in range(2):
        A(f'v_add_u32 {v(t1)}, {4*kk}, {v(t2)}')
        A(f'v_xor_b32 {v(t1)}, {v(t1)}, {v(t4)}')
        A(f'v_lshl_add_u32 {v(RX+kk)}, {v(t1)}, 4, {v(t3)}')
    A(f'v_bfe_u32 {v(t3)}, {v(L)}, 2, 2')
    A(f'v_lshl_add_u32 {v(t1)}, {v(t2)}, 3, {v(t3)}')
    A(f'v_and_b32 {v(PT+4)}, 1, {v(t2)}')
    A(f'v_and_b32 {v(t2)}, 3, {v(L)}')
    A(f'v_lshlrev_b32 {v(PT+5)}, 4, {v(t2)}')
    A(f'v_lshl_add_u32 {v(PT+5)}, {v(t1)}, 8, {v(PT+5)}')
    A(f'v_add_u32 {v(PT+5)}, {W_RING}, {v(PT+5)}')
    for k in range(4):
        A(f's_xor_b32 s29, {s(SW)}, {k}')
        A(f'v_xor_b32 {v(t4)}, s29, {v(t3)}')
        A(f'v_lshl_add_u32 {v(RWQ+k)}, {v(t4)}, 6, {v(PT+5)}')
    A(f'v_lshrrev_b32 {v(t3)}, 1, {v(t3)}')
    A(f'v_lshl_add_u32 {v(t3)}, {v(PT+4)}, 1, {v(t3)}')
    A(f'v_lshlrev_b32 {v(t2)}, 3, {v(t2)}')
    A(f'v_lshl_add_u32 {v(t2)}, {v(t1)}, 7, {v(t2)}')
    A(f'v_add_u32 {v(t2)}, {W_RING + 16384}, {v(t2)}')
    for u in range(4):
        A(f'v_xor_b32 {v(t4)}, {u}, {v(t3)}')
        A(f'v_lshl_add_u32 {v(RW1+u)}, {v(t4)}, 5, {v(t2)}')
    A(f'v_mov_b32 {v(t1)}, 0x3f803f80')
    for i in range(4):
        A(f'v_accvgpr_write_b32 {a(ONESA+i)}, {v(t1)}')


class VM:
    def __init__(self):
        self.ops = []

    def add(self, tag):
        self.ops.append(tag)

    def wait_for(self, tags):
        idx = max(i for i, t in enumerate(self.ops) if t in tags)
        n = len(self.ops) - 1 - idx
        n = min(n, 63)
        return n


def x_dma(c):
    out = []
    for i in range(8):
        pre = f's_add_u32 m0, {s(SXM)}, {X_RING + (c & 1)*32768 + (i >> 2)*4096}\n' if i & 3 == 0 else ''
        if i == 0:
            pre = (f's_add_u32 s78, {s(SROT)}, {c}\ns_and_b32 s78, s78, 7\ns_lshl_b32 s78, s78, 7\n'
                   f's_add_u32 {s(SXT)}, {s(SXO)}, s78\ns_xor_b32 {s(SXT2)}, {s(SXT)}, 0x8000\n') + pre
        so = SXT if i < 4 else SXT2
        out.append((pre, f'buffer_load_dwordx4 {v(VXO+(i&3))}, {s(SRD_X,4)}, {s(so)} offen offset:{1024*(i&3)} lds'))
    return out


def w_dma(c):
    sl = W_RING + (c % 3) * 24576
    out = []
    for i in range(4):
        pre = ''
        if i == 0:
            pre = (f's_add_u32 s78, {s(SROT)}, {c}\ns_and_b32 s78, s78, 7\ns_lshl_b32 s79, s78, 19\n'
                   f's_add_u32 {s(SWQT)}, {s(SWQO)}, s79\ns_mul_i32 s79, s78, {64*2752}\ns_add_u32 {s(SW1T)}, {s(SW1O)}, s79\n'
                   f's_add_u32 m0, {s(SM0)}, {sl}\n')
        out.append((pre, f'buffer_load_dwordx4 {v(VWQ+i)}, {s(SRD_WQ,4)}, {s(SWQT)} offen offset:{1024*i} lds'))
    for i in range(2):
        pre = f's_add_u32 m0, {s(SM1)}, {sl + 16384}\n' if i == 0 else ''
        out.append((pre, f'buffer_load_dwordx4 {v(VW1+i)}, {s(SRD_W1,4)}, {s(SW1T)} offen offset:{1024*i} lds'))
    return out


def kv_list(which, slot, srd=None):
    out = []
    for i in range(4):
        if which == 'K':
            pre = f's_add_u32 m0, {s(SM0)}, {slot*16384}\n' if i == 0 else ''
            out.append((pre, f'buffer_load_dwordx4 {v(VOK+i)}, {s(srd or SRD_K,4)}, {s(SOFF)} offen offset:{1024*i} lds'))
        else:
            pre = f's_add_u32 m0, {s(SM0)}, {65536+slot*16384}\n' if i == 0 else ''
            out.append((pre, f'buffer_load_dwordx4 {v(VOV+(i&1))}, {s(SRD_V,4)}, {s(SOFF)} offen offset:{1024*i} lds'))
    return out


def tile_reads(c, t):
    out = []
    for kk in range(2):
        for jh in range(2):
            dst = a(AR + 8 * (t % 4) + 4 * kk + 2 * jh, 2)
            if t < 8:
                off = (c % 3) * 24576 + (32 * kk + 4 * jh) * 256 + 8 * (t & 1)
                out.append(f'ds_read_b64_tr_b16 {dst}, {v(RWQ+(t>>1))} offset:{off}')
            else:
                off = (c % 3) * 24576 + (32 * kk + 4 * jh) * 128
                out.append(f'ds_read_b64_tr_b16 {dst}, {v(RW1+t-8)} offset:{off}')
    return out


def x_reads(c):
    out = []
    for kk in range(2):
        for qt in range(4):
            out.append(f'ds_read_b128 {a(XB+32*(c&1)+4*(4*kk+qt),4)}, {v(RX+kk)} offset:{X_RING+(c&1)*32768+qt*2048}')
    return out


def tile_mfmas(c, pos):
    xs = XB + 32 * (c & 1)
    out = []

    def mm(acc, A_, B_, kk):
        out.append(f'{MFMA} {acc}, {A_}, {B_}, {0 if (c == 0 and kk == 0) else acc}')
    xf = lambda kk, qt: a(xs + 4 * (4 * kk + qt), 4)
    ones = a(ONESA, 4)
    if pos < 12:
        wf = lambda kk: a(AR + 8 * (pos % 4) + 4 * kk, 4)
        nq = 2 if pos >= 10 else 4
        for qt in range(nq):
            if pos < 8:
                acc = v(OACC + 4 * (8 * qt + pos), 4)
            elif pos < 10:
                acc = a(HB + 4 * (4 * (pos - 8) + qt), 4)
            else:
                acc = a(HE + 4 * (2 * (pos - 10) + qt), 4)
            for kk in range(2):
                mm(acc, wf(kk), xf(kk, qt), kk)
        if pos < 2 or pos >= 8:
            acc = a(CSQ + 4 * pos, 4) if pos < 2 else a(CS1 + 4 * (pos - 8), 4)
            for kk in range(2):
                mm(acc, wf(kk), ones, kk)
    else:
        for qt in (2 * (pos - 12), 2 * (pos - 12) + 1):
            for kk in range(2):
                mm(a(SUM + 4 * qt, 4), ones, xf(kk, qt), kk)
            for kk in range(2):
                mm(a(GRAM + 4 * qt, 4), xf(kk, qt), xf(kk, qt), kk)
    return out


def phase1(A, vm, diag=False, side=(), early=0):
    lds = []
    done = [-1]

    def lds_wait(tag):
        idx = max(i for i, t in enumerate(lds) if t == tag)
        if idx > done[0]:
            n = len(lds) - 1 - idx
            A(f's_waitcnt lgkmcnt({min(n, 15)})')
            done[0] = idx

    A(f's_waitcnt vmcnt({vm.wait_for([("x", 0), ("W", 0)])})')
    if diag:
        A('s_memrealtime s[66:67]\ns_waitcnt lgkmcnt(0)\nv_writelane_b32 v63, s66, 12')
    A('s_barrier')
    if diag:
        A('s_memrealtime s[66:67]\ns_waitcnt lgkmcnt(0)\nv_writelane_b32 v63, s66, 13')
    for r in x_reads(0):
        A(r); lds.append(('x', 0))
    for t in range(2):
        for r in tile_reads(0, t):
            A(r); lds.append(('t', 0, t))
    for c in range(8):
        if diag:
            A(f's_memrealtime s[{66+2*(c&1)}:{67+2*(c&1)}]')
            if c:
                A(f'v_writelane_b32 v63, s{66+2*((c-1)&1)}, {c-1}')
        for pos in range(NPOS):
            mf = tile_mfmas(c, pos)
            fill = [[] for _ in mf]
            slot = [0]

            def put(txt, tag=None, kind=None, at=None):
                i = slot[0] if at is None else at
                fill[i].append((txt, tag, kind))
                if at is None:
                    slot[0] += 1

            def put_dma(lst, tag):
                for pre, ins in lst:
                    if pre:
                        fill[max(slot[0] - 1, 0)].append((pre.strip(), None, None))
                        slot[0] = max(slot[0], 1)
                    put(ins, tag, 'vm')
            if pos == 12:
                if c < 7:
                    put(('vmwait', [('W', c + 1)]))
                put('s_barrier')
            nxt = (c, pos + 2) if pos + 2 < 12 else ((c + 1, pos - 12) if pos >= 12 and c < 7 else None)
            if nxt:
                for r in tile_reads(*nxt):
                    put(r, ('t',) + nxt, 'lds')
            if c < 7:
                if pos == 10:
                    put(('vmwait', [('x', c + 1)]))
                if pos in (10, 11):
                    for r in x_reads(c + 1)[4 * (pos - 10):4 * (pos - 10) + 4]:
                        put(r, ('x', c + 1), 'lds')
            if c == 0:
                plan0 = {0: (x_dma(1)[:4], ('x', 1)), 1: (x_dma(1)[4:], ('x', 1)), 2: (w_dma(1)[:3], ('W', 1)), 3: (w_dma(1)[3:], ('W', 1)),
                         4: (x_dma(2)[:4], ('x', 2)), 5: (x_dma(2)[4:], ('x', 2)), 6: (w_dma(2)[:3], ('W', 2)), 7: (w_dma(2)[3:], ('W', 2))}
                if early:
                    plan0 = {k - 4: x for k, x in plan0.items() if k >= 4}
                if pos in plan0:
                    put_dma(*plan0[pos])
            elif pos in (0, 1, 2, 3) and c + 2 <= 7:
                put_dma(x_dma(c + 2)[2 * pos:2 * pos + 2], ('x', c + 2))
            if pos in (12, 13) and c + 3 <= 7:
                put_dma(w_dma(c + 3)[2 * (pos - 12) + 0:2 + 4 * (pos - 12)], ('W', c + 3))
            if c == 6 and pos == 4:
                put_dma([(f's_add_u32 m0, {s(SM0)}, {K0_LDS}\n' if i == 0 else '',
                          f'buffer_load_dwordx4 {v(VOK+i)}, {s(SRD_K0,4)}, {s(SOFF)} offen offset:{1024*i} lds') for i in range(4)], 'k0')
            if c == 7 and pos in (0, 1, 2):
                lst = [kv_list('K', 0), kv_list('V', 0), kv_list('K', 1)][pos]
                put_dma(lst, ('kv', 0 if pos < 2 else 1))
                if pos == 1:
                    fill[-1].append((f's_add_u32 {s(SOFF)}, {s(SOFF)}, 16384', None, None))
            if c == 7 and pos == 12:
                put_dma(kv_list('V', 1), ('kv', 1))
                fill[-1].append((f's_add_u32 {s(SOFF)}, {s(SOFF)}, 16384', None, None))
            if pos < 12:
                lds_wait(('t', c, pos))
            for m, fl in zip(mf, fill):
                A(m)
                if not fl and side and (c, pos) >= (0, 8):
                    for _ in range(2):
                        if side:
                            txt, tag = side.pop(0)
                            A(txt)
                            if tag:
                                vm.add(tag)
                            if tag or txt.startswith('s_add_u32 m0'):
                                break
                for txt, tag, kind in fl:
                    if isinstance(txt, tuple):
                        A(f's_waitcnt vmcnt({vm.wait_for(txt[1])})')
                        continue
                    A(txt)
                    if kind == 'lds':
                        lds.append(tag)
                    elif kind == 'vm':
                        vm.add(tag)


def p1_epilogue(A, vm, stmod=''):
    L = LANE
    lo = PT; t0 = PT + 1; t1 = PT + 2; t2 = PT + 3; t3 = PT + 4
    NMU, AQ, AH = T0, T0 + 4, T0 + 8
    A(f'v_lshlrev_b32 {v(lo)}, 4, {v(L)}')
    A(f's_lshl_b32 s29, {s(SW)}, 11')
    A(f's_add_u32 s29, s29, {CS_LDS}')
    A(f'v_add_u32 {v(t0)}, s29, {v(lo)}')
    for e in range(2):
        A(f'ds_write_b128 {v(t0)}, {a(CSQ+4*e,4)} offset:{1024*e}')
    A(f'v_and_b32 {v(t1)}, 3, {v(L)}')
    for k in range(1, 4):
        A(f'v_cmp_eq_u32 s[{66+2*k}:{67+2*k}], {k}, {v(t1)}')
    A(f'v_bfe_u32 {v(t1)}, {v(L)}, 2, 2')
    A(f'v_lshrrev_b32 {v(t2)}, 4, {v(L)}')
    A(f'v_cmp_eq_u32 s[74:75], {v(t1)}, {v(t2)}')
    A('s_mov_b32 s76, 0x3b000000')
    A('s_mov_b32 s77, 0x3727c5ac')
    A('s_mov_b32 s78, 0x3e0293ee')
    A(f's_waitcnt vmcnt({vm.wait_for(["k0"])}) lgkmcnt(0)')
    A('s_barrier')
    for k in range(4):
        A(f's_xor_b32 s29, {s(SW)}, {k}')
        A('s_lshl_b32 s29, s29, 11')
        A(f's_add_u32 s29, s29, {CS_LDS}')
        A(f'v_add_u32 {v(t0)}, s29, {v(lo)}')
        for e in range(2):
            A(f'ds_read_b128 {v(CSR+4*(2*k+e),4)}, {v(t0)} offset:{1024*e}')
    for qt in range(4):
        g = PT + 8
        for r in range(4):
            A(f'v_accvgpr_read_b32 {v(g+r)}, {a(GRAM+4*qt+r)}')
        A(f'v_accvgpr_read_b32 {v(t1)}, {a(SUM+4*qt)}')
        for k in range(1, 4):
            A(f'v_cndmask_b32 {v(g)}, {v(g)}, {v(g+k)}, s[{66+2*k}:{67+2*k}]')
        A(f'v_cndmask_b32 {v(g)}, 0, {v(g)}, s[74:75]')
        xlane(A, 'v_add_f32', g, g + 1)
        A(f'v_mul_f32 {v(t1)}, s76, {v(t1)}')
        A(f'v_mul_f32 {v(g)}, s76, {v(g)}')
        A(f'v_fma_f32 {v(g)}, -{v(t1)}, {v(t1)}, {v(g)}')
        A(f'v_max_f32 {v(g)}, 0, {v(g)}')
        A(f'v_add_f32 {v(t2)}, s77, {v(g)}')
        A(f'v_rsq_f32 {v(t2)}, {v(t2)}')
        A(f'v_sub_f32 {v(NMU+qt)}, 0, {v(t1)}')
        A(f'v_mul_f32 {v(g)}, {v(g)}, {v(t2)}')
        A(f'v_fma_f32 {v(g)}, {v(g)}, {v(t2)}, s77')
        A(f'v_rsq_f32 {v(g)}, {v(g)}')
        A(f'v_mul_f32 {v(AQ+qt)}, s78, {v(t2)}')
        A(f'v_mul_f32 {v(AH+qt)}, {v(g)}, {v(t2)}')
    A('s_waitcnt lgkmcnt(0)')
    for qt in range(4):
        for k in range(4):
            b = OACC + 4 * (8 * qt + 2 * k)
            for i in range(0, 8, 2):
                A(pk('fma', b + i, [('b', NMU + qt), CSR + 8 * k + i, b + i]))
            for i in range(0, 8, 2):
                A(pk('mul', b + i, [('b', AQ + qt), b + i]))
            for i in range(4):
                A(f'v_cvt_pk_bf16_f32 {v(b+i)}, {v(b+2*i)}, {v(b+2*i+1)}')
            for i in range(4):
                A(f'v_accvgpr_write_b32 {a(QF+4*(4*qt+k)+i)}, {v(b+i)}')
    C1 = CSR; BB = CSR + 16
    A(f's_waitcnt vmcnt({vm.wait_for(["b1"])})')
    for i in range(16):
        A(f'v_accvgpr_read_b32 {v(C1+i)}, {a(CS1+i)}')
        src = B1R + (i >> 1)
        A(f'v_and_b32 {v(BB+i)}, 0xffff0000, {v(src)}' if i & 1 else f'v_lshlrev_b32 {v(BB+i)}, 16, {v(src)}')
    A('s_mov_b32 s66, 0xc0135761')
    A('s_mov_b32 s67, 0xbdd2d3e8')
    A(f'v_mov_b32 {v(T0+12)}, s66')
    A(f's_lshl_b32 s29, {s(SQB)}, 4')
    A(f's_lshl_b32 s30, {s(SW)}, 2')
    A('s_add_u32 s29, s29, s30')
    A('s_lshl_b32 s29, s29, 10')
    A(f's_lshl_b32 s30, {s(SFLIP)}, 6')
    A(f's_lshl_b32 s31, {s(SHEAD)}, 17')
    A('s_add_u32 s31, s31, s29')
    A('s_add_u32 s68, s31, s30')
    A('s_xor_b32 s69, s68, 2048')
    A(f's_lshr_b32 s31, {s(SHEAD)}, 1')
    A('s_add_u32 s31, s31, 32')
    A('s_lshl_b32 s31, s31, 17')
    A('s_add_u32 s31, s31, s29')
    A('s_add_u32 s70, s31, s30')
    n = 0
    for pair, nq in ((0, 4), (1, 2)):
        for qt in range(nq):
            w = OACC + 16 * (n % 4); u = w + 8; n += 1
            for i in range(8):
                e, r = i >> 2, i & 3
                src = (HB + 4 * (4 * e + qt) + r) if pair == 0 else (HE + 4 * (2 * e + qt) + r)
                A(f'v_accvgpr_read_b32 {v(w+i)}, {a(src)}')
            ev = range(0, 8, 2)
            for i in ev:
                A(pk('fma', w + i, [('b', NMU + qt), C1 + 8 * pair + i, w + i]))
            for i in ev:
                A(pk('fma', w + i, [('b', AH + qt), w + i, BB + 8 * pair + i]))
            for i in ev:
                A(pk('mul', u + i, [w + i, w + i]))
            for i in ev:
                A(pk('fma', u + i, [u + i, ('bs', 67), ('b', T0 + 12)]))
            for i in ev:
                A(pk('mul', u + i, [u + i, w + i]))
            for i in range(8):
                A(f'v_exp_f32 {v(u+i)}, {v(u+i)}')
            for i in ev:
                A(pk('add', u + i, [u + i, '1.0']))
            for i in range(8):
                A(f'v_rcp_f32 {v(u+i)}, {v(u+i)}')
            for i in ev:
                A(pk('mul', w + i, [w + i, u + i]))
            for i in range(4):
                A(f'v_cvt_pk_bf16_f32 {v(u+i)}, {v(w+2*i)}, {v(w+2*i+1)}')
            so = 70 if pair else (68 if qt < 2 else 69)
            A(f'buffer_store_dwordx4 {v(u,4)}, {v(lo)}, {s(SRD_H,4)}, s{so} offen offset:{1024*(qt&1)}{stmod}')
            vm.add('hst')
```

```python
from asmlib import Asm, v, a, s
from gen_attn16 import SW, SHEAD, SQB, SM0, SRD_WS, LANE
from gen_p1 import SRD_H, VM

MFMA = 'v_mfma_f32_16x16x32_bf16'
WS_X = 24 << 20
X_BYTES = 12 << 20
NS = 22
RING = 5
BBASE = RING * 16384
AH = 4

ACC, AF, BF = 0, 64, 128
VB, VA, RA, RB, XR, T = 192, 193, 197, 201, 212, 228
SRD_W, SRD_XC, SRD_B, SRD_DBG, SRD_XO, SRD_B2 = 40, 44, 8, 16, 4, 56
SKQ, SAO, SBO, SHAVE, SKS, SFO, SLIM, SALL = 26, 60, 61, 62, 63, 64, 25, 23
ZERO = T + 10


WS_F = 40 << 20
SRD_F = 72
SFA, SFB = 76, 77


def flag_setup(A, ws_lo, ws_hi):
    A(f's_add_u32 s{SRD_F}, s{ws_lo}, {WS_F}\ns_addc_u32 s{SRD_F+1}, s{ws_hi}, 0')
    A(f's_movk_i32 s{SRD_F+2}, 8192\ns_mov_b32 s{SRD_F+3}, 0x20000')
    A(f's_lshl_b32 s30, {s(SQB)}, 10')
    A(f's_lshl_b32 s31, {s(SHEAD)}, 2')
    A('s_add_u32 s30, s30, s31')
    for d, lo, hi in ((SFA, 11, 22), (SFB, 10, 21)):
        A(f's_cmp_ge_u32 {s(SHEAD)}, {lo}\ns_cselect_b32 s31, 256, 0\ns_add_u32 s{d}, s30, s31')
        A(f's_cmp_ge_u32 {s(SHEAD)}, {hi}\ns_cselect_b32 s31, 256, 0\ns_add_u32 s{d}, s{d}, s31')


def flag_store(val, label):
    out = [f's_cmp_lg_u32 {s(SW)}, 0', f's_cbranch_scc1 {label}', 's_mov_b64 exec, 1', f'v_mov_b32 v124, {val}', 'v_mov_b32 v125, 0',
           f'buffer_store_dword v124, v125, {s(SRD_F,4)}, s{SFA} offen sc1', f'buffer_store_dword v124, v125, {s(SRD_F,4)}, s{SFB} offen sc1',
           's_mov_b64 exec, -1', f'{label}:']
    return '\n'.join(out)


def signal_ready(label, cnt):
    out = [f's_lshl_b32 s30, {s(SW)}, 3', f's_add_u32 s30, s30, {cnt}', 's_cmp_lg_u32 s30, 7', f's_cbranch_scc1 {label}',
           f's_lshl_b32 s30, 1, {s(SHEAD)}', f's_lshl_b32 s31, {s(SQB)}, 2',
           's_mov_b64 exec, 1', 'v_mov_b32 v124, s30', 'v_mov_b32 v125, 0',
           f'buffer_atomic_or v124, v125, {s(SRD_DBG,4)}, s31 offen sc1',
           's_mov_b64 exec, -1', f'{label}:']
    return '\n'.join(out)


def ready_load():
    return f's_lshl_b32 s31, {s(SQB)}, 2\nbuffer_load_dword v124, v125, {s(SRD_DBG,4)}, s31 offen sc1'


def poll(tag, need):
    return '\n'.join([f'L_p{tag}:', f's_andn2_b32 s31, {need}, {s(SHAVE)}', f's_cbranch_scc0 L_q{tag}',
                      f'buffer_load_dword {v(T+8)}, {v(T+9)}, {s(SRD_F,4)}, {s(SFO)} offen sc1', 's_waitcnt vmcnt(0)',
                      f'v_cmp_eq_u32 vcc, 1, {v(T+8)}', f's_sub_u32 {s(SLIM)}, {s(SLIM)}, 1', f's_mov_b32 {s(SHAVE)}, vcc_lo',
                      f's_cbranch_scc0 L_p{tag}', f's_mov_b32 {s(SLIM)}, 0', f'L_q{tag}:'])


def tail_loads(A):
    A('s_load_dwordx2 s[32:33], s[0:1], 0')
    A('s_load_dwordx4 s[36:39], s[0:1], 72')


def tail(A, o):
    st_ = o.get('stamp')
    ld = o.get('ldmod', ' sc1')
    vm = VM()
    vm.add('O')
    L = T + 1
    A(f'v_mov_b32 {v(L)}, {v(LANE)}')
    A(f's_and_b32 {s(SKQ)}, s2, 3')
    A(f'v_lshlrev_b32 {v(VB)}, 4, {v(L)}')
    A(f'v_lshrrev_b32 {v(T+2)}, 4, {v(L)}')
    A(f'v_and_b32 {v(T+3)}, 15, {v(L)}')
    A(f'v_lshlrev_b32 {v(T+4)}, 2, {v(T+2)}')
    A(f'v_xor_b32 {v(T+3)}, {v(T+3)}, {v(T+4)}')
    A(f'v_lshlrev_b32 {v(T+3)}, 4, {v(T+3)}')
    A(f'v_lshl_add_u32 {v(VA)}, {v(T+2)}, 10, {v(T+3)}')
    for i in range(1, 4):
        A(f'v_add_u32 {v(VA+i)}, {3072*i}, {v(VA)}')
    A(f's_cmp_eq_u32 {s(SKQ)}, 3')
    A(f's_cselect_b32 s29, 0, {s(SKQ)}')
    A(f's_cselect_b32 {s(SALL)}, 0, -1')
    for i in range(3):
        A(f's_cselect_b32 {s(SRD_B+i)}, {s(SRD_H+i)}, {s(SRD_WS+i)}')
    A('s_mul_i32 s29, s29, 43')
    A(f's_lshl_b32 {s(SAO)}, s29, 15')
    A(f's_lshl_b32 s30, {s(SW)}, 14')
    A(f's_add_u32 {s(SAO)}, {s(SAO)}, s30')
    A('s_bfe_u32 s28, s2, 0x20003')
    A('s_lshl_b32 s30, s28, 8')
    A(f's_add_u32 {s(SAO)}, {s(SAO)}, s30')

    def a_list(st):
        slot = st % RING
        return [(f's_add_u32 m0, {s(SM0)}, {slot*16384}' if i == 0 else None,
                 f'buffer_load_dwordx4 {v(VA+i)}, {s(SRD_W,4)}, {s(SAO)} offen offset:{1024*i} lds' + (f'\ns_add_u32 {s(SAO)}, {s(SAO)}, 0x10000' if i == 3 else ''))
                for i in range(4)]

    def b_list(st):
        slot = st % RING
        pre = '\n'.join([f's_lshr_b32 s30, {s(SKS)}, 2', 's_min_u32 s30, s30, 31', 's_lshl_b32 s30, 1, s30', f's_and_b32 s30, s30, {s(SALL)}',
                         poll(f'b{st}', 's30'), f's_add_u32 {s(SKS)}, {s(SKS)}, 2',
                         f's_add_u32 m0, {s(SM0)}, {BBASE + slot*16384}'])
        return [(pre if i == 0 else None,
                 f'buffer_load_dwordx4 {v(VB)}, {s(SRD_B,4)}, {s(SBO)} offen offset:{1024*i}{ld} lds' + (f'\ns_add_u32 {s(SBO)}, {s(SBO)}, 0x40000' if i == 3 else ''))
                for i in range(4)]

    def run(lst, tag):
        for pre, x in lst:
            if pre:
                A(pre + '\ns_nop 0')
            A(x); vm.add(tag)

    def read_list(st):
        slot = st % RING; se = st & 1; win = slot // 4; off0 = (slot % 4) * 16384
        out = []
        nk = 1 if st == NS - 1 else 2
        for kk in range(nk):
            for qt in range(4):
                out.append(f'ds_read_b128 {v(BF+32*se+4*(4*kk+qt),4)}, {v(RB+4*win+qt)} offset:{off0 + kk*8192}')
        for nt in range(4):
            for kk in range(nk):
                for jh in range(2):
                    off = off0 + (32 * kk + 16 * jh) * 256 + 8 * (nt & 1)
                    out.append(f'ds_read_b64_tr_b16 {v(AF+32*se+4*(4*kk+nt)+2*jh,2)}, {v(RA+2*win+(nt>>1))} offset:{off}')
        return out

    for st in range(AH):
        run(a_list(st), ('A', st))
    A(f's_lshr_b32 {s(SKS)}, {s(SW)}, 1')
    A(f's_add_u32 {s(SKS)}, {s(SKS)}, s29')
    A(f's_lshl_b32 {s(SBO)}, {s(SKS)}, 17')
    A(f's_lshl_b32 s29, {s(SQB)}, 1')
    A('s_bfe_u32 s30, s2, 0x10002')
    A('s_add_u32 s29, s29, s30')
    A('s_lshl_b32 s30, s29, 13')
    A(f's_add_u32 {s(SBO)}, {s(SBO)}, s30')
    A(f's_and_b32 s27, {s(SW)}, 1')
    A('s_lshl_b32 s27, s27, 2')
    A('s_lshl_b32 s30, s27, 10')
    A(f's_add_u32 {s(SBO)}, {s(SBO)}, s30')
    A(f's_lshl_b32 {s(SFO)}, {s(SQB)}, 2')
    A(f's_add_u32 {s(SFO)}, {s(SFO)}, {s(SKQ)}')
    A(f's_lshl_b32 {s(SFO)}, {s(SFO)}, 8')
    A(f'v_lshlrev_b32 {v(T+9)}, 2, {v(L)}')
    A(f's_mov_b32 {s(SHAVE)}, 0')
    A(f's_mov_b32 {s(SLIM)}, 0x40000')
    A(f'v_mov_b32 {v(ZERO)}, 0')
    A(f'v_lshrrev_b32 {v(T+2)}, 2, {v(L)}')
    A(f'v_and_b32 {v(T+3)}, 3, {v(T+2)}')
    A(f'v_and_b32 {v(T+4)}, 3, {v(L)}')
    A(f'v_lshlrev_b32 {v(T+4)}, 4, {v(T+4)}')
    A(f'v_lshl_add_u32 {v(T+4)}, {v(T+2)}, 8, {v(T+4)}')
    A(f's_and_b32 s30, {s(SW)}, 2')
    for k in range(2):
        A(f's_add_u32 s31, s30, {k}')
        A(f'v_xor_b32 {v(T+5)}, s31, {v(T+3)}')
        A(f'v_lshl_add_u32 {v(RA+k)}, {v(T+5)}, 6, {v(T+4)}')
        A(f'v_add_u32 {v(RA+2+k)}, 0x10000, {v(RA+k)}')
    for qt in range(4):
        A(f's_xor_b32 s31, {s(SKQ)}, {qt}')
        A('s_add_u32 s31, s31, s27')
        A('s_lshl_b32 s31, s31, 10')
        A(f's_add_u32 s31, s31, {BBASE}')
        A(f'v_add_u32 {v(RB+qt)}, s31, {v(VB)}')
        A(f'v_add_u32 {v(RB+4+qt)}, 0x10000, {v(RB+qt)}')
    A('s_lshl_b32 s66, s29, 3')
    A('s_add_u32 s66, s66, s27')
    A(f's_add_u32 s66, s66, {s(SKQ)}')
    A('s_lshl_b32 s66, s66, 14')
    A('s_lshl_b32 s67, s28, 8')
    A(f's_lshr_b32 s31, {s(SW)}, 1')
    A('s_lshl_b32 s31, s31, 7')
    A('s_add_u32 s67, s67, s31')
    A('s_add_u32 s66, s66, s67')
    A(f'v_and_b32 {v(T+2)}, 15, {v(L)}')
    A(f'v_lshrrev_b32 {v(T+3)}, 4, {v(L)}')
    A(f'v_lshlrev_b32 {v(T+3)}, 4, {v(T+3)}')
    A(f'v_lshl_add_u32 {v(T+5)}, {v(T+2)}, 10, {v(T+3)}')
    A(f's_waitcnt vmcnt({vm.wait_for(["O"])}) lgkmcnt(0)')
    A('s_barrier')
    A(f'v_readfirstlane_b32 s30, v124')
    A(flag_store(1, 'L_sig_o'))
    A(f's_lshl_b32 s68, {s(SQB)}, 2')
    A.label('L_rdy')
    A('s_cmp_eq_u32 s30, -1')
    A('s_cbranch_scc1 L_rdy_ok')
    A(f'buffer_load_dword {v(T+8)}, {v(ZERO)}, {s(SRD_DBG,4)}, s68 offen sc1')
    A('s_waitcnt vmcnt(0)')
    A(f'v_readfirstlane_b32 s30, {v(T+8)}')
    A(f's_sub_u32 {s(SLIM)}, {s(SLIM)}, 1')
    A('s_cbranch_scc0 L_rdy')
    A(f's_mov_b32 {s(SLIM)}, 0')
    A.label('L_rdy_ok')
    if st_:
        A('s_memrealtime s[52:53]')
    A(f's_mov_b32 {s(SRD_XO)}, s32\ns_mov_b32 {s(SRD_XO+1)}, s33\ns_mov_b32 {s(SRD_XO+2)}, 0x200000')
    A(f's_mov_b32 {s(SRD_B2)}, s36\ns_mov_b32 {s(SRD_B2+1)}, s37\ns_mov_b32 {s(SRD_B2+2)}, 1024\ns_mov_b32 {s(SRD_B2+3)}, 0x20000')
    for np_ in range(2):
        A(f'buffer_load_dwordx4 {v(XR+4*np_,4)}, {v(T+5)}, {s(SRD_XO,4)}, s66 offen offset:{64*np_}'); vm.add('x')
        A(f'buffer_load_dwordx4 {v(XR+8+4*np_,4)}, {v(T+3)}, {s(SRD_B2,4)}, s67 offen offset:{64*np_}'); vm.add('x')
    for st in range(AH):
        run(b_list(st), ('B', st))
    A(f's_waitcnt vmcnt({vm.wait_for([("A", 0), ("B", 0)])})')
    A('s_barrier')
    if st_:
        A('s_memrealtime s[54:55]')
    for x in read_list(0):
        A(x)
    for st in range(NS):
        nk = 1 if st == NS - 1 else 2
        mf = []
        for nt in range(4):
            for qt in range(4):
                for kk in range(nk):
                    c = ACC + 4 * (4 * nt + qt)
                    mf.append(f'{MFMA} {v(c,4)}, {v(AF+32*(st&1)+4*(4*kk+nt),4)}, {v(BF+32*(st&1)+4*(4*kk+qt),4)}, {0 if st == 0 and kk == 0 else v(c,4)}')
        fill = [[] for _ in mf]
        if st + 1 < NS:
            A(f's_waitcnt vmcnt({vm.wait_for([("A", st + 1), ("B", st + 1)])}) lgkmcnt(0)')
            fill[0].append(('s_barrier', None))
            for i, x in enumerate(read_list(st + 1)):
                fill[1 + i].append((x, None))
            if st + AH < NS:
                pos = [3, 7, 11, 15, 19, 23, 27, 30]
                for i, (pre, x) in enumerate(a_list(st + AH) + b_list(st + AH)):
                    if pre:
                        fill[pos[i] - 1].append((pre, None))
                    fill[pos[i]].append((x, ('AB'[i >> 2], st + AH)))
        else:
            A('s_waitcnt lgkmcnt(0)')
        for m, fl in zip(mf, fill):
            A(m)
            for x, tag in fl:
                A(x)
                if tag:
                    vm.add(tag)
    if st_:
        A('s_memrealtime s[70:71]')
    for j in (1, 2, 3):
        A(f's_xor_b32 s31, s2, {j}')
        A('s_mul_i32 s31, s31, 49152')
        A(f's_add_u32 s31, s31, {s(SM0)}')
        A(f's_add_u32 s31, s31, {(j-1)*16384}')
        for nt in range(4):
            for r in range(4):
                A(f'v_min_u32 {v(ACC+4*(4*nt+j)+r)}, -2, {v(ACC+4*(4*nt+j)+r)}')
            A(f'buffer_store_dwordx4 {v(ACC+4*(4*nt+j),4)}, {v(VB)}, {s(SRD_XC,4)}, s31 offen offset:{1024*nt} sc1')
    A('s_mul_i32 s49, s2, 49152')
    A(f's_add_u32 s49, s49, {s(SM0)}')
    A('s_add_u32 s50, s49, 16384')
    A('s_add_u32 s51, s49, 32768')
    A(f's_mov_b32 {s(SRD_XO)}, s38\ns_mov_b32 {s(SRD_XO+1)}, s39')
    A('s_mov_b32 s67, 0xbfb8aa3b')
    for j in (1, 2, 3):
        A(f's_cmp_eq_u32 {s(SKQ)}, {3 ^ j}')
        A(f's_cselect_b64 s[{30+2*j}:{31+2*j}], -1, 0')
    R = AF
    A.label('L_x_poll')
    for j in (1, 2, 3):
        for nt in range(4):
            A(f'buffer_load_dwordx4 {v(R+16*(j-1)+4*nt,4)}, {v(VB)}, {s(SRD_XC,4)}, s{48+j} offen offset:{1024*nt} sc1')
    for j in range(3):
        A(f's_waitcnt vmcnt({8-4*j})')
        b = R + 16 * j
        A(f'v_max3_u32 {v(T+6)}, {v(b)}, {v(b+1)}, {v(b+2) if j == 0 else v(T+6)}')
        rest = list(range(3 if j == 0 else 2, 16))
        while rest:
            x = rest.pop(0)
            y = rest.pop(0) if rest else x
            A(f'v_max3_u32 {v(T+6)}, {v(b+x)}, {v(b+y)}, {v(T+6)}')
    A(f'v_cmp_eq_u32 vcc, -1, {v(T+6)}')
    A(f's_sub_u32 {s(SLIM)}, {s(SLIM)}, 16')
    A('s_cbranch_scc1 L_x_go')
    A('s_cbranch_vccnz L_x_poll')
    A.label('L_x_go')
    if st_:
        A('s_memrealtime s[78:79]')
    G = BF
    for np_ in range(2):
        idx = [(2 * np_ + e, r) for e in range(2) for r in range(4)]
        own = lambda nt, r: ACC + 16 * nt + r
        for j, (nt, r) in enumerate(idx):
            g = G + 8 * np_ + j
            A(f'v_cndmask_b32 {v(g)}, {v(own(nt,r))}, {v(R+4*nt+r)}, s[32:33]')
            A(f'v_add_f32 {v(own(nt,r))}, {v(own(nt,r))}, {v(R+4*nt+r)}')
            A(f'v_cndmask_b32 {v(g)}, {v(g)}, {v(R+16+4*nt+r)}, s[34:35]')
            A(f'v_add_f32 {v(R+16+4*nt+r)}, {v(R+16+4*nt+r)}, {v(R+32+4*nt+r)}')
            A(f'v_cndmask_b32 {v(g)}, {v(g)}, {v(R+32+4*nt+r)}, s[36:37]')
            A(f'v_add_f32 {v(own(nt,r))}, {v(own(nt,r))}, {v(R+16+4*nt+r)}')
        for j, (nt, r) in enumerate(idx):
            g = G + 8 * np_ + j; t0 = G + 16 + j; t1 = G + 24 + j
            xs = XR + 4 * np_ + (j >> 1); bs = XR + 8 + 4 * np_ + (j >> 1)
            A(f'v_sub_f32 {v(own(nt,r))}, {v(own(nt,r))}, {v(g)}')
            A(f'v_and_b32 {v(t0)}, 0xffff0000, {v(bs)}' if j & 1 else f'v_lshlrev_b32 {v(t0)}, 16, {v(bs)}')
            A(f'v_and_b32 {v(t1)}, 0xffff0000, {v(xs)}' if j & 1 else f'v_lshlrev_b32 {v(t1)}, 16, {v(xs)}')
            A(f'v_add_f32 {v(g)}, {v(g)}, {v(t0)}')
            A(f'v_mul_f32 {v(t0)}, s67, {v(g)}')
            A(f'v_exp_f32 {v(t0)}, {v(t0)}')
            A(f'v_mul_f32 {v(g)}, {v(g)}, {v(own(nt,r))}')
        for j in range(8):
            A(f'v_add_f32 {v(G+16+j)}, 1.0, {v(G+16+j)}')
        for j in range(8):
            A(f'v_rcp_f32 {v(G+16+j)}, {v(G+16+j)}')
        for j in range(8):
            A(f'v_fma_f32 {v(G+8*np_+j)}, {v(G+8*np_+j)}, {v(G+16+j)}, {v(G+24+j)}')
        d = G + 32 + 4 * np_
        for k in range(4):
            A(f'v_cvt_pk_bf16_f32 {v(d+k)}, {v(G+8*np_+2*k)}, {v(G+8*np_+2*k+1)}')
        A(f'buffer_store_dwordx4 {v(d,4)}, {v(T+5)}, {s(SRD_XO,4)}, s66 offen offset:{64*np_}')
```

```python
import sys
from asmlib import Asm, v, a, s, check, fix, stamp_begin, stamp_end
from gen_attn16 import *
from gen_p1 import *
import gen_k3b as gen_k3
import gen_tail
NAME = 'recurrent_scan__mha_block_cached__mixer_channel_mlp__prompt_kernel'

VLIST = sorted([39 + 4 * i for i in range(20)] + [41 + 8 * i for i in range(7)] + [45 + 8 * i for i in range(5)])
KLIST = [77, 85, 93, 101, 105, 109, 113, 117, 119, 123, 127, 131, 135, 139, 143, 147]
PLAN = dict(vpos=lambda n: VLIST[n], kpos=lambda n: KLIST[n], km=4, kd=lambda i: [5, 9, 23, 27][i], vm=28, vd=lambda i: [31, 35, 37, 33][i])
HEADER = open('recurrent_scan__mha_block_cached__mixer_channel_mlp__prompt.s.ref').read().split('; Override')[0]


def srd(A, d, lo, hi, off, nbytes):
    if off is None:
        A(f's_mov_b32 s{d}, s{lo}\ns_mov_b32 s{d+1}, s{hi}')
    else:
        A(f's_add_u32 s{d}, s{lo}, {off}\ns_addc_u32 s{d+1}, s{hi}, 0')
    A(f's_mov_b32 s{d+2}, {nbytes}\ns_mov_b32 s{d+3}, 0x20000')


def k2(A, o):
    fused = o.get('fused')
    name = NAME if fused else 'attn_kernel'
    nxt = 'L_attn_finish' if fused else 'out_kernel'
    st = o.get('stamp')
    A(f'.globl {name}\n.p2align 8\n.type {name},@function')
    A.label(name)
    A('s_cmp_ge_u32 s2, 256')
    A('s_cbranch_scc1 L_k2_end')
    if st:
        stamp_begin(A)
    A('s_load_dwordx8 s[32:39], s[0:1], 0')
    A('s_load_dwordx4 s[68:71], s[0:1], 48')
    A('s_load_dwordx2 s[72:73], s[0:1], 96')
    A(f'v_lshrrev_b32 {v(T0)}, 6, v0')
    A('s_and_b32 s26, s2, 7')
    A('s_lshl_b32 s26, s26, 2')
    A('s_bfe_u32 s27, s2, 0x20003')
    A(f'v_readfirstlane_b32 {s(SW)}, {v(T0)}')
    A(f's_add_u32 {s(SHEAD)}, s26, s27')
    A(f's_lshr_b32 {s(SQB)}, s2, 5')
    A(f's_and_b32 {s(SFLIP)}, {s(SHEAD)}, 1')
    A(f's_lshl_b32 {s(SFLIP)}, {s(SFLIP)}, 5')
    A(f's_lshl_b32 {s(SM0)}, {s(SW)}, 12')
    A(f's_lshl_b32 {s(SM1)}, {s(SW)}, 11')
    A(f's_lshl_b32 {s(SXM)}, {s(SW)}, 13')
    A(f's_lshl_b32 {s(SXO)}, {s(SQB)}, 18')
    A(f's_lshl_b32 s26, {s(SW)}, 16')
    A(f's_add_u32 {s(SXO)}, {s(SXO)}, s26')
    A(f's_lshl_b32 s26, {s(SFLIP)}, 10')
    A(f's_add_u32 {s(SXO)}, {s(SXO)}, s26')
    rot = o.get('rot', 0)
    if rot == 0:
        A(f's_mov_b32 {s(SROT)}, 0')
    elif rot == 1:
        A(f's_lshl_b32 {s(SROT)}, s27, 1')
    elif rot == 2:
        A(f's_lshl_b32 {s(SROT)}, s27, 1')
        A(f's_and_b32 s26, {s(SQB)}, 1')
        A(f's_add_u32 {s(SROT)}, {s(SROT)}, s26')
    elif rot == 3:
        A(f's_lshl_b32 {s(SROT)}, s27, 1')
        A(f's_and_b32 s26, {s(SQB)}, 4')
        A(f's_add_u32 {s(SROT)}, {s(SROT)}, s26')
    A(f's_lshl_b32 {s(SWQO)}, {s(SW)}, 17')
    A(f's_lshl_b32 s26, {s(SHEAD)}, 8')
    A(f's_add_u32 {s(SWQO)}, {s(SWQO)}, s26')
    A(f's_mul_i32 {s(SW1O)}, {s(SW)}, {16*2752}')
    A(f's_mov_b32 {s(SOFF)}, {s(SM0)}')
    A(f'v_and_b32 {v(LANE)}, 63, v0')
    if not o.get('nocpf'):
        A('s_getpc_b64 s[56:57]')
        A.label('L_code0')
        A('s_mov_b32 s58, L_code_end-L_code0')
        A('s_mov_b32 s59, 0x20000')
        A('s_lshr_b32 s26, s2, 3')
        A('s_lshl_b32 s26, s26, 2')
        A(f's_add_u32 s26, s26, {s(SW)}')
        A('s_lshl_b32 s26, s26, 9')
        A(f'v_lshlrev_b32 {v(PT+8)}, 3, {v(LANE)}')
        A(f'buffer_load_dwordx2 {v(PT+10,2)}, {v(PT+8)}, s[56:59], s26 offen')
    p1_lane_setup(A, o.get('exp'))
    A('s_waitcnt lgkmcnt(0)')
    if st:
        A('s_memrealtime s[66:67]\ns_waitcnt lgkmcnt(0)\nv_writelane_b32 v63, s66, 9')
    srd(A, SRD_X, 32, 33, None, 0 if o.get('kill') == 'x' else 2 << 20)
    srd(A, SRD_WQ, 38, 39, None, 0 if o.get('kill') in ('wq', 'w') else 4 << 20)
    srd(A, SRD_W1, 68, 69, None, 0 if o.get('kill') in ('w1', 'w') else 512 * 2752)
    vm = VM()
    vm.add('code')

    def run(lst, tag):
        for pre, ins in lst:
            A(pre + ('s_nop 0\n' if pre else '') + ins); vm.add(tag)
    run(x_dma(0), ('x', 0)); run(w_dma(0), ('W', 0))
    if st:
        A('s_memrealtime s[66:67]\ns_waitcnt lgkmcnt(0)\nv_writelane_b32 v63, s66, 10')
    mode = o.get('pmode', 0)
    if o.get('tlb'):
        A(f'v_lshlrev_b32 {v(PT+9)}, {o["tlb"]}, {v(LANE)}')
        A(f's_lshl_b32 s26, {s(SHEAD)}, 8')
        A(f's_lshl_b32 s27, {s(SW)}, {o["tlb"] + 6}')
        A('s_add_u32 s26, s26, s27')
        A(f'buffer_load_dword {v(PT+12)}, {v(PT+9)}, {s(SRD_WQ,4)}, s26 offen'); vm.add('pf')
        A(f'buffer_load_dword {v(PT+12)}, {v(PT+9)}, {s(SRD_W1,4)}, s27 offen'); vm.add('pf')
    if mode & 1:
        run(x_dma(1), ('x', 1)); run(w_dma(1), ('W', 1))
    if mode & 2:
        P0, P1, P2, PD = PT + 8, PT + 9, PT + 10, PT + 11
        A(f'v_lshlrev_b32 {v(P0)}, 6, {v(LANE)}')
        A(f'v_lshrrev_b32 {v(P1)}, 2, {v(LANE)}')
        A(f'v_and_b32 {v(P2)}, 3, {v(LANE)}')
        A(f'v_lshlrev_b32 {v(P2)}, 6, {v(P2)}')
        A(f'v_lshl_add_u32 {v(P1)}, {v(P1)}, 13, {v(P2)}')
        A('s_bfe_u32 s26, s2, 0x20003')
        A('s_lshl_b32 s26, s26, 16')
        A(f's_lshl_b32 s27, {s(SQB)}, 18')
        A('s_add_u32 s26, s26, s27')
        A(f's_lshl_b32 s27, {s(SW)}, 14')
        A('s_add_u32 s26, s26, s27')
        for i in range(4):
            A(f'buffer_load_dword {v(PD)}, {v(P0)}, {s(SRD_X,4)}, s26 offen'); vm.add('pf')
            A('s_add_u32 s26, s26, 4096')
        A(f's_lshl_b32 s27, {s(SQB)}, 19')
        A(f's_add_u32 s27, s27, {s(SWQO)}')
        A(f'buffer_load_dword {v(PD)}, {v(P1)}, {s(SRD_WQ,4)}, s27 offen'); vm.add('pf')
        A(f's_mul_i32 s27, {s(SQB)}, {64*2752}')
        A(f's_add_u32 s27, s27, {s(SW1O)}')
        A(f'buffer_load_dword {v(PD)}, {v(VW1)}, {s(SRD_W1,4)}, s27 offen'); vm.add('pf')
        A(f'buffer_load_dword {v(PD)}, {v(VW1+1)}, {s(SRD_W1,4)}, s27 offen offset:1024'); vm.add('pf')
    p1_read_setup(A)
    if st:
        A('s_memrealtime s[66:67]\ns_waitcnt lgkmcnt(0)\nv_writelane_b32 v63, s66, 11')
    B = Asm()
    lane_setup(B, rot=True)
    B(f's_lshl_b32 s26, {s(SHEAD)}, 19')
    B('s_add_u32 s27, s26, 16384')
    srd(B, SRD_K, 34, 35, 's27', 524288 - 16384)
    srd(B, SRD_K0, 34, 35, 's26', 16384)
    srd(B, SRD_V, 36, 37, 's26', 524288)
    srd(B, SRD_WS, 72, 73, None, 16 << 20)
    srd(B, SRD_H, 72, 73, WS_H, 43 * 128 * 1024)
    srd(B, SRD_B1, 70, 71, None, 2752)
    B(f'v_lshrrev_b32 {v(PT)}, 4, {v(LANE)}')
    B(f'v_lshlrev_b32 {v(PT)}, 3, {v(PT)}')
    B(f's_lshl_b32 s26, {s(SHEAD)}, 6')
    B(f's_lshr_b32 s27, {s(SHEAD)}, 1')
    B('s_add_u32 s27, s27, 32')
    B('s_lshl_b32 s27, s27, 6')
    side = []
    for l in B.lines:
        if l.startswith('s_addc'):
            side[-1] = (side[-1][0] + '\n' + l, None)
        else:
            side.append((l, None))
    for u in range(4):
        side.append((f'buffer_load_dwordx2 {v(B1R+2*u,2)}, {v(PT)}, {s(SRD_B1,4)}, s{26+(u>>1)} offen offset:{32*(u&1)}', 'b1'))
    phase1(A, vm, diag=bool(st), side=side, early=mode & 1)
    assert not side
    if st:
        A('v_writelane_b32 v63, s68, 7')
        A('v_writelane_b32 v63, s90, 8')
        A('s_lshl_b32 s26, s2, 2\ns_add_u32 s26, s26, s20\ns_lshl_b32 s26, s26, 8\ns_add_u32 s26, s26, 0x3100000\ns_mov_b32 s14, 0x4000000')
        A(f'v_lshlrev_b32 v62, 2, {v(LANE)}')
        A('buffer_store_dword v63, v62, s[12:15], s26 offen'); vm.add('diag')
        A('s_memrealtime s[86:87]')
    p1_epilogue(A, vm, o.get('stmod', ''))
    if st:
        A('s_memrealtime s[88:89]')
    A('s_and_b32 s27, s2, 3')
    A('s_cmp_eq_u32 s27, 3')
    A('s_cselect_b32 s26, 64, 32')
    A('s_load_dwordx2 s[40:41], s[0:1], s26')
    A(f's_cselect_b32 s42, {1376*1024}, s42')
    A('s_cselect_b32 s27, 0, s27')
    A(f's_mul_i32 s61, s27, {1376*1024}')
    A('s_lshr_b32 s26, s2, 3')
    A('s_lshl_b32 s26, s26, 2')
    A(f's_add_u32 s26, s26, {s(SW)}')
    A('s_mul_i32 s26, s26, 11264')
    A('s_add_u32 s61, s61, s26')
    A(f's_add_u32 s44, {s(SRD_WS)}, {gen_k3.WS_X}')
    A(f's_addc_u32 s45, {s(SRD_WS+1)}, 0')
    A(f's_mov_b32 s46, {gen_k3.X_BYTES}')
    A('s_mul_i32 s62, s2, 49152')
    A(f's_mul_i32 s26, {s(SW)}, 12288')
    A('s_add_u32 s62, s62, s26')
    A(f'v_lshlrev_b32 {v(LS2+7)}, 4, {v(LANE)}')
    for i in range(4):
        A(f'v_mov_b32 {v(T0+12+i)}, -1')
    pf = []
    poison = []
    for i in range(12):
        (poison if fused else pf).append(f'buffer_store_dwordx4 {v(T0+12,4)}, {v(LS2+7)}, s[44:47], s62 offen offset:{1024*(i&3)} sc1' + ('\ns_add_u32 s62, s62, 4096' if i & 3 == 3 else ''))
    if not o.get('nopf'):
        for i in range(11):
            pf.append(f'buffer_load_dwordx4 {v(T0+16,4)}, {v(LS2+7)}, s[40:43], s61 offen offset:{1024*(i&3)}' + ('\ns_add_u32 s61, s61, 4096' if i & 3 == 3 else ''))
    if not o.get('nocpf'):
        A('s_getpc_b64 s[56:57]')
        A.label('L_code1')
        A(f's_add_u32 s56, s56, {nxt}-L_code1')
        A('s_addc_u32 s57, s57, 0')
        A(f's_mov_b32 s58, {"L_k2_end" if fused else "L_code_end"}-{nxt}')
        A('s_lshr_b32 s63, s2, 3')
        A('s_lshl_b32 s63, s63, 2')
        A(f's_add_u32 s63, s63, {s(SW)}')
        A('s_lshl_b32 s63, s63, 8')
        A(f'v_lshlrev_b32 {v(LS2+6)}, 2, {v(LANE)}')
        pf.append(f'buffer_load_dword {v(T0+16)}, {v(LS2+6)}, s[56:59], s63 offen')
    A(f's_mov_b32 {s(STHR)}, {o.get("thr", 0x5d800000)}')
    A(f's_mov_b64 {s(SARM,2)}, -1')
    A(f's_mov_b32 {s(SRD_K0+2)}, 524288')
    if fused:
        A('s_load_dwordx2 s[16:17], s[0:1], 88')
        A('s_movk_i32 s18, 256')
        A('v_mov_b32 v125, 0')
        gen_tail.flag_setup(A, SRD_WS, SRD_WS + 1)
        A(gen_tail.flag_store(0, 'L_clr'))
        for x in poison:
            A(x); vm.add('poison')
        pf.append(gen_tail.ready_load())
    attn_start(A, K0_LDS)
    opts = dict(PLAN, first_vm=vm.wait_for([('kv', 0)]), stmod=o.get('stmod', ''))
    if fused:
        opts['pre_finish'] = gen_tail.tail_loads
        opts['sig2'] = [(3, gen_tail.signal_ready('L_sig_h', s(SCNT)))]
    if st:
        A('s_memrealtime s[98:99]')
    attn_loop(A, opts, pf)
    if st:
        A('s_memrealtime s[100:101]')
    attn_store(A, opts)
    if fused:
        gen_tail.tail(A, o)
    if st and fused:
        A('s_waitcnt lgkmcnt(0)')
        A('s_sub_u32 s78, s78, s70\ns_sub_u32 s70, s70, s54\ns_sub_u32 s54, s54, s52\ns_sub_u32 s52, s52, s100')
        A('v_mov_b32 v16, s52\nv_mov_b32 v17, s54\nv_mov_b32 v18, s70\nv_mov_b32 v19, s78')
    if st:
        A(f's_lshl_b32 s85, {s(SW)}, 6')
        A('v_mov_b32 v0, s85')
        A('s_waitcnt lgkmcnt(0)')
        A('s_sub_u32 s100, s100, s98\ns_sub_u32 s98, s98, s88\ns_sub_u32 s88, s88, s86\ns_sub_u32 s86, s86, s90')
        stamp_end(A, 0, 0)
        A('v_mov_b32 v8, s86\nv_mov_b32 v9, s88\nv_mov_b32 v10, s98\nv_mov_b32 v11, s100')
        A('s_add_u32 s84, s84, 0x8000')
        A('buffer_store_dwordx4 v[8:11], v4, s[80:83], s84 offen')
        if fused:
            A('s_add_u32 s84, s84, 0x10000')
            A('buffer_store_dwordx4 v[16:19], v4, s[80:83], s84 offen')
    A.label('L_k2_end')
    A('s_endpgm')
    attn_exact(A, SRD_K0)


def build(o):
    A = Asm()
    for l in HEADER.strip().split('\n'):
        A.lines.append(l)
    fused = o.get('fused')
    if fused and o.get('plain'):
        A('; @launch grid=(256,1,1) block=(256,1,1) lds=163840')
    elif fused:
        A(f'; @launch kernel={NAME} grid=(256,1,1) block=(256,1,1) lds=163840')
    else:
        A('; @launch kernel=attn_kernel grid=(256,1,1) block=(256,1,1) lds=163840')
        A('; @launch kernel=out_kernel grid=(256,1,1) block=(256,1,1) lds=163840')
    A('.amdgcn_target "amdgcn-amd-amdhsa--gfx950"\n.text')
    k2(A, o)
    if not fused:
        gen_k3.k3(A, opts=dict(o.get('k3', {}), **(dict(stamp=1) if o.get('stamp') else {})))
    A.label('L_code_end')
    A('.section .rodata,"a"\n.p2align 6')
    A(f'.amdhsa_kernel {NAME if fused else "attn_kernel"}\n.amdhsa_next_free_vgpr 512\n.amdhsa_next_free_sgpr 102\n.amdhsa_accum_offset 256')
    A('.amdhsa_group_segment_fixed_size 0\n.amdhsa_kernarg_size 104\n.amdhsa_user_sgpr_count 2\n.amdhsa_user_sgpr_kernarg_segment_ptr 1\n.amdhsa_system_sgpr_workgroup_id_x 1\n.end_amdhsa_kernel')
    if not fused:
        A('.p2align 6')
        gen_k3.k3_desc(A)
    A.lines, n = fix(A.lines)
    p = check(A.lines)
    print(len(A.lines), 'lines; nops', n, 'hazards', p[:8])
    return A.text()


if __name__ == '__main__':
    two = dict(stmod=' sc1', k3={}, pmode=1)
    best = dict(two, fused=1)
    variants = {'best': best, 'two': two, 'nold': dict(best, ldmod=''), 'exact': dict(best, thr=0)}
    for n, o in variants.items():
        open(f'all_{n}_stamp.s', 'w').write(build(dict(o, stamp=1)))
    open('all.s', 'w').write(build(best))
    open('all_two.s', 'w').write(build(two))
    open('recurrent_scan__mha_block_cached__mixer_channel_mlp__prompt.s', 'w').write(build(dict(best, plain=1)))
```

```python
from asmlib import Asm, v, a, s, pk

WS_O = 0
WS_H = 16 << 20
WS_Q = 32 << 20

SA, SB = 0, 32
NEGM = 64
ADK = 80
ADV = 84
VOK = 92
VOV = 96
LS = 98
LANE = 102
ONES = 103
LS2 = 120
T0 = 104
OACC = 128
QF = 0
KF = 64
VF = 128
SRD_K, SRD_V, SRD_WS = 4, 8, 12
SW, SHEAD, SQB, SOFF, SM0, SCNT = 20, 21, 22, 23, 24, 25
SFLIP = 65
STHR, SARM = 27, 78
MFMA = 'v_mfma_f32_16x16x32_bf16'
LACC, ONESV = 192, 208


def stile(half, ql, kt):
    return (SA if half == 0 else SB) + 8 * (2 * ql + (kt >> 1)) + 4 * (kt & 1)


def period(A, j, first=False, tail=False, opts=None, vmn=8, dma_k=True, dma_v=True, extra=(), k_next=True, late=()):
    o = opts or {}
    ms = o.get('sum') == 'mfma'
    PL = 36 if ms else 32
    NG = 64 + 2 * PL; H = 32 + PL
    slot = j & 3
    gaps = [[] for _ in range(NG)]
    mf = [None] * NG
    needs = [None] * NG
    for half, g0 in ((0, 0), (1, H)):
        if first or tail:
            continue
        for kt in range(4):
            for ql in range(2):
                qt = 2 * half + ql
                for ks in range(4):
                    g = g0 + 8 * kt + 4 * ql + ks
                    S = stile(half, ql, kt)
                    mf[g] = f'{MFMA} {v(S,4)}, {a(KF+4*(4*kt+ks),4)}, {a(QF+4*(4*qt+ks),4)}, {v(NEGM+4*qt,4) if ks == 0 else v(S,4)}'
                    if half == 0:
                        needs[g] = ('K', 4 * kt + ks)
    for half, g0 in ((1, 32), (0, H + 32)):
        if (half == 1 and first) or (half == 0 and tail):
            continue
        for dt in range(8):
            for ql in range(2):
                qt = 2 * half + ql
                for kp in range(2):
                    g = g0 + 4 * dt + 2 * ql + kp
                    O = OACC + 4 * (8 * qt + dt)
                    mf[g] = f'{MFMA} {v(O,4)}, {a(VF+4*(2*dt+kp),4)}, {v(stile(half, ql, 2*kp),4)}, {v(O,4)}'
                    if half == 0:
                        needs[g] = ('V', 2 * dt + kp)
        if ms:
            for ql in range(2):
                for kp in range(2):
                    la = a(LACC + 4 * (2 * half + ql), 4)
                    mf[g0 + 32 + 2 * ql + kp] = f'{MFMA} {la}, {a(ONESV,4)}, {v(stile(half, ql, 2*kp),4)}, {la}'
    e0 = o.get('e0', 12)

    def sm(half, g0, lo, hi):
        order = [(kt, ql) for kt in range(4) for ql in range(2)]
        for n, (kt, ql) in enumerate(order):
            S = stile(half, ql, kt); lr = LS + 2 * half + ql
            for r in range(4):
                ge = g0 + 8 * n + 2 * r
                if lo <= ge < hi:
                    gaps[ge % NG].append((0, f'v_exp_f32 {v(S+r)}, {v(S+r)}'))
                summ = o.get('sum', 'add')
                if summ == 'add' and lo <= ge + 1 < hi:
                    gaps[(ge + 1) % NG].append((1, f'v_add_f32 {v(lr)}, {v(lr)}, {v(S+r)}'))
                if summ == 'pk' and r & 1 and lo <= ge + 1 < hi:
                    l2 = LS2 + 2 * (2 * half + ql)
                    gaps[(ge + 1) % NG].append((1, f'v_pk_add_f32 {v(l2,2)}, {v(l2,2)}, {v(S+r-1,2)}'))
                if summ == 'dot' and r & 1 and lo <= ge + 5 < hi:
                    dst = S - 4 * (kt & 1) + 2 * (kt & 1) + (r >> 1)
                    gaps[(ge + 5) % NG].append((1, f'v_dot2c_f32_bf16 {v(lr)}, {v(dst)}, {v(ONES)}'))
                if r & 1 and lo <= ge + 3 < hi:
                    dst = S - 4 * (kt & 1) + 2 * (kt & 1) + (r >> 1)
                    gaps[(ge + 3) % NG].append((2, f'v_cvt_pk_bf16_f32 {v(dst)}, {v(S+r-1)}, {v(S+r)}'))
    if not o.get('no_sm'):
        if not tail:
            sm(0, e0, 0, NG)
            sm(1, H + e0, 0, NG)
        if not first:
            sm(1, H + e0, NG, 2 * NG)
    reads = []; prev = []
    if not tail and not o.get('no_lds'):
        for n in range(32):
            f, jh = n >> 1, n & 1
            dt, kp = f >> 1, f & 1
            off = slot * 16384 + (32 * kp + 16 * jh) * 256
            reads.append((o.get('vpos', lambda n: 36 + 2 * n)(n), ('V', f), f'ds_read_b64_tr_b16 {a(VF+4*f+2*jh,2)}, {v(ADV+dt)} offset:{off}'))
        for n in range(16):
            kt, ks = n >> 2, n & 3
            g = o.get('kpos', lambda n: 75 + 2 * n + 2 * (n >> 2) * 2 if n < 16 else 0)(n)
            if g >= NG:
                if first:
                    continue
                off = ((j - 1) & 3) * 16384 + kt * 4096
                reads.append((g - NG, ('Kl', n), f'ds_read_b128 {a(KF+4*n,4)}, {v(ADK+ks)} offset:{off}'))
                for gg in range(NG):
                    if needs[gg] == ('K', n):
                        needs[gg] = ('Kl', n)
            else:
                off = slot * 16384 + kt * 4096
                reads.append((g, ('K', n), f'ds_read_b128 {a(KF+4*n,4)}, {v(ADK+ks)} offset:{off}'))
        if o.get('no_k'):
            reads = [r for r in reads if r[1][0] != 'K']
            needs = [n if n and n[0] != 'K' else None for n in needs]
        if o.get('no_v'):
            reads = [r for r in reads if r[1][0] != 'V']
            needs = [n if n and n[0] != 'V' else None for n in needs]
        prev = sorted(reads, key=lambda r: r[0])
        if not k_next:
            reads = [r for r in reads if r[1][0] != 'K']
        for g, tag, txt in reads:
            gaps[g % NG].append((o.get('rprio', lambda g: -1)(g), txt))
    for g, txt in extra:
        gaps[g].append((-2, txt))
    for g, txt in late:
        gaps[g].append((9, txt))
    if not tail:
        dslot = (j + 2) & 3
        if not o.get('no_bar'):
            gaps[1].append((-2, f's_waitcnt vmcnt({vmn})' if not o.get('no_dma') else 's_nop 0'))
            gaps[2].append((-2, 's_barrier'))
        if not o.get('no_dma') and dma_k:
            gaps[o.get('km', 3)].append((-2, f's_add_u32 m0, {s(SM0)}, {dslot*16384}'))
            for i in range(4):
                gaps[o.get('kd', lambda i: 5 + 3 * i)(i)].append((-2, f'buffer_load_dwordx4 {v(VOK+i)}, {s(SRD_K,4)}, {s(SOFF)} offen offset:{1024*i} lds'))
        if not o.get('no_dma') and dma_v:
            gaps[o.get('vm', 17)].append((-2, f's_add_u32 m0, {s(SM0)}, {65536+dslot*16384}'))
            for i in range(4):
                gaps[o.get('vd', lambda i: 19 + 3 * i)(i)].append((-2, f'buffer_load_dwordx4 {v(VOV+(i&1))}, {s(SRD_V,4)}, {s(SOFF)} offen offset:{1024*i} lds'))
            gaps[NG - 1].append((-2, f's_add_u32 {s(SOFF)}, {s(SOFF)}, 16384'))
    if o.get('pstamp'):
        gaps[6].append((-2, 's_memtime s[66:67]'))
        gaps[60].append((-2, 's_waitcnt lgkmcnt(0)'))
        gaps[61].append((3, f'v_cmp_eq_u32 vcc, s70, {v(LANE)}\nv_mov_b32 v104, s66'))
        gaps[63].append((3, 'v_cndmask_b32 v103, v103, v104, vcc'))
        gaps[62].append((-2, 's_add_u32 s70, s70, 1'))
    sr = sorted(reads, key=lambda r: r[0])
    order = [(g - NG, tag) for g, tag, _ in prev] + [(g, tag) for g, tag, _ in sr]
    nprev = len(prev)
    done = -1
    waits = {}
    lat = o.get('lat', 10)
    for g in range(NG):
        if needs[g] is None or not order:
            continue
        tag = needs[g]
        if tag[0] == 'K':
            cand = [i for i, (gg, tg) in enumerate(order) if tg == tag and i < nprev]
        else:
            cand = [i for i, (gg, tg) in enumerate(order) if tg == tag and i >= nprev]
        idx = max(cand)
        assert order[idx][0] < g - 2, (tag, g, order[idx])
        if idx > done:
            issued = [i for i, (gg, tg) in enumerate(order) if gg < g]
            old = [i for i, (gg, tg) in enumerate(order) if gg <= g - lat]
            cover = max(idx, max(old))
            n = max(issued) - cover
            assert n <= 15
            waits[g] = n
            done = cover
    last = H if tail else NG
    for g in range(last):
        if g == 0 and g in waits:
            A(f's_waitcnt lgkmcnt({waits[g]})')
        if mf[g] and not o.get('no_mfma'):
            A(mf[g])
        items = sorted(gaps[g], key=lambda x: x[0])
        if (g + 1) in waits:
            k = len([1 for pr, _ in items if pr < 0])
            items.insert(k, (0, f's_waitcnt lgkmcnt({waits[g+1]})'))
        for _, txt in items:
            A(txt)


def lane_setup(A, rot=False):
    L = LANE; t1 = T0; t2 = T0 + 1; t3 = T0 + 2; r = T0 + 4; base = T0 + 5; x = T0 + 6
    if not rot:
        A(f'v_and_b32 {v(L)}, 63, v0')
    A(f'v_lshrrev_b32 {v(t1)}, 4, {v(L)}')
    A(f'v_and_b32 {v(t2)}, 15, {v(L)}')
    for i in range(4):
        A(f'v_add_u32 {v(t3)}, {4*i}, {v(t1)}')
        A(f'v_xor_b32 {v(t3)}, {v(t3)}, {v(t2)}')
        A(f'v_lshlrev_b32 {v(t3)}, 4, {v(t3)}')
        A(f'v_lshl_add_u32 {v(VOK+i)}, {v(t1)}, 8, {v(t3)}')
        if rot:
            A(f's_xor_b32 s29, {s(SW)}, {i}')
            A('s_lshl_b32 s29, s29, 2')
            A(f'v_add_u32 {v(t3)}, s29, {v(t1)}')
            A(f'v_xor_b32 {v(t3)}, {v(t3)}, {v(t2)}')
            A(f'v_lshlrev_b32 {v(t3)}, 4, {v(t3)}')
        A(f'v_lshl_add_u32 {v(ADK+i)}, {v(t2)}, 8, {v(t3)}')
    for i in range(2):
        A(f'v_add_u32 {v(t3)}, {4*i}, {v(t1)}')
        A(f'v_lshlrev_b32 {v(t3)}, 1, {v(t3)}')
        A(f'v_xor_b32 {v(t3)}, {v(t3)}, {v(t2)}')
        A(f'v_lshlrev_b32 {v(t3)}, 4, {v(t3)}')
        A(f'v_lshl_add_u32 {v(VOV+i)}, {v(t1)}, 8, {v(t3)}')
    A(f'v_lshrrev_b32 {v(r)}, 2, {v(L)}')
    A(f'v_and_b32 {v(t3)}, 3, {v(L)}')
    A(f'v_lshlrev_b32 {v(t3)}, 3, {v(t3)}')
    A(f'v_lshl_add_u32 {v(base)}, {v(r)}, 8, {v(t3)}')
    A(f'v_add_u32 {v(base)}, 0x10000, {v(base)}')
    A(f'v_and_b32 {v(x)}, 7, {v(r)}')
    for dt in range(8):
        A(f'v_xor_b32 {v(t3)}, {dt}, {v(x)}')
        A(f'v_lshl_add_u32 {v(ADV+dt)}, {v(t3)}, 5, {v(base)}')


def kv_dma(A, which, slot, soff, srd=None):
    if which == 'K':
        A(f's_add_u32 m0, {s(SM0)}, {slot*16384}')
        A('s_nop 0')
        for i in range(4):
            A(f'buffer_load_dwordx4 {v(VOK+i)}, {s(srd or SRD_K,4)}, {s(soff)} offen offset:{1024*i} lds')
    else:
        A(f's_add_u32 m0, {s(SM0)}, {65536+slot*16384}')
        A('s_nop 0')
        for i in range(4):
            A(f'buffer_load_dwordx4 {v(VOV+(i&1))}, {s(SRD_V,4)}, {s(soff)} offen offset:{1024*i} lds')


def xlane(A, op, reg, tmp):
    for sw in ('v_permlane32_swap_b32', 'v_permlane16_swap_b32'):
        A(f'v_mov_b32 {v(tmp)}, {v(reg)}')
        A('s_nop 1')
        A(f'{sw} {v(reg)}, {v(tmp)}')
        A(f'{op} {v(reg)}, {v(reg)}, {v(tmp)}')


def attn_start(A, k0=3*16384, ms=False):
    for i in range(4):
        A(f'v_add_u32 {v(T0+16+i)}, {k0}, {v(ADK+i)}')
    for n in range(16):
        A(f'ds_read_b128 {a(KF+4*n,4)}, {v(T0+16+(n&3))} offset:{(n>>2)*4096}')
    for i in range(4):
        A(f'v_mov_b32 {v(LS+i)}, 0')
    zero = [f'v_mov_b32 {v(OACC+i)}, 0' for i in range(128)]
    if ms:
        A(f'v_mov_b32 {v(T0+20)}, 0x3f803f80')
        zero += [f'v_accvgpr_write_b32 {a(LACC+i)}, 0' for i in range(16)] + [f'v_accvgpr_write_b32 {a(ONESV+i)}, {v(T0+20)}' for i in range(4)]
    for _ in range(24):
        A(zero.pop())

    def finish(qt):
        B = Asm()
        S = stile(qt >> 1, qt & 1, 0); m = T0 + 2 * qt
        B(f'v_max3_f32 {v(m)}, {v(S)}, {v(S+1)}, {v(S+2)}')
        for i in range(3, 15, 2):
            B(f'v_max3_f32 {v(m)}, {v(m)}, {v(S+i)}, {v(S+i+1)}')
        B(f'v_max_f32 {v(m)}, {v(m)}, {v(S+15)}')
        xlane(B, 'v_max_f32', m, m + 1)
        for i in range(4):
            B(f'v_sub_f32 {v(NEGM+4*qt+i)}, 0, {v(m)}')
        return [l for l in B.lines if not l.startswith('s_nop')]
    work = []
    for qt in range(4):
        for kt in range(4):
            S = stile(qt >> 1, qt & 1, kt)
            for ks in range(4):
                if qt == 0 and ks == 0:
                    A(f's_waitcnt lgkmcnt({12 - 4 * kt})')
                A(f'{MFMA} {v(S,4)}, {a(KF+4*(4*kt+ks),4)}, {a(QF+4*(4*qt+ks),4)}, {0 if ks == 0 else v(S,4)}')
                if kt == 1 and ks == 0 and qt > 0:
                    work += finish(qt - 1)
                if work:
                    A(work.pop(0))
                    if zero:
                        A(zero.pop())
                else:
                    for _ in range(2):
                        if zero:
                            A(zero.pop())
    for l in work + zero + finish(3):
        A(l)
    for qt in range(4):
        S = stile(qt >> 1, qt & 1, 0)
        for i in range(0, 16, 2):
            A(pk('add', S + i, [S + i, ('b', NEGM + 4 * qt)]))


def attn_loop(A, opts=None, pf=()):
    period(A, 0, first=True, opts=opts, vmn=opts.get('first_vm', 8), extra=opts.get('x0', ()))
    if opts.get('after0'):
        A(opts['after0'])
    A(f's_mov_b32 {s(SCNT)}, 7')
    A.label('L_attn_loop')
    for j in range(1, 5):
        period(A, j, opts=opts, extra=opts.get('loopx', {}).get(j, ()))
    A(f's_sub_u32 {s(SCNT)}, {s(SCNT)}, 1')
    A(f's_cmp_lg_u32 {s(SCNT)}, 0')
    A('s_cbranch_scc1 L_attn_loop')
    n0 = (len(pf) + 1) // 2
    p0 = list(zip([39 + 8 * i for i in range(12)] + [133], pf[:n0]))
    p1 = list(zip([7 + 10 * i for i in range(13)], pf[n0:]))
    nv = lambda l: sum(1 for _, x in l if x.startswith('buffer'))
    period(A, 29, opts=opts, dma_k=False, extra=p0 + list(opts.get('x29', ())))
    period(A, 30, opts=opts, dma_k=False, dma_v=False, extra=p1, vmn=4 + nv(p0))
    period(A, 31, opts=opts, dma_k=False, dma_v=False, vmn=nv(p0) + nv(p1), k_next=False, extra=opts.get('x31', ()))
    period(A, 32, tail=True, opts=opts, extra=list(opts.get('x32', ())), late=early_half(opts))


def store_setup():
    return [f'v_lshlrev_b32 {v(T0+8)}, 4, {v(LANE)}', f's_lshl_b32 s28, {s(SQB)}, 4', f's_lshl_b32 s29, {s(SW)}, 2', 's_add_u32 s28, s28, s29',
            's_lshl_b32 s28, s28, 10', f's_lshl_b32 s29, {s(SHEAD)}, 19', 's_add_u32 s28, s28, s29', f's_lshl_b32 s29, {s(SFLIP)}, 6',
            's_add_u32 s28, s28, s29', 's_xor_b32 s29, s28, 2048']


def half_store(half, stmod, packed):
    out = []; n = 0
    for k in range(4):
        for qt in (2 * half, 2 * half + 1):
            b = OACC + (qt * 8 + 2 * k) * 4
            d = SA + 4 * (n % 4) + 16 * half; n += 1
            if packed:
                out += [pk('mul', b + i, [b + i, ('b', T0 + 4 + qt)]) for i in range(0, 8, 2)]
            else:
                out += [f'v_mul_f32 {v(b+i)}, {v(b+i)}, {v(T0+4+qt)}' for i in range(8)]
            out += [f'v_cvt_pk_bf16_f32 {v(d+i)}, {v(b+2*i)}, {v(b+2*i+1)}' for i in range(4)]
            out.append(f'buffer_store_dwordx4 {v(d,4)}, {v(T0+8)}, {s(SRD_WS,4)}, s{28+half} offen offset:{(qt&1)*1024}{stmod}')
        if k < 3:
            out[-1] += f'\ns_add_u32 s{28+half}, s{28+half}, 0x20000'
    return out


def early_half(opts):
    w = [f'v_accvgpr_read_b32 {v(LS+qt)}, {a(LACC+4*qt)}' for qt in range(2)] + [f'v_rcp_f32 {v(T0+4+qt)}, {v(LS+qt)}' for qt in range(2)]
    w += half_store(0, opts.get('stmod', ''), False)
    out = [(24 + i // 4, x) for i, x in enumerate(store_setup())]
    g = 32; n = 0
    for x in w:
        out.append((min(g, 67), x))
        n += 1
        if n % 2 == 0:
            g += 1
    return out


def attn_store(A, opts=None):
    for qt in range(2, 4):
        A(f'v_accvgpr_read_b32 {v(LS+qt)}, {a(LACC+4*qt)}')
    A.label('L_attn_finish')
    for qt in range(4):
        A(f'v_cmp_ngt_f32 s[{32+2*qt}:{33+2*qt}], {s(STHR)}, {v(LS+qt)}')
    for qt in range(2, 4):
        A(f'v_rcp_f32 {v(T0+4+qt)}, {v(LS+qt)}')
    A('s_or_b64 s[32:33], s[32:33], s[34:35]')
    A('s_or_b64 s[36:37], s[36:37], s[38:39]')
    A('s_or_b64 s[32:33], s[32:33], s[36:37]')
    A(f's_and_b64 s[32:33], s[32:33], {s(SARM,2)}')
    A('s_cbranch_scc1 L_attn_exact')
    if opts.get('pre_finish'):
        A('s_barrier')
        opts['pre_finish'](A)
    for x in half_store(1, opts.get('stmod', ''), True):
        A(x)


def attn_exact(A, srd_kfull, stmod=''):
    KO = T0 + 9; M = T0 + 12; AV = SA + 0
    A.label('L_attn_exact')
    A(f's_mov_b64 {s(SARM,2)}, 0')
    A('s_waitcnt vmcnt(0)')
    A(f'v_and_b32 {v(KO)}, 15, {v(LANE)}')
    A(f'v_lshrrev_b32 {v(T0)}, 4, {v(LANE)}')
    A(f'v_lshlrev_b32 {v(T0)}, 4, {v(T0)}')
    A(f'v_lshl_add_u32 {v(KO)}, {v(KO)}, 8, {v(T0)}')
    for ks in range(4):
        A(f's_xor_b32 s{32+ks}, {s(SW)}, {ks}')
        A(f's_lshl_b32 s{32+ks}, s{32+ks}, 6')
    A(f's_and_b32 s36, {s(SW)}, 1')
    A('s_lshl_b32 s36, s36, 14')
    A(f's_lshr_b32 s37, {s(SW)}, 1')
    A('s_lshl_b32 s37, s37, 16')
    A('s_add_u32 s36, s36, s37')
    A('s_sub_u32 s37, s36, 0x10000')
    for dt in range(8):
        A(f'v_add_u32 {v(ADV+dt)}, s37, {v(ADV+dt)}')
    for i in range(4):
        A(f'v_mov_b32 {v(M+i)}, 0xff800000')
        A(f'v_mov_b32 {v(LS+i)}, 0')
    for i in range(16):
        A(f'v_mov_b32 {v(NEGM+i)}, 0')
    for i in range(128):
        A(f'v_mov_b32 {v(OACC+i)}, 0')
    A('s_mov_b32 s38, 0')
    A.label('L_ex_sweep')
    A('s_mov_b32 s39, 0')
    A.label('L_ex_tile')
    for kt in range(4):
        for ks in range(4):
            A(f's_add_u32 s31, s39, s{32+ks}')
            A(f's_add_u32 s31, s31, {4096*kt}')
            A(f'buffer_load_dwordx4 {a(KF+4*(4*kt+ks),4)}, {v(KO)}, {s(srd_kfull,4)}, s31 offen')
    A('s_cmp_eq_u32 s38, 0')
    A('s_cbranch_scc1 L_ex_nov')
    for grp in range(4):
        A(f's_add_u32 m0, s36, {4096*grp}')
        A(f's_add_u32 s31, s39, {4096*grp}')
        for i in range(4):
            A(f'buffer_load_dwordx4 {v(VOV+(i&1))}, {s(SRD_V,4)}, s31 offen offset:{1024*i} lds')
    A.label('L_ex_nov')
    A('s_waitcnt vmcnt(0)')
    for qt in range(4):
        for kt in range(4):
            S = stile(qt >> 1, qt & 1, kt)
            for ks in range(4):
                A(f'{MFMA} {v(S,4)}, {a(KF+4*(4*kt+ks),4)}, {a(QF+4*(4*qt+ks),4)}, {v(NEGM+4*qt,4) if ks == 0 else v(S,4)}')
    A('s_cmp_eq_u32 s38, 0')
    A('s_cbranch_scc0 L_ex_pv')
    A('s_nop 7')
    for qt in range(4):
        S = stile(qt >> 1, qt & 1, 0)
        for i in range(0, 16, 2):
            A(f'v_max3_f32 {v(M+qt)}, {v(M+qt)}, {v(S+i)}, {v(S+i+1)}')
    A('s_branch L_ex_next')
    A.label('L_ex_pv')
    for n in range(32):
        f, jh = n >> 1, n & 1
        A(f'ds_read_b64_tr_b16 {a(VF+4*f+2*jh,2)}, {v(ADV+(f>>1))} offset:{(32*(f&1)+16*jh)*256}')
    for i in range(64):
        A(f'v_exp_f32 {v(SA+i)}, {v(SA+i)}')
    for i in range(64):
        A(f'v_add_f32 {v(LS+(i>>4))}, {v(LS+(i>>4))}, {v(SA+i)}')
    for i in range(32):
        A(f'v_cvt_pk_bf16_f32 {v(SA+8*(i>>2)+(i&3))}, {v(SA+2*i)}, {v(SA+2*i+1)}')
    A('s_waitcnt lgkmcnt(0)')
    for qt in range(4):
        for dt in range(8):
            for kp in range(2):
                O = OACC + 4 * (8 * qt + dt)
                A(f'{MFMA} {v(O,4)}, {a(VF+4*(2*dt+kp),4)}, {v(stile(qt >> 1, qt & 1, 2*kp),4)}, {v(O,4)}')
    A.label('L_ex_next')
    A('s_add_u32 s39, s39, 16384')
    A('s_cmp_lt_u32 s39, 0x80000')
    A('s_cbranch_scc1 L_ex_tile')
    A('s_cmp_eq_u32 s38, 0')
    A('s_cbranch_scc0 L_ex_done')
    for qt in range(4):
        xlane(A, 'v_max_f32', M + qt, T0)
        for i in range(4):
            A(f'v_sub_f32 {v(NEGM+4*qt+i)}, 0, {v(M+qt)}')
    A('s_mov_b32 s38, 1')
    A('s_branch L_ex_sweep')
    A.label('L_ex_done')
    for qt in range(4):
        xlane(A, 'v_add_f32', LS + qt, T0)
    for qt in range(2):
        A(f'v_rcp_f32 {v(T0+4+qt)}, {v(LS+qt)}')
    for x in store_setup() + half_store(0, stmod, True):
        A(x)
    A('s_branch L_attn_finish')
```

```python
from asmlib import Asm, v, a, s, pk
from gen_attn16 import *

X_RING = 0
W_RING = 65536
K0_LDS = 139264
CS_LDS = 155648
VXO = 0
VWQ = 8
VW1 = 12
RX = 14
RWQ = 16
RW1 = 20
B1R = 24
CSR = 32
PT = 64
XB = 0
AR = 64
ONESA = 96
HB, HE, SUM, GRAM, CSQ, CS1 = 128, 160, 176, 192, 208, 216
SRD_X, SRD_WQ, SRD_W1, SRD_K0, SRD_H, SRD_B1 = 16, 40, 44, 48, 52, 56
SXM, SXO, SWQO, SW1O, SM1, SFLIP = 60, 61, 62, 63, 64, 65
SROT, SXT, SXT2, SWQT, SW1T = 28, 74, 75, 76, 77
NPOS = 14


def p1_lane_setup(A, exp=None):
    L = LANE; t1, t2, t3, t4 = PT, PT + 1, PT + 2, PT + 3
    A(f'v_lshrrev_b32 {v(t1)}, 3, {v(L)}')
    A(f'v_lshrrev_b32 {v(t2)}, 4, {v(L)}')
    A(f'v_and_b32 {v(t3)}, 7, {v(L)}')
    for i in range(2):
        A(f'v_add_u32 {v(t4)}, {4*i}, {v(t2)}')
        A(f'v_xor_b32 {v(t4)}, {v(t4)}, {v(t3)}')
        A(f'v_lshlrev_b32 {v(t4)}, 4, {v(t4)}')
        A(f'v_lshl_add_u32 {v(VXO+i)}, {v(t1)}, 10, {v(t4)}')
    A(f'v_add_u32 {v(VXO+1)}, 7168, {v(VXO+1)}')
    for i in range(2):
        A(f'v_add_u32 {v(VXO+2+i)}, 14336, {v(VXO+i)}')
    A(f'v_and_b32 {v(t3)}, 15, {v(L)}')
    A(f'v_lshlrev_b32 {v(t4)}, 2, {v(t2)}')
    A(f'v_xor_b32 {v(t4)}, {v(t4)}, {v(t3)}')
    A(f'v_lshlrev_b32 {v(t4)}, 4, {v(t4)}')
    A(f'v_lshl_add_u32 {v(VWQ)}, {v(t2)}, 13, {v(t4)}')
    for i in range(1, 4):
        A(f'v_add_u32 {v(VWQ+i)}, {4*i*8192 - 1024*i}, {v(VWQ)}')
    A(f's_lshl_b32 s30, {s(SHEAD)}, 6')
    A(f's_lshr_b32 s31, {s(SHEAD)}, 1')
    A('s_add_u32 s31, s31, 32')
    A('s_lshl_b32 s31, s31, 6')
    A('s_movk_i32 s29, 2752')
    if exp == 'adj':
        A('s_lshl_b32 s30, s30, 1\ns_and_b32 s30, s30, 0x7ff\ns_add_u32 s31, s30, 64')
    if exp == 'same':
        A('s_mov_b32 s31, s30')
    if exp == 'al':
        A('s_lshl_b32 s30, s30, 1\ns_and_b32 s30, s30, 0x7ff\ns_add_u32 s31, s30, 64\ns_movk_i32 s29, 2688')
    A(f'v_mov_b32 {v(PT+5)}, s31')
    for i in range(2):
        A(f'v_and_b32 {v(t3)}, 7, {v(L)}')
        A(f'v_and_b32 {v(t4)}, 1, {v(t2)}')
        A(f'v_lshlrev_b32 {v(t4)}, 1, {v(t4)}')
        A(f'v_xor_b32 {v(t3)}, {v(t3)}, {v(t4)}')
        if i:
            A(f'v_xor_b32 {v(t3)}, 4, {v(t3)}')
        A(f'v_and_b32 {v(t4)}, 3, {v(t3)}')
        A(f'v_lshlrev_b32 {v(t4)}, 4, {v(t4)}')
        A(f'v_mov_b32 {v(PT+4)}, s30')
        A(f'v_cmp_gt_u32 vcc, 4, {v(t3)}')
        A(f'v_cndmask_b32 {v(PT+4)}, {v(PT+5)}, {v(PT+4)}, vcc')
        A(f'v_add_u32 {v(t4)}, {v(t4)}, {v(PT+4)}')
        A(f'v_mad_u32_u24 {v(VW1+i)}, {v(t1)}, s29, {v(t4)}')
    A(f'v_add_u32 {v(VW1+1)}, {8*2752 - 1024}, {v(VW1+1)}')


def p1_read_setup(A):
    L = LANE; t1, t2, t3, t4 = PT, PT + 1, PT + 2, PT + 3
    A(f'v_lshrrev_b32 {v(t2)}, 4, {v(L)}')
    A(f'v_and_b32 {v(t3)}, 15, {v(L)}')
    A(f'v_lshrrev_b32 {v(t4)}, 1, {v(t3)}')
    A(f'v_lshlrev_b32 {v(t3)}, 7, {v(t3)}')
    A(f'v_add_u32 {v(t3)}, {s(SXM)}, {v(t3)}')
    for kk in range(2):
        A(f'v_add_u32 {v(t1)}, {4*kk}, {v(t2)}')
        A(f'v_xor_b32 {v(t1)}, {v(t1)}, {v(t4)}')
        A(f'v_lshl_add_u32 {v(RX+kk)}, {v(t1)}, 4, {v(t3)}')
    A(f'v_bfe_u32 {v(t3)}, {v(L)}, 2, 2')
    A(f'v_lshl_add_u32 {v(t1)}, {v(t2)}, 3, {v(t3)}')
    A(f'v_and_b32 {v(PT+4)}, 1, {v(t2)}')
    A(f'v_and_b32 {v(t2)}, 3, {v(L)}')
    A(f'v_lshlrev_b32 {v(PT+5)}, 4, {v(t2)}')
    A(f'v_lshl_add_u32 {v(PT+5)}, {v(t1)}, 8, {v(PT+5)}')
    A(f'v_add_u32 {v(PT+5)}, {W_RING}, {v(PT+5)}')
    for k in range(4):
        A(f's_xor_b32 s29, {s(SW)}, {k}')
        A(f'v_xor_b32 {v(t4)}, s29, {v(t3)}')
        A(f'v_lshl_add_u32 {v(RWQ+k)}, {v(t4)}, 6, {v(PT+5)}')
    A(f'v_lshrrev_b32 {v(t3)}, 1, {v(t3)}')
    A(f'v_lshl_add_u32 {v(t3)}, {v(PT+4)}, 1, {v(t3)}')
    A(f'v_lshlrev_b32 {v(t2)}, 3, {v(t2)}')
    A(f'v_lshl_add_u32 {v(t2)}, {v(t1)}, 7, {v(t2)}')
    A(f'v_add_u32 {v(t2)}, {W_RING + 16384}, {v(t2)}')
    for u in range(4):
        A(f'v_xor_b32 {v(t4)}, {u}, {v(t3)}')
        A(f'v_lshl_add_u32 {v(RW1+u)}, {v(t4)}, 5, {v(t2)}')
    A(f'v_mov_b32 {v(t1)}, 0x3f803f80')
    for i in range(4):
        A(f'v_accvgpr_write_b32 {a(ONESA+i)}, {v(t1)}')


class VM:
    def __init__(self):
        self.ops = []

    def add(self, tag):
        self.ops.append(tag)

    def wait_for(self, tags):
        idx = max(i for i, t in enumerate(self.ops) if t in tags)
        n = len(self.ops) - 1 - idx
        n = min(n, 63)
        return n


def x_dma(c):
    out = []
    for i in range(8):
        pre = f's_add_u32 m0, {s(SXM)}, {X_RING + (c & 1)*32768 + (i >> 2)*4096}\n' if i & 3 == 0 else ''
        if i == 0:
            pre = (f's_add_u32 s78, {s(SROT)}, {c}\ns_and_b32 s78, s78, 7\ns_lshl_b32 s78, s78, 7\n'
                   f's_add_u32 {s(SXT)}, {s(SXO)}, s78\ns_xor_b32 {s(SXT2)}, {s(SXT)}, 0x8000\n') + pre
        so = SXT if i < 4 else SXT2
        out.append((pre, f'buffer_load_dwordx4 {v(VXO+(i&3))}, {s(SRD_X,4)}, {s(so)} offen offset:{1024*(i&3)} lds'))
    return out


def w_dma(c):
    sl = W_RING + (c % 3) * 24576
    out = []
    for i in range(4):
        pre = ''
        if i == 0:
            pre = (f's_add_u32 s78, {s(SROT)}, {c}\ns_and_b32 s78, s78, 7\ns_lshl_b32 s79, s78, 19\n'
                   f's_add_u32 {s(SWQT)}, {s(SWQO)}, s79\ns_mul_i32 s79, s78, {64*2752}\ns_add_u32 {s(SW1T)}, {s(SW1O)}, s79\n'
                   f's_add_u32 m0, {s(SM0)}, {sl}\n')
        out.append((pre, f'buffer_load_dwordx4 {v(VWQ+i)}, {s(SRD_WQ,4)}, {s(SWQT)} offen offset:{1024*i} lds'))
    for i in range(2):
        pre = f's_add_u32 m0, {s(SM1)}, {sl + 16384}\n' if i == 0 else ''
        out.append((pre, f'buffer_load_dwordx4 {v(VW1+i)}, {s(SRD_W1,4)}, {s(SW1T)} offen offset:{1024*i} lds'))
    return out


def kv_list(which, slot, srd=None):
    out = []
    for i in range(4):
        if which == 'K':
            pre = f's_add_u32 m0, {s(SM0)}, {slot*16384}\n' if i == 0 else ''
            out.append((pre, f'buffer_load_dwordx4 {v(VOK+i)}, {s(srd or SRD_K,4)}, {s(SOFF)} offen offset:{1024*i} lds'))
        else:
            pre = f's_add_u32 m0, {s(SM0)}, {65536+slot*16384}\n' if i == 0 else ''
            out.append((pre, f'buffer_load_dwordx4 {v(VOV+(i&1))}, {s(SRD_V,4)}, {s(SOFF)} offen offset:{1024*i} lds'))
    return out


def tile_reads(c, t):
    out = []
    for kk in range(2):
        for jh in range(2):
            dst = a(AR + 8 * (t % 4) + 4 * kk + 2 * jh, 2)
            if t < 8:
                off = (c % 3) * 24576 + (32 * kk + 4 * jh) * 256 + 8 * (t & 1)
                out.append(f'ds_read_b64_tr_b16 {dst}, {v(RWQ+(t>>1))} offset:{off}')
            else:
                off = (c % 3) * 24576 + (32 * kk + 4 * jh) * 128
                out.append(f'ds_read_b64_tr_b16 {dst}, {v(RW1+t-8)} offset:{off}')
    return out


def x_reads(c):
    out = []
    for kk in range(2):
        for qt in range(4):
            out.append(f'ds_read_b128 {a(XB+32*(c&1)+4*(4*kk+qt),4)}, {v(RX+kk)} offset:{X_RING+(c&1)*32768+qt*2048}')
    return out


def tile_mfmas(c, pos):
    xs = XB + 32 * (c & 1)
    out = []

    def mm(acc, A_, B_, kk):
        out.append(f'{MFMA} {acc}, {A_}, {B_}, {0 if (c == 0 and kk == 0) else acc}')
    xf = lambda kk, qt: a(xs + 4 * (4 * kk + qt), 4)
    ones = a(ONESA, 4)
    if pos < 12:
        wf = lambda kk: a(AR + 8 * (pos % 4) + 4 * kk, 4)
        nq = 2 if pos >= 10 else 4
        for qt in range(nq):
            if pos < 8:
                acc = v(OACC + 4 * (8 * qt + pos), 4)
            elif pos < 10:
                acc = a(HB + 4 * (4 * (pos - 8) + qt), 4)
            else:
                acc = a(HE + 4 * (2 * (pos - 10) + qt), 4)
            for kk in range(2):
                mm(acc, wf(kk), xf(kk, qt), kk)
        if pos < 2 or pos >= 8:
            acc = a(CSQ + 4 * pos, 4) if pos < 2 else a(CS1 + 4 * (pos - 8), 4)
            for kk in range(2):
                mm(acc, wf(kk), ones, kk)
    else:
        for qt in (2 * (pos - 12), 2 * (pos - 12) + 1):
            for kk in range(2):
                mm(a(SUM + 4 * qt, 4), ones, xf(kk, qt), kk)
            for kk in range(2):
                mm(a(GRAM + 4 * qt, 4), xf(kk, qt), xf(kk, qt), kk)
    return out


def phase1(A, vm, diag=False, side=(), early=0, side2=()):
    lds = []
    done = [-1]

    def lds_wait(tag):
        idx = max(i for i, t in enumerate(lds) if t == tag)
        if idx > done[0]:
            n = len(lds) - 1 - idx
            A(f's_waitcnt lgkmcnt({min(n, 15)})')
            done[0] = idx

    A(f's_waitcnt vmcnt({vm.wait_for([("x", 0), ("W", 0)])})')
    if diag:
        A('s_memrealtime s[66:67]\ns_waitcnt lgkmcnt(0)\nv_writelane_b32 v63, s66, 12')
    A('s_barrier')
    if diag:
        A('s_memrealtime s[66:67]\ns_waitcnt lgkmcnt(0)\nv_writelane_b32 v63, s66, 13')
    for r in x_reads(0):
        A(r); lds.append(('x', 0))
    for t in range(2):
        for r in tile_reads(0, t):
            A(r); lds.append(('t', 0, t))
    for c in range(8):
        if diag:
            A(f's_memrealtime s[{66+2*(c&1)}:{67+2*(c&1)}]')
            if c:
                A(f'v_writelane_b32 v63, s{66+2*((c-1)&1)}, {c-1}')
        if c == 5:
            assert not side
            side = side2
        for pos in range(NPOS):
            mf = tile_mfmas(c, pos)
            fill = [[] for _ in mf]
            slot = [0]

            def put(txt, tag=None, kind=None, at=None):
                i = slot[0] if at is None else at
                fill[i].append((txt, tag, kind))
                if at is None:
                    slot[0] += 1

            def put_dma(lst, tag):
                for pre, ins in lst:
                    if pre:
                        fill[max(slot[0] - 1, 0)].append((pre.strip(), None, None))
                        slot[0] = max(slot[0], 1)
                    put(ins, tag, 'vm')
            if pos == 12:
                if c < 7:
                    put(('vmwait', [('W', c + 1)]))
                put('s_barrier')
            nxt = (c, pos + 2) if pos + 2 < 12 else ((c + 1, pos - 12) if pos >= 12 and c < 7 else None)
            if nxt:
                for r in tile_reads(*nxt):
                    put(r, ('t',) + nxt, 'lds')
            if c < 7:
                if pos == 10:
                    put(('vmwait', [('x', c + 1)]))
                if pos in (10, 11):
                    for r in x_reads(c + 1)[4 * (pos - 10):4 * (pos - 10) + 4]:
                        put(r, ('x', c + 1), 'lds')
            if c == 0:
                plan0 = {0: (x_dma(1)[:4], ('x', 1)), 1: (x_dma(1)[4:], ('x', 1)), 2: (w_dma(1)[:3], ('W', 1)), 3: (w_dma(1)[3:], ('W', 1)),
                         4: (x_dma(2)[:4], ('x', 2)), 5: (x_dma(2)[4:], ('x', 2)), 6: (w_dma(2)[:3], ('W', 2)), 7: (w_dma(2)[3:], ('W', 2))}
                if early:
                    plan0 = {k - 4: x for k, x in plan0.items() if k >= 4}
                if pos in plan0:
                    put_dma(*plan0[pos])
            elif pos in (0, 1, 2, 3) and c + 2 <= 7:
                put_dma(x_dma(c + 2)[2 * pos:2 * pos + 2], ('x', c + 2))
            if pos in (12, 13) and c + 3 <= 7:
                put_dma(w_dma(c + 3)[2 * (pos - 12) + 0:2 + 4 * (pos - 12)], ('W', c + 3))
            if c == 6 and pos == 4:
                put_dma([(f's_add_u32 m0, {s(SM0)}, {K0_LDS}\n' if i == 0 else '',
                          f'buffer_load_dwordx4 {v(VOK+i)}, {s(SRD_K0,4)}, {s(SOFF)} offen offset:{1024*i} lds') for i in range(4)], 'k0')
            if c == 7 and pos in (0, 1, 2):
                lst = [kv_list('K', 0), kv_list('V', 0), kv_list('K', 1)][pos]
                put_dma(lst, ('kv', 0 if pos < 2 else 1))
                if pos == 1:
                    fill[-1].append((f's_add_u32 {s(SOFF)}, {s(SOFF)}, 16384', None, None))
            if c == 7 and pos == 12:
                put_dma(kv_list('V', 1), ('kv', 1))
                fill[-1].append((f's_add_u32 {s(SOFF)}, {s(SOFF)}, 16384', None, None))
            if pos < 12:
                lds_wait(('t', c, pos))
            for m, fl in zip(mf, fill):
                A(m)
                if not fl and side and (c, pos) >= (0, 8):
                    for _ in range(2):
                        if side:
                            txt, tag = side.pop(0)
                            A(txt)
                            if tag:
                                vm.add(tag)
                            if tag or txt.startswith('s_add_u32 m0'):
                                break
                for txt, tag, kind in fl:
                    if isinstance(txt, tuple):
                        A(f's_waitcnt vmcnt({vm.wait_for(txt[1])})')
                        continue
                    A(txt)
                    if kind == 'lds':
                        lds.append(tag)
                    elif kind == 'vm':
                        vm.add(tag)


def p1_epilogue(A, vm, stmod=''):
    L = LANE
    lo = PT; t0 = PT + 1; t1 = PT + 2; t2 = PT + 3; t3 = PT + 4
    NMU, AQ, AH = T0, T0 + 4, T0 + 8
    A(f'v_lshlrev_b32 {v(lo)}, 4, {v(L)}')
    A(f's_lshl_b32 s29, {s(SW)}, 11')
    A(f's_add_u32 s29, s29, {CS_LDS}')
    A(f'v_add_u32 {v(t0)}, s29, {v(lo)}')
    for e in range(2):
        A(f'ds_write_b128 {v(t0)}, {a(CSQ+4*e,4)} offset:{1024*e}')
    A(f'v_and_b32 {v(t1)}, 3, {v(L)}')
    for k in range(1, 4):
        A(f'v_cmp_eq_u32 s[{66+2*k}:{67+2*k}], {k}, {v(t1)}')
    A(f'v_bfe_u32 {v(t1)}, {v(L)}, 2, 2')
    A(f'v_lshrrev_b32 {v(t2)}, 4, {v(L)}')
    A(f'v_cmp_eq_u32 s[74:75], {v(t1)}, {v(t2)}')
    A('s_mov_b32 s76, 0x3b000000')
    A('s_mov_b32 s77, 0x3727c5ac')
    A('s_mov_b32 s78, 0x3e0293ee')
    A(f's_waitcnt vmcnt({vm.wait_for(["k0"])}) lgkmcnt(0)')
    A('s_barrier')
    for k in range(4):
        A(f's_xor_b32 s29, {s(SW)}, {k}')
        A('s_lshl_b32 s29, s29, 11')
        A(f's_add_u32 s29, s29, {CS_LDS}')
        A(f'v_add_u32 {v(t0)}, s29, {v(lo)}')
        for e in range(2):
            A(f'ds_read_b128 {v(CSR+4*(2*k+e),4)}, {v(t0)} offset:{1024*e}')
    for qt in range(4):
        g = PT + 8
        for r in range(4):
            A(f'v_accvgpr_read_b32 {v(g+r)}, {a(GRAM+4*qt+r)}')
        A(f'v_accvgpr_read_b32 {v(t1)}, {a(SUM+4*qt)}')
        for k in range(1, 4):
            A(f'v_cndmask_b32 {v(g)}, {v(g)}, {v(g+k)}, s[{66+2*k}:{67+2*k}]')
        A(f'v_cndmask_b32 {v(g)}, 0, {v(g)}, s[74:75]')
        xlane(A, 'v_add_f32', g, g + 1)
        A(f'v_mul_f32 {v(t1)}, s76, {v(t1)}')
        A(f'v_mul_f32 {v(g)}, s76, {v(g)}')
        A(f'v_fma_f32 {v(g)}, -{v(t1)}, {v(t1)}, {v(g)}')
        A(f'v_max_f32 {v(g)}, 0, {v(g)}')
        A(f'v_add_f32 {v(t2)}, s77, {v(g)}')
        A(f'v_rsq_f32 {v(t2)}, {v(t2)}')
        A(f'v_sub_f32 {v(NMU+qt)}, 0, {v(t1)}')
        A(f'v_mul_f32 {v(g)}, {v(g)}, {v(t2)}')
        A(f'v_fma_f32 {v(g)}, {v(g)}, {v(t2)}, s77')
        A(f'v_rsq_f32 {v(g)}, {v(g)}')
        A(f'v_mul_f32 {v(AQ+qt)}, s78, {v(t2)}')
        A(f'v_mul_f32 {v(AH+qt)}, {v(g)}, {v(t2)}')
    A('s_waitcnt lgkmcnt(0)')
    for qt in range(4):
        for k in range(4):
            b = OACC + 4 * (8 * qt + 2 * k)
            for i in range(0, 8, 2):
                A(pk('fma', b + i, [('b', NMU + qt), CSR + 8 * k + i, b + i]))
            for i in range(0, 8, 2):
                A(pk('mul', b + i, [('b', AQ + qt), b + i]))
            for i in range(4):
                A(f'v_cvt_pk_bf16_f32 {v(b+i)}, {v(b+2*i)}, {v(b+2*i+1)}')
            for i in range(4):
                A(f'v_accvgpr_write_b32 {a(QF+4*(4*qt+k)+i)}, {v(b+i)}')
    C1 = CSR; BB = CSR + 16
    A(f's_waitcnt vmcnt({vm.wait_for(["b1"])})')
    for i in range(16):
        A(f'v_accvgpr_read_b32 {v(C1+i)}, {a(CS1+i)}')
        src = B1R + (i >> 1)
        A(f'v_and_b32 {v(BB+i)}, 0xffff0000, {v(src)}' if i & 1 else f'v_lshlrev_b32 {v(BB+i)}, 16, {v(src)}')
    A('s_mov_b32 s66, 0xc0135761')
    A('s_mov_b32 s67, 0xbdd2d3e8')
    A(f'v_mov_b32 {v(T0+12)}, s66')
    A(f's_lshl_b32 s29, {s(SQB)}, 4')
    A(f's_lshl_b32 s30, {s(SW)}, 2')
    A('s_add_u32 s29, s29, s30')
    A('s_lshl_b32 s29, s29, 10')
    A(f's_lshl_b32 s30, {s(SFLIP)}, 6')
    A(f's_lshl_b32 s31, {s(SHEAD)}, 17')
    A('s_add_u32 s31, s31, s29')
    A('s_add_u32 s68, s31, s30')
    A('s_xor_b32 s69, s68, 2048')
    A(f's_lshr_b32 s31, {s(SHEAD)}, 1')
    A('s_add_u32 s31, s31, 32')
    A('s_lshl_b32 s31, s31, 17')
    A('s_add_u32 s31, s31, s29')
    A('s_add_u32 s70, s31, s30')
    n = 0
    for pair, nq in ((0, 4), (1, 2)):
        for qt in range(nq):
            w = OACC + 16 * (n % 4); u = w + 8; n += 1
            for i in range(8):
                e, r = i >> 2, i & 3
                src = (HB + 4 * (4 * e + qt) + r) if pair == 0 else (HE + 4 * (2 * e + qt) + r)
                A(f'v_accvgpr_read_b32 {v(w+i)}, {a(src)}')
            ev = range(0, 8, 2)
            for i in ev:
                A(pk('fma', w + i, [('b', NMU + qt), C1 + 8 * pair + i, w + i]))
            for i in ev:
                A(pk('fma', w + i, [('b', AH + qt), w + i, BB + 8 * pair + i]))
            for i in ev:
                A(pk('mul', u + i, [w + i, w + i]))
            for i in ev:
                A(pk('fma', u + i, [u + i, ('bs', 67), ('b', T0 + 12)]))
            for i in ev:
                A(pk('mul', u + i, [u + i, w + i]))
            for i in range(8):
                A(f'v_exp_f32 {v(u+i)}, {v(u+i)}')
            for i in ev:
                A(pk('add', u + i, [u + i, '1.0']))
            for i in range(8):
                A(f'v_rcp_f32 {v(u+i)}, {v(u+i)}')
            for i in ev:
                A(pk('mul', w + i, [w + i, u + i]))
            for i in range(4):
                A(f'v_cvt_pk_bf16_f32 {v(u+i)}, {v(w+2*i)}, {v(w+2*i+1)}')
            so = 70 if pair else (68 if qt < 2 else 69)
            A(f'buffer_store_dwordx4 {v(u,4)}, {v(lo)}, {s(SRD_H,4)}, s{so} offen offset:{1024*(qt&1)}{stmod}')
            vm.add('hst')
```

```python
from asmlib import Asm, v, a, s
from gen_attn16 import SW, SHEAD, SQB, SM0, SRD_WS, LANE, VOV
from gen_p1 import SRD_H, VM

MFMA = 'v_mfma_f32_16x16x32_bf16'
WS_X = 24 << 20
X_BYTES = 12 << 20
NS = 22
RING = 5
BBASE = RING * 16384
AH = 4

ACC, AF, BF = 0, 128, 192
VB, VA, RA, RB, XR, T = 127, 92, 64, 72, 104, 80
SRD_W, SRD_XC, SRD_B, SRD_DBG, SRD_XO, SRD_B2 = 40, 44, 8, 16, 4, 56
SKQ, SAO, SBO, SHAVE, SKS, SFO, SLIM, SALL = 26, 60, 61, 62, 63, 64, 25, 23
ZERO = T + 10


WS_F = 40 << 20
SRD_F = 72
SFA, SFB, SFC = 76, 77, 71
SPUB = 70


def flag_setup(A, ws_lo, ws_hi):
    A(f's_add_u32 s{SRD_F}, s{ws_lo}, {WS_F}\ns_addc_u32 s{SRD_F+1}, s{ws_hi}, 0')
    A(f's_movk_i32 s{SRD_F+2}, 16384\ns_mov_b32 s{SRD_F+3}, 0x20000')
    A(f's_lshl_b32 s30, {s(SQB)}, 11')
    A(f's_lshl_b32 s31, {s(SHEAD)}, 2')
    A('s_add_u32 s30, s30, s31')
    A(f's_lshl_b32 s31, {s(SW)}, 7')
    A('s_add_u32 s30, s30, s31')
    A(f's_add_u32 s{SFC}, s30, 1536')
    for d, lo, hi in ((SFA, 11, 22), (SFB, 10, 21)):
        A(f's_cmp_ge_u32 {s(SHEAD)}, {lo}\ns_cselect_b32 s31, 512, 0\ns_add_u32 s{d}, s30, s31')
        A(f's_cmp_ge_u32 {s(SHEAD)}, {hi}\ns_cselect_b32 s31, 512, 0\ns_add_u32 s{d}, s{d}, s31')
    A(f's_lshl_b32 {s(SFO)}, {s(SQB)}, 2')
    A('s_and_b32 s31, s2, 3')
    A(f's_add_u32 {s(SFO)}, {s(SFO)}, s31')
    A(f's_lshl_b32 {s(SFO)}, {s(SFO)}, 2')
    A('s_bfe_u32 s31, s2, 0x10002')
    A('s_lshl_b32 s31, s31, 1')
    A(f's_add_u32 {s(SFO)}, {s(SFO)}, s31')
    A(f's_and_b32 s31, {s(SW)}, 1')
    A(f's_add_u32 {s(SFO)}, {s(SFO)}, s31')
    A(f's_lshl_b32 {s(SFO)}, {s(SFO)}, 7')


def flag_store(val, d, z):
    out = ['s_mov_b64 exec, 1', f'v_mov_b32 v{d}, {val}'] + \
          [f'buffer_store_dword v{d}, v{z}, {s(SRD_F,4)}, s{o} offen sc1' for o in (SFA, SFB, SFC)] + ['s_mov_b64 exec, -1']
    return '\n'.join(out)


def publish(label):
    return '\n'.join([f's_cmp_lg_u32 s{SPUB}, 0', f's_cbranch_scc1 {label}', flag_store(1, T + 7, ZERO), f's_mov_b32 s{SPUB}, 1', f'{label}:'])


def signal_ready(label):
    out = [f's_cmp_lg_u32 {s(SW)}, 0', f's_cbranch_scc1 {label}', f's_lshl_b32 s30, 1, {s(SHEAD)}', f's_lshl_b32 s31, {s(SQB)}, 2',
           's_mov_b64 exec, 1', 'v_mov_b32 v124, s30',
           f'buffer_atomic_or v124, v125, {s(SRD_DBG,4)}, s31 offen sc1',
           's_mov_b64 exec, -1', f'{label}:']
    return '\n'.join(out)


def ready_load():
    return f's_lshl_b32 s31, {s(SQB)}, 2\nbuffer_load_dword v124, v125, {s(SRD_DBG,4)}, s31 offen sc1'


def first_look(lane4):
    return f'buffer_load_dword v103, {v(lane4)}, {s(SRD_F,4)}, {s(SFO)} offen sc1'


COLD = []


def poll(tag, need, pub=False):
    COLD.append('\n'.join([f'L_p{tag}:'] + (['s_waitcnt vmcnt(0)', publish(f'L_s{tag}')] if pub else []) + [f'buffer_load_dword {v(T+8)}, {v(T+9)}, {s(SRD_F,4)}, {s(SFO)} offen sc1', 's_waitcnt vmcnt(0)',
                           f'v_cmp_eq_u32 vcc, 1, {v(T+8)}', f's_sub_u32 {s(SLIM)}, {s(SLIM)}, 1', f's_mov_b32 {s(SHAVE)}, vcc_lo',
                           f's_cbranch_scc1 L_r{tag}', f's_andn2_b32 s31, {need}, {s(SHAVE)}', f's_cbranch_scc1 L_p{tag}', f's_branch L_q{tag}',
                           f'L_r{tag}:', f's_mov_b32 {s(SLIM)}, 0', f's_branch L_q{tag}']))
    return '\n'.join([f's_andn2_b32 s31, {need}, {s(SHAVE)}', f's_cbranch_scc1 L_p{tag}', f'L_q{tag}:'])


def tail_loads(A):
    A('s_load_dwordx2 s[32:33], s[0:1], 0')
    A('s_load_dwordx4 s[36:39], s[0:1], 72')


SXOFF, SCOFF = 66, 67


def presetup():
    B = Asm()
    B(f's_and_b32 {s(SKQ)}, s2, 3')
    B(f's_cmp_eq_u32 {s(SKQ)}, 3\ns_cselect_b32 s29, 0, {s(SKQ)}\ns_cselect_b32 {s(SALL)}, 0, -1')
    B('s_mul_i32 s29, s29, 43')
    B(f's_lshl_b32 {s(SAO)}, s29, 15')
    B(f's_lshl_b32 s30, {s(SW)}, 14')
    B(f's_add_u32 {s(SAO)}, {s(SAO)}, s30')
    B('s_bfe_u32 s28, s2, 0x20003')
    B(f's_lshl_b32 {s(SCOFF)}, s28, 8')
    B(f's_add_u32 {s(SAO)}, {s(SAO)}, {s(SCOFF)}')
    B(f's_lshr_b32 {s(SKS)}, {s(SW)}, 1')
    B(f's_lshl_b32 s31, {s(SKS)}, 7')
    B(f's_add_u32 {s(SCOFF)}, {s(SCOFF)}, s31')
    B(f's_add_u32 {s(SKS)}, {s(SKS)}, s29')
    B(f's_lshl_b32 {s(SBO)}, {s(SKS)}, 17')
    B(f's_lshl_b32 s29, {s(SQB)}, 4')
    B('s_bfe_u32 s30, s2, 0x10002')
    B('s_lshl_b32 s30, s30, 3')
    B('s_add_u32 s29, s29, s30')
    B(f's_and_b32 s68, {s(SW)}, 1')
    B('s_lshl_b32 s68, s68, 2')
    B('s_add_u32 s29, s29, s68')
    B('s_lshl_b32 s30, s29, 10')
    B(f's_add_u32 {s(SBO)}, {s(SBO)}, s30')
    B(f's_add_u32 s29, s29, {s(SKQ)}')
    B(f's_lshl_b32 {s(SXOFF)}, s29, 14')
    B(f's_add_u32 {s(SXOFF)}, {s(SXOFF)}, {s(SCOFF)}')
    B(f's_mov_b32 s{SPUB}, 0')
    B(f's_mov_b32 {s(SLIM)}, 0x40000')
    B(f'v_lshrrev_b32 {v(T+2)}, 4, {v(LANE)}')
    B(f'v_mul_u32_u24 {v(T+2)}, 0x300, {v(T+2)}')
    for i in range(2):
        B(f'v_add_u32 {v(VA+i)}, {v(VOV+i)}, {v(T+2)}')
    B(f'v_add_u32 {v(VA+1)}, 3072, {v(VA+1)}')
    for i in range(2):
        B(f'v_add_u32 {v(VA+2+i)}, 6144, {v(VA+i)}')
    items = []
    for l in B.lines:
        if l.startswith('s_cselect'):
            items[-1] += '\n' + l
        else:
            items.append(l)
    return [(5 + 2 * i, x) for i, x in enumerate(items)]


def tail(A, o):
    st_ = o.get('stamp')
    ld = o.get('ldmod', ' sc1')
    vm = VM()
    vm.add('O')
    L = LANE
    A('s_waitcnt vmcnt(16)')
    A('v_cmp_eq_u32 vcc, 1, v103')
    A('v_readfirstlane_b32 s69, v124')
    A(f'v_lshlrev_b32 {v(T+9)}, 2, {v(L)}')
    A(f'v_mov_b32 {v(ZERO)}, 0')
    A(f's_mov_b32 {s(SHAVE)}, vcc_lo')
    A(f's_cmp_eq_u32 {s(SKQ)}, 3')
    for i in range(3):
        A(f's_cselect_b32 {s(SRD_B+i)}, {s(SRD_H+i)}, {s(SRD_WS+i)}')

    def a_list(st):
        slot = st % RING
        return [(f's_add_u32 m0, {s(SM0)}, {slot*16384}' if i == 0 else None,
                 f'buffer_load_dwordx4 {v(VA+i)}, {s(SRD_W,4)}, {s(SAO)} offen offset:{1024*i} lds' + (f'\ns_add_u32 {s(SAO)}, {s(SAO)}, 0x10000' if i == 3 else ''))
                for i in range(4)]

    def b_list(st):
        slot = st % RING
        pre = [f's_lshr_b32 s30, {s(SKS)}, 2\ns_min_u32 s30, s30, 31', f's_lshl_b32 s30, 1, s30\ns_and_b32 s30, s30, {s(SALL)}',
               poll(f'b{st}', 's30', st < AH), f's_add_u32 {s(SKS)}, {s(SKS)}, 2\ns_add_u32 m0, {s(SM0)}, {BBASE + slot*16384}']
        return [(pre if i == 0 else None,
                 f'buffer_load_dwordx4 {v(VB)}, {s(SRD_B,4)}, {s(SBO)} offen offset:{1024*i}{ld} lds' + (f'\ns_add_u32 {s(SBO)}, {s(SBO)}, 0x40000' if i == 3 else ''))
                for i in range(4)]

    def run(lst, tag):
        for pre, x in lst:
            if pre:
                A(('\n'.join(pre) if isinstance(pre, list) else pre) + '\ns_nop 0')
            A(x); vm.add(tag)

    def read_list(st):
        slot = st % RING; se = st & 1; win = slot // 4; off0 = (slot % 4) * 16384
        out = []
        nk = 1 if st == NS - 1 else 2
        for kk in range(nk):
            for qt in range(4):
                out.append(f'ds_read_b128 {v(BF+32*se+4*(4*kk+qt),4)}, {v(RB+4*win+qt)} offset:{off0 + kk*8192}')
        for nt in range(4):
            for kk in range(nk):
                for jh in range(2):
                    off = off0 + (32 * kk + 16 * jh) * 256
                    out.append(f'ds_read_b64_tr_b16 {v(AF+32*se+4*(4*kk+nt)+2*jh,2)}, {v(RA+4*win+nt)} offset:{off}')
        return out

    A('s_cmp_lg_u32 s69, -1')
    A('s_cbranch_scc1 L_rdy')
    A.label('L_rdy_ok')
    COLD.append('\n'.join(['L_rdy:', f's_mov_b32 {s(SHAVE)}, 0', 's_waitcnt vmcnt(0)', publish('L_rdy_s'), f's_lshl_b32 s31, {s(SQB)}, 2',
                           f'buffer_load_dword {v(T+8)}, {v(ZERO)}, {s(SRD_DBG,4)}, s31 offen sc1', 's_waitcnt vmcnt(0)',
                           f'v_readfirstlane_b32 s69, {v(T+8)}', f's_sub_u32 {s(SLIM)}, {s(SLIM)}, 1', 's_cbranch_scc1 L_rdy_t',
                           's_cmp_lg_u32 s69, -1', 's_cbranch_scc1 L_rdy', 's_branch L_rdy_ok',
                           'L_rdy_t:', f's_mov_b32 {s(SLIM)}, 0', 's_branch L_rdy_ok']))
    if st_:
        A('s_memrealtime s[52:53]')
    for st in range(AH):
        run(a_list(st), ('A', st))
        run(b_list(st), ('B', st))
    A(f'v_lshrrev_b32 {v(T+2)}, 2, {v(L)}')
    A(f'v_and_b32 {v(T+3)}, 7, {v(T+2)}')
    A(f'v_and_b32 {v(T+4)}, 3, {v(L)}')
    A(f'v_lshlrev_b32 {v(T+4)}, 3, {v(T+4)}')
    A(f'v_lshl_add_u32 {v(T+4)}, {v(T+2)}, 8, {v(T+4)}')
    A(f's_and_b32 s30, {s(SW)}, 2')
    A('s_lshl_b32 s30, s30, 1')
    for k in range(4):
        A(f's_add_u32 s31, s30, {k}')
        A(f'v_xor_b32 {v(T+5)}, s31, {v(T+3)}')
        A(f'v_lshl_add_u32 {v(RA+k)}, {v(T+5)}, 5, {v(T+4)}')
        A(f'v_add_u32 {v(RA+4+k)}, 0x10000, {v(RA+k)}')
    for qt in range(4):
        A(f's_xor_b32 s31, {s(SKQ)}, {qt}')
        A('s_add_u32 s31, s31, s68')
        A('s_lshl_b32 s31, s31, 10')
        A(f's_add_u32 s31, s31, {BBASE}')
        A(f'v_add_u32 {v(RB+qt)}, s31, {v(VB)}')
        A(f'v_add_u32 {v(RB+4+qt)}, 0x10000, {v(RB+qt)}')
    A(f'v_and_b32 {v(T+2)}, 15, {v(L)}')
    A(f'v_lshrrev_b32 {v(T+3)}, 4, {v(L)}')
    A(f'v_lshlrev_b32 {v(T+3)}, 3, {v(T+3)}')
    A(f'v_lshl_add_u32 {v(T+5)}, {v(T+2)}, 10, {v(T+3)}')
    A('s_waitcnt lgkmcnt(0)')
    A(f's_mov_b32 {s(SRD_XO)}, s32\ns_mov_b32 {s(SRD_XO+1)}, s33\ns_mov_b32 {s(SRD_XO+2)}, 0x200000')
    A(f's_mov_b32 {s(SRD_B2)}, s36\ns_mov_b32 {s(SRD_B2+1)}, s37\ns_mov_b32 {s(SRD_B2+2)}, 1024\ns_mov_b32 {s(SRD_B2+3)}, 0x20000')
    for nt in range(4):
        A(f'buffer_load_dwordx2 {v(XR+2*nt,2)}, {v(T+5)}, {s(SRD_XO,4)}, s66 offen offset:{32*nt}'); vm.add('x')
        A(f'buffer_load_dwordx2 {v(XR+8+2*nt,2)}, {v(T+3)}, {s(SRD_B2,4)}, s67 offen offset:{32*nt}'); vm.add('x')
    A(f's_waitcnt vmcnt({vm.wait_for([("A", 0), ("B", 0)])})')
    A(publish('L_pub'))
    A('s_barrier')
    if st_:
        A('s_memrealtime s[54:55]')
    lds = []

    def rtag(st, i):
        nk = 1 if st == NS - 1 else 2
        return (st, 0) if i < 4 * nk + 2 * nk else (st, (i - 4 * nk) // (2 * nk))
    for i, x in enumerate(read_list(0)):
        A(x); lds.append(rtag(0, i))
    for st in range(NS):
        nk = 1 if st == NS - 1 else 2
        mf = []
        for nt in range(4):
            for qt in range(4):
                for kk in range(nk):
                    c = ACC + 4 * (4 * nt + qt)
                    mf.append(f'{MFMA} {v(c,4)}, {v(AF+32*(st&1)+4*(4*kk+nt),4)}, {v(BF+32*(st&1)+4*(4*kk+qt),4)}, {0 if st == 0 and kk == 0 else v(c,4)}')
        fill = [[] for _ in mf]
        if st + 1 < NS:
            fill[0].append((f's_waitcnt vmcnt({vm.wait_for([("A", st + 1), ("B", st + 1)])})', None))
            fill[0].append(('s_barrier', None))
            dpos = [4, 8, 12, 16, 20, 24, 28, 31]
            rpos = [g for g in range(1, 32) if g not in dpos]
            rl = read_list(st + 1)
            rpos = rpos[:len(rl) - 1] + [rpos[-1]] if len(rl) > len(rpos) else rpos
            for i, x in enumerate(rl):
                fill[rpos[min(i, len(rpos) - 1)]].append((x, ('L',) + rtag(st + 1, i)))
            if st + AH < NS:
                for i, (pre, x) in enumerate(a_list(st + AH) + b_list(st + AH)):
                    if isinstance(pre, list):
                        for k, y in enumerate(pre):
                            fill[dpos[i] - len(pre) + k].append((y, None))
                    elif pre:
                        fill[dpos[i] - 1].append((pre, None))
                    fill[dpos[i]].insert(0, (x, ('AB'[i >> 2], st + AH)))
            if st == NS - 4:
                fill[18].append((f's_andn2_b32 {s(SFO)}, s{SFC}, 0x7f', None))
                fill[20].append((f'buffer_load_dword {v(T+8)}, {v(T+9)}, {s(SRD_F,4)}, {s(SFO)} offen sc1', 'flag'))
        for g, (m, fl) in enumerate(zip(mf, fill)):
            if g % (4 * nk) == 0:
                idx = max(i for i, tg in enumerate(lds) if tg == (st, g // (4 * nk)))
                A(f's_waitcnt lgkmcnt({min(len(lds) - 1 - idx, 15)})')
            A(m)
            for x, tag in fl:
                A(x)
                if tag and tag[0] == 'L':
                    lds.append(tag[1:])
                elif tag:
                    vm.add(tag)
    if st_:
        A('s_memrealtime s[58:59]')
    A(f'v_cmp_eq_u32 vcc, 1, {v(T+8)}')
    A(f's_and_b32 s29, {s(SHEAD)}, 0x13')
    A('s_lshl_b32 s30, 0x1111, s29')
    A(f's_mov_b32 {s(SHAVE)}, vcc_lo')
    A(poll('x', 's30'))
    for j in (1, 2, 3):
        A(f's_xor_b32 s31, s2, {j}')
        A('s_mul_i32 s31, s31, 49152')
        A(f's_add_u32 s31, s31, {s(SM0)}')
        A(f's_add_u32 s31, s31, {(j-1)*16384}')
        for nt in range(4):
            for r in range(4):
                A(f'v_min_u32 {v(ACC+4*(4*nt+j)+r)}, -2, {v(ACC+4*(4*nt+j)+r)}')
            A(f'buffer_store_dwordx4 {v(ACC+4*(4*nt+j),4)}, {v(VB)}, {s(SRD_XC,4)}, s31 offen offset:{1024*nt} sc1')
    A('s_mul_i32 s49, s2, 49152')
    A(f's_add_u32 s49, s49, {s(SM0)}')
    A('s_add_u32 s50, s49, 16384')
    A('s_add_u32 s51, s49, 32768')
    A(f's_mov_b32 {s(SRD_XO)}, s38\ns_mov_b32 {s(SRD_XO+1)}, s39')
    A('s_mov_b32 s67, 0xbfb8aa3b')
    for j in (1, 2, 3):
        A(f's_cmp_eq_u32 {s(SKQ)}, {3 ^ j}')
        A(f's_cselect_b64 s[{30+2*j}:{31+2*j}], -1, 0')
    R = AF
    A.label('L_x_poll')
    for j in (1, 2, 3):
        for nt in range(4):
            A(f'buffer_load_dwordx4 {v(R+16*(j-1)+4*nt,4)}, {v(VB)}, {s(SRD_XC,4)}, s{48+j} offen offset:{1024*nt} sc1')
    for j in range(3):
        A(f's_waitcnt vmcnt({8-4*j})')
        b = R + 16 * j
        A(f'v_max3_u32 {v(T+6)}, {v(b)}, {v(b+1)}, {v(b+2) if j == 0 else v(T+6)}')
        rest = list(range(3 if j == 0 else 2, 16))
        while rest:
            x = rest.pop(0)
            y = rest.pop(0) if rest else x
            A(f'v_max3_u32 {v(T+6)}, {v(b+x)}, {v(b+y)}, {v(T+6)}')
    A(f'v_cmp_eq_u32 vcc, -1, {v(T+6)}')
    A(f's_sub_u32 {s(SLIM)}, {s(SLIM)}, 16')
    A('s_cbranch_scc1 L_x_go')
    A('s_cbranch_vccnz L_x_poll')
    A.label('L_x_go')
    if st_:
        A('s_memrealtime s[78:79]')
    G = BF
    for np_ in range(2):
        idx = [(2 * np_ + e, r) for e in range(2) for r in range(4)]
        own = lambda nt, r: ACC + 16 * nt + r
        for j, (nt, r) in enumerate(idx):
            g = G + 8 * np_ + j
            A(f'v_cndmask_b32 {v(g)}, {v(own(nt,r))}, {v(R+4*nt+r)}, s[32:33]')
            A(f'v_add_f32 {v(own(nt,r))}, {v(own(nt,r))}, {v(R+4*nt+r)}')
            A(f'v_cndmask_b32 {v(g)}, {v(g)}, {v(R+16+4*nt+r)}, s[34:35]')
            A(f'v_add_f32 {v(R+16+4*nt+r)}, {v(R+16+4*nt+r)}, {v(R+32+4*nt+r)}')
            A(f'v_cndmask_b32 {v(g)}, {v(g)}, {v(R+32+4*nt+r)}, s[36:37]')
            A(f'v_add_f32 {v(own(nt,r))}, {v(own(nt,r))}, {v(R+16+4*nt+r)}')
        for j, (nt, r) in enumerate(idx):
            g = G + 8 * np_ + j; t0 = G + 16 + j; t1 = G + 24 + j
            xs = XR + 4 * np_ + (j >> 1); bs = XR + 8 + 4 * np_ + (j >> 1)
            A(f'v_sub_f32 {v(own(nt,r))}, {v(own(nt,r))}, {v(g)}')
            A(f'v_and_b32 {v(t0)}, 0xffff0000, {v(bs)}' if j & 1 else f'v_lshlrev_b32 {v(t0)}, 16, {v(bs)}')
            A(f'v_and_b32 {v(t1)}, 0xffff0000, {v(xs)}' if j & 1 else f'v_lshlrev_b32 {v(t1)}, 16, {v(xs)}')
            A(f'v_add_f32 {v(g)}, {v(g)}, {v(t0)}')
            A(f'v_mul_f32 {v(t0)}, s67, {v(g)}')
            A(f'v_exp_f32 {v(t0)}, {v(t0)}')
            A(f'v_mul_f32 {v(g)}, {v(g)}, {v(own(nt,r))}')
        for j in range(8):
            A(f'v_add_f32 {v(G+16+j)}, 1.0, {v(G+16+j)}')
        for j in range(8):
            A(f'v_rcp_f32 {v(G+16+j)}, {v(G+16+j)}')
        for j in range(8):
            A(f'v_fma_f32 {v(G+8*np_+j)}, {v(G+8*np_+j)}, {v(G+16+j)}, {v(G+24+j)}')
        d = G + 32 + 4 * np_
        for k in range(4):
            A(f'v_cvt_pk_bf16_f32 {v(d+k)}, {v(G+8*np_+2*k)}, {v(G+8*np_+2*k+1)}')
        for e in range(2):
            A(f'buffer_store_dwordx2 {v(d+2*e,2)}, {v(T+5)}, {s(SRD_XO,4)}, s66 offen offset:{64*np_+32*e}' + o.get('outmod', ''))
```

```python
import sys
from asmlib import Asm, v, a, s, check, fix, stamp_begin, stamp_end
from gen_attn16 import *
from gen_p1 import *
import gen_k3b as gen_k3
import gen_tail
NAME = 'recurrent_scan__mha_block_cached__mixer_channel_mlp__prompt_kernel'

VLIST = sorted([39 + 4 * i for i in range(20)] + [41 + 8 * i for i in range(7)] + [45 + 8 * i for i in range(5)])
KLIST = [77, 85, 93, 101, 105, 109, 113, 117, 119, 123, 127, 131, 135, 139, 143, 147]
PLAN = dict(vpos=lambda n: VLIST[n], kpos=lambda n: KLIST[n], km=4, kd=lambda i: [5, 9, 23, 27][i], vm=28, vd=lambda i: [31, 35, 37, 33][i])
PLANM = dict(sum='mfma', vpos=lambda n: 37 + 2 * n, kpos=lambda n: 101 + 2 * n, km=5, kd=lambda i: 7 + 4 * i, vm=22, vd=lambda i: 23 + 4 * i)
HEADER = open('recurrent_scan__mha_block_cached__mixer_channel_mlp__prompt.s.ref').read().split('; Override')[0]


def srd(A, d, lo, hi, off, nbytes):
    if off is None:
        A(f's_mov_b32 s{d}, s{lo}\ns_mov_b32 s{d+1}, s{hi}')
    else:
        A(f's_add_u32 s{d}, s{lo}, {off}\ns_addc_u32 s{d+1}, s{hi}, 0')
    A(f's_mov_b32 s{d+2}, {nbytes}\ns_mov_b32 s{d+3}, 0x20000')


def k2(A, o):
    cold = []
    fused = o.get('fused')
    name = NAME if fused else 'attn_kernel'
    nxt = 'L_attn_finish' if fused else 'out_kernel'
    st = o.get('stamp')
    A(f'.globl {name}\n.p2align 8\n.type {name},@function')
    A.label(name)
    A('s_cmp_ge_u32 s2, 256')
    A('s_cbranch_scc1 L_k2_end')
    if st:
        stamp_begin(A)
    A('s_load_dwordx8 s[32:39], s[0:1], 0')
    A('s_load_dwordx4 s[68:71], s[0:1], 48')
    A('s_load_dwordx2 s[72:73], s[0:1], 96')
    A(f'v_lshrrev_b32 {v(T0)}, 6, v0')
    A('s_and_b32 s26, s2, 7')
    A('s_lshl_b32 s26, s26, 2')
    A('s_bfe_u32 s27, s2, 0x20003')
    A(f'v_readfirstlane_b32 {s(SW)}, {v(T0)}')
    A(f's_add_u32 {s(SHEAD)}, s26, s27')
    A(f's_lshr_b32 {s(SQB)}, s2, 5')
    A(f's_and_b32 {s(SFLIP)}, {s(SHEAD)}, 1')
    A(f's_lshl_b32 {s(SFLIP)}, {s(SFLIP)}, 5')
    A(f's_lshl_b32 {s(SM0)}, {s(SW)}, 12')
    A(f's_lshl_b32 {s(SM1)}, {s(SW)}, 11')
    A(f's_lshl_b32 {s(SXM)}, {s(SW)}, 13')
    A(f's_lshl_b32 {s(SXO)}, {s(SQB)}, 18')
    A(f's_lshl_b32 s26, {s(SW)}, 16')
    A(f's_add_u32 {s(SXO)}, {s(SXO)}, s26')
    A(f's_lshl_b32 s26, {s(SFLIP)}, 10')
    A(f's_add_u32 {s(SXO)}, {s(SXO)}, s26')
    rot = o.get('rot', 0)
    if rot == 0:
        A(f's_mov_b32 {s(SROT)}, 0')
    elif rot == 1:
        A(f's_lshl_b32 {s(SROT)}, s27, 1')
    elif rot == 2:
        A(f's_lshl_b32 {s(SROT)}, s27, 1')
        A(f's_and_b32 s26, {s(SQB)}, 1')
        A(f's_add_u32 {s(SROT)}, {s(SROT)}, s26')
    elif rot == 4:
        A(f's_xor_b32 {s(SROT)}, s27, {s(SQB)}')
        A(f's_and_b32 {s(SROT)}, {s(SROT)}, 1')
        A(f's_lshl_b32 {s(SROT)}, {s(SROT)}, 2')
    elif rot == 5:
        A(f's_xor_b32 {s(SROT)}, s27, {s(SQB)}')
        A(f's_and_b32 {s(SROT)}, {s(SROT)}, 3')
        A(f's_lshl_b32 {s(SROT)}, {s(SROT)}, 1')
    elif rot == 3:
        A(f's_lshl_b32 {s(SROT)}, s27, 1')
        A(f's_and_b32 s26, {s(SQB)}, 4')
        A(f's_add_u32 {s(SROT)}, {s(SROT)}, s26')
    A(f's_lshl_b32 {s(SWQO)}, {s(SW)}, 17')
    A(f's_lshl_b32 s26, {s(SHEAD)}, 8')
    A(f's_add_u32 {s(SWQO)}, {s(SWQO)}, s26')
    A(f's_mul_i32 {s(SW1O)}, {s(SW)}, {16*2752}')
    A(f's_mov_b32 {s(SOFF)}, {s(SM0)}')
    A(f'v_and_b32 {v(LANE)}, 63, v0')
    if not o.get('nocpf'):
        A('s_getpc_b64 s[56:57]')
        A.label('L_code0')
        A('s_mov_b32 s58, L_code_end-L_code0')
        A('s_mov_b32 s59, 0x20000')
        A('s_lshr_b32 s26, s2, 3')
        A('s_lshl_b32 s26, s26, 2')
        A(f's_add_u32 s26, s26, {s(SW)}')
        A('s_lshl_b32 s26, s26, 9')
        A(f'v_lshlrev_b32 {v(PT+8)}, 3, {v(LANE)}')
        A(f'buffer_load_dwordx2 {v(PT+10,2)}, {v(PT+8)}, s[56:59], s26 offen')
    p1_lane_setup(A, o.get('exp'))
    A('s_waitcnt lgkmcnt(0)')
    if st:
        A('s_memrealtime s[66:67]\ns_waitcnt lgkmcnt(0)\nv_writelane_b32 v63, s66, 9')
    srd(A, SRD_X, 32, 33, None, 0 if o.get('kill') == 'x' else 2 << 20)
    srd(A, SRD_WQ, 38, 39, None, 0 if o.get('kill') in ('wq', 'w') else 4 << 20)
    srd(A, SRD_W1, 68, 69, None, 0 if o.get('kill') in ('w1', 'w') else 512 * 2752)
    vm = VM()
    vm.add('code')

    def run(lst, tag):
        for pre, ins in lst:
            A(pre + ('s_nop 0\n' if pre else '') + ins); vm.add(tag)
    run(x_dma(0), ('x', 0)); run(w_dma(0), ('W', 0))
    if st:
        A('s_memrealtime s[66:67]\ns_waitcnt lgkmcnt(0)\nv_writelane_b32 v63, s66, 10')
    mode = o.get('pmode', 0)
    if o.get('tlb'):
        A(f'v_lshlrev_b32 {v(PT+9)}, {o["tlb"]}, {v(LANE)}')
        A(f's_lshl_b32 s26, {s(SHEAD)}, 8')
        A(f's_lshl_b32 s27, {s(SW)}, {o["tlb"] + 6}')
        A('s_add_u32 s26, s26, s27')
        A(f'buffer_load_dword {v(PT+12)}, {v(PT+9)}, {s(SRD_WQ,4)}, s26 offen'); vm.add('pf')
        A(f'buffer_load_dword {v(PT+12)}, {v(PT+9)}, {s(SRD_W1,4)}, s27 offen'); vm.add('pf')
    if mode & 1:
        run(x_dma(1), ('x', 1)); run(w_dma(1), ('W', 1))
    if mode & 2:
        P0, P1, P2, PD = PT + 8, PT + 9, PT + 10, PT + 11
        A(f'v_lshlrev_b32 {v(P0)}, 6, {v(LANE)}')
        A(f'v_lshrrev_b32 {v(P1)}, 2, {v(LANE)}')
        A(f'v_and_b32 {v(P2)}, 3, {v(LANE)}')
        A(f'v_lshlrev_b32 {v(P2)}, 6, {v(P2)}')
        A(f'v_lshl_add_u32 {v(P1)}, {v(P1)}, 13, {v(P2)}')
        A('s_bfe_u32 s26, s2, 0x20003')
        A('s_lshl_b32 s26, s26, 16')
        A(f's_lshl_b32 s27, {s(SQB)}, 18')
        A('s_add_u32 s26, s26, s27')
        A(f's_lshl_b32 s27, {s(SW)}, 14')
        A('s_add_u32 s26, s26, s27')
        for i in range(4):
            A(f'buffer_load_dword {v(PD)}, {v(P0)}, {s(SRD_X,4)}, s26 offen'); vm.add('pf')
            A('s_add_u32 s26, s26, 4096')
        A(f's_lshl_b32 s27, {s(SQB)}, 19')
        A(f's_add_u32 s27, s27, {s(SWQO)}')
        A(f'buffer_load_dword {v(PD)}, {v(P1)}, {s(SRD_WQ,4)}, s27 offen'); vm.add('pf')
        A(f's_mul_i32 s27, {s(SQB)}, {64*2752}')
        A(f's_add_u32 s27, s27, {s(SW1O)}')
        A(f'buffer_load_dword {v(PD)}, {v(VW1)}, {s(SRD_W1,4)}, s27 offen'); vm.add('pf')
        A(f'buffer_load_dword {v(PD)}, {v(VW1+1)}, {s(SRD_W1,4)}, s27 offen offset:1024'); vm.add('pf')
    p1_read_setup(A)
    if st:
        A('s_memrealtime s[66:67]\ns_waitcnt lgkmcnt(0)\nv_writelane_b32 v63, s66, 11')
    B = Asm()
    lane_setup(B, rot=True)
    B(f's_lshl_b32 s26, {s(SHEAD)}, 19')
    B('s_add_u32 s27, s26, 16384')
    srd(B, SRD_K, 34, 35, 's27', 524288 - 16384)
    srd(B, SRD_K0, 34, 35, 's26', 16384)
    srd(B, SRD_V, 36, 37, 's26', 524288)
    srd(B, SRD_WS, 72, 73, None, 16 << 20)
    srd(B, SRD_H, 72, 73, WS_H, 43 * 128 * 1024)
    srd(B, SRD_B1, 70, 71, None, 2752)
    B(f'v_lshrrev_b32 {v(PT)}, 4, {v(LANE)}')
    B(f'v_lshlrev_b32 {v(PT)}, 3, {v(PT)}')
    B(f's_lshl_b32 s26, {s(SHEAD)}, 6')
    B(f's_lshr_b32 s27, {s(SHEAD)}, 1')
    B('s_add_u32 s27, s27, 32')
    B('s_lshl_b32 s27, s27, 6')
    side = []
    for l in B.lines:
        if l.startswith('s_addc'):
            side[-1] = (side[-1][0] + '\n' + l, None)
        else:
            side.append((l, None))
    for u in range(4):
        side.append((f'buffer_load_dwordx2 {v(B1R+2*u,2)}, {v(PT)}, {s(SRD_B1,4)}, s{26+(u>>1)} offen offset:{32*(u&1)}', 'b1'))
    side2 = []
    phase1(A, vm, diag=bool(st), side=side, early=mode & 1, side2=side2)
    assert not side2
    assert not side
    if st:
        A('v_writelane_b32 v63, s68, 7')
        A('v_writelane_b32 v63, s90, 8')
        A('s_lshl_b32 s26, s2, 2\ns_add_u32 s26, s26, s20\ns_lshl_b32 s26, s26, 8\ns_add_u32 s26, s26, 0x3100000\ns_mov_b32 s14, 0x4000000')
        A(f'v_lshlrev_b32 v62, 2, {v(LANE)}')
        A('buffer_store_dword v63, v62, s[12:15], s26 offen'); vm.add('diag')
        A('s_memrealtime s[86:87]')
    p1_epilogue(A, vm, o.get('stmod', ''))
    if st:
        A('s_memrealtime s[88:89]')
    A('s_and_b32 s27, s2, 3')
    A('s_cmp_eq_u32 s27, 3')
    A('s_cselect_b32 s26, 64, 32')
    A('s_load_dwordx2 s[40:41], s[0:1], s26')
    A(f's_cselect_b32 s42, {1376*1024}, s42')
    A('s_cselect_b32 s27, 0, s27')
    A(f's_mul_i32 s61, s27, {1376*1024}')
    A('s_lshr_b32 s26, s2, 3')
    A('s_lshl_b32 s26, s26, 2')
    A(f's_add_u32 s26, s26, {s(SW)}')
    A('s_mul_i32 s26, s26, 11264')
    A('s_add_u32 s61, s61, s26')
    A(f's_add_u32 s44, {s(SRD_WS)}, {gen_k3.WS_X}')
    A(f's_addc_u32 s45, {s(SRD_WS+1)}, 0')
    A(f's_mov_b32 s46, {gen_k3.X_BYTES}')
    A('s_mul_i32 s62, s2, 49152')
    A(f's_add_u32 s62, s62, {s(SM0)}')
    A(f'v_lshlrev_b32 {v(LS2+7)}, 4, {v(LANE)}')
    for i in range(4):
        A(f'v_mov_b32 {v(T0+12+i)}, -1')
    pf = []
    poison = []
    for i in range(12):
        pf.append(f'buffer_store_dwordx4 {v(T0+12,4)}, {v(LS2+7)}, s[44:47], s62 offen offset:{1024*(i&3)} sc1' + ('\ns_add_u32 s62, s62, 16384' if i & 3 == 3 else ''))
    if not o.get('nopf'):
        for i in range(11):
            pf.append(f'buffer_load_dwordx4 {v(T0+16,4)}, {v(LS2+7)}, s[40:43], s61 offen offset:{1024*(i&3)}' + ('\ns_add_u32 s61, s61, 4096' if i & 3 == 3 else ''))
    if not o.get('nocpf'):
        A('s_getpc_b64 s[56:57]')
        A.label('L_code1')
        A(f's_add_u32 s56, s56, {nxt}-L_code1')
        A('s_addc_u32 s57, s57, 0')
        A(f's_mov_b32 s58, {"L_attn_exact" if fused else "L_code_end"}-{nxt}')
        A('s_lshr_b32 s63, s2, 3')
        A('s_lshl_b32 s63, s63, 2')
        A(f's_add_u32 s63, s63, {s(SW)}')
        A('s_lshl_b32 s63, s63, 8')
        A(f'v_lshlrev_b32 {v(LS2+6)}, 2, {v(LANE)}')
        pf.append(f'buffer_load_dword {v(T0+16)}, {v(LS2+6)}, s[56:59], s63 offen')
    pf = pf[12:] + pf[:12]
    A(f's_mov_b32 {s(STHR)}, {o.get("thr", 0x5d800000)}')
    A(f's_mov_b64 {s(SARM,2)}, -1')
    A(f's_mov_b32 {s(SRD_K0+2)}, 524288')
    if fused:
        A('s_load_dwordx2 s[16:17], s[0:1], 88')
        A('s_movk_i32 s18, 256')
        A('v_mov_b32 v125, 0')
        gen_tail.flag_setup(A, SRD_WS, SRD_WS + 1)
        A(gen_tail.flag_store(0, 124, 125))
    plan = o.get('plan', PLAN)
    attn_start(A, K0_LDS, ms=plan.get('sum') == 'mfma')
    opts = dict(plan, first_vm=vm.wait_for([('kv', 0)]), stmod=o.get('stmod', ''))
    if fused:
        opts['pre_finish'] = gen_tail.tail_loads
        opts['x29'] = [(4, gen_tail.ready_load())]
        opts['x31'] = gen_tail.presetup()
        opts['x32'] = [(20, gen_tail.first_look(LS2 + 6))]
        opts['after0'] = 's_waitcnt vmcnt(8)\ns_barrier\n' + gen_tail.signal_ready('L_sig_h')
    if st:
        A('s_memrealtime s[98:99]')
    if o.get('pstamp'):
        opts['pstamp'] = 1
        A('s_mov_b32 s70, 0')
    attn_loop(A, opts, pf)
    if o.get('pstamp'):
        A('s_lshl_b32 s26, s2, 2\ns_add_u32 s26, s26, s20\ns_lshl_b32 s26, s26, 8\ns_add_u32 s26, s26, 0x3200000')
        A(f'v_lshlrev_b32 v62, 2, {v(LANE)}')
        A('buffer_store_dword v103, v62, s[12:15], s26 offen')
    if st:
        A('s_memrealtime s[100:101]')
    attn_store(A, opts)
    if fused:
        del gen_tail.COLD[:]
        gen_tail.tail(A, o)
        cold += gen_tail.COLD
    if st and fused:
        A('s_waitcnt lgkmcnt(0)')
        A('s_sub_u32 s78, s78, s58\ns_sub_u32 s58, s58, s54\ns_sub_u32 s54, s54, s52\ns_sub_u32 s52, s52, s100')
        A('v_mov_b32 v16, s52\nv_mov_b32 v17, s54\nv_mov_b32 v18, s58\nv_mov_b32 v19, s78')
    if st:
        A(f's_lshl_b32 s85, {s(SW)}, 6')
        A('v_mov_b32 v0, s85')
        A('s_waitcnt lgkmcnt(0)')
        A('s_sub_u32 s100, s100, s98\ns_sub_u32 s98, s98, s88\ns_sub_u32 s88, s88, s86\ns_sub_u32 s86, s86, s90')
        stamp_end(A, 0, 0)
        A('v_mov_b32 v8, s86\nv_mov_b32 v9, s88\nv_mov_b32 v10, s98\nv_mov_b32 v11, s100')
        A('s_add_u32 s84, s84, 0x8000')
        A('buffer_store_dwordx4 v[8:11], v4, s[80:83], s84 offen')
        if fused:
            A('s_add_u32 s84, s84, 0x10000')
            A('buffer_store_dwordx4 v[16:19], v4, s[80:83], s84 offen')
    A.label('L_k2_end')
    A('s_endpgm')
    A('\n'.join(cold)) if cold else None
    attn_exact(A, SRD_K0, o.get('stmod', ''))


def build(o):
    A = Asm()
    for l in HEADER.strip().split('\n'):
        A.lines.append(l)
    fused = o.get('fused')
    if fused and o.get('plain'):
        A('; @launch grid=(256,1,1) block=(256,1,1) lds=163840')
    elif fused:
        A(f'; @launch kernel={NAME} grid=(256,1,1) block=(256,1,1) lds=163840')
    else:
        A('; @launch kernel=attn_kernel grid=(256,1,1) block=(256,1,1) lds=163840')
        A('; @launch kernel=out_kernel grid=(256,1,1) block=(256,1,1) lds=163840')
    A('.amdgcn_target "amdgcn-amd-amdhsa--gfx950"\n.text')
    k2(A, o)
    if not fused:
        gen_k3.k3(A, opts=dict(o.get('k3', {}), **(dict(stamp=1) if o.get('stamp') else {})))
    A.label('L_code_end')
    A('.section .rodata,"a"\n.p2align 6')
    A(f'.amdhsa_kernel {NAME if fused else "attn_kernel"}\n.amdhsa_next_free_vgpr 512\n.amdhsa_next_free_sgpr 102\n.amdhsa_accum_offset 256')
    A('.amdhsa_group_segment_fixed_size 0\n.amdhsa_kernarg_size 104\n.amdhsa_user_sgpr_count 2\n.amdhsa_user_sgpr_kernarg_segment_ptr 1\n.amdhsa_system_sgpr_workgroup_id_x 1\n.end_amdhsa_kernel')
    if not fused:
        A('.p2align 6')
        gen_k3.k3_desc(A)
    A.lines, n = fix(A.lines)
    p = check(A.lines)
    print(len(A.lines), 'lines; nops', n, 'hazards', p[:8])
    txt = A.text()
    if o.get('cyc'):
        for r in ('86:87', '88:89', '98:99', '100:101', '52:53', '54:55', '58:59', '78:79'):
            txt = txt.replace(f's_memrealtime s[{r}]', f's_memtime s[{r}]')
        txt = txt.replace('s_sub_u32 s86, s86, s90', 's_sub_u32 s86, s86, s92')
    return txt


if __name__ == '__main__':
    two = dict(stmod=' sc1', k3={}, pmode=1, plan=PLANM)
    best = dict(two, fused=1, rot=4, plan=PLANM)
    variants = {'best': best, 'exact': dict(best, thr=0)}
    for n, o in variants.items():
        open(f'all_{n}_stamp.s', 'w').write(build(dict(o, stamp=1)))
    open('all.s', 'w').write(build(best))
    open('alt1.s', 'w').write(build(dict(best, plain=1, outmod=' sc1')))
    open('recurrent_scan__mha_block_cached__mixer_channel_mlp__prompt.s', 'w').write(build(dict(best, plain=1)))
```

```python
import re

TRANS = ('v_exp_f32', 'v_log_f32', 'v_rcp_f32', 'v_rsq_f32', 'v_sqrt_f32', 'v_sin_f32', 'v_cos_f32')


class Asm:
    def __init__(self):
        self.lines = []

    def __call__(self, s):
        for l in s.strip('\n').split('\n'):
            l = l.strip()
            if l:
                self.lines.append(l)

    def label(self, name):
        self.lines.append(name + ':')

    def text(self):
        out = []
        for l in self.lines:
            if l.endswith(':') or l.startswith('.') or l.startswith(';'):
                out.append(l)
            else:
                out.append('    ' + l)
        return '\n'.join(out) + '\n'


def v(i, n=1):
    return f'v{i}' if n == 1 else f'v[{i}:{i + n - 1}]'


def a(i, n=1):
    return f'a{i}' if n == 1 else f'a[{i}:{i + n - 1}]'


def s(i, n=1):
    return f's{i}' if n == 1 else f's[{i}:{i + n - 1}]'


_REG = re.compile(r'^(-|abs\()?([vas])(?:(\d+)|\[(\d+):(\d+)\])\)?$')


def regs(tok):
    tok = tok.strip()
    if tok in ('vcc', 'vcc_lo', 'vcc_hi'):
        return {'vcc'}
    if tok in ('m0', 'exec', 'scc'):
        return {tok}
    m = _REG.match(tok)
    if not m:
        return set()
    k = m.group(2)
    if m.group(3) is not None:
        return {k + m.group(3)}
    return {k + str(i) for i in range(int(m.group(4)), int(m.group(5)) + 1)}


class Ins:
    def __init__(self, text):
        self.text = text
        t = text.split(';')[0].strip()
        p = t.split(None, 1)
        self.op = p[0]
        rest = p[1] if len(p) > 1 else ''
        ops = []
        for tok in re.split(r',\s+', rest):
            ops.append(tok.strip())
        if ops:
            last = ops[-1].split()
            self.mods = last[1:] if last else []
            ops[-1] = last[0] if last else ''
        else:
            self.mods = []
        self.ops = ops
        op = self.op
        R = [regs(o) for o in ops]
        self.w = set(); self.r = set(); self.c = set(); self.ab = set()
        self.kind = 'other'; self.ws = 1; self.passes = 0
        allr = set().union(*R) if R else set()
        if op == 's_nop':
            self.kind = 'nop'; self.ws = int(ops[0], 0) + 1
        elif op.startswith('v_mfma'):
            self.kind = 'mfma'; self.w = R[0]; self.ab = R[1] | R[2]; self.c = R[3]; self.r = self.ab | self.c
            self.passes = 8 if '32x32x16' in op else 4
        elif op.startswith('v_cmp'):
            self.kind = 'valu'; self.w = R[0]; self.r = set().union(*R[1:])
            if op.startswith('v_cmpx'):
                self.w = self.w | {'exec'}
        elif op.startswith('v_readfirstlane') or op.startswith('v_readlane'):
            self.kind = 'readlane'; self.w = R[0]; self.r = set().union(*R[1:])
        elif op.startswith('v_permlane'):
            self.kind = 'permlane'; self.w = R[0] | R[1]; self.r = R[0] | R[1]
        elif op.startswith('v_'):
            self.kind = 'trans' if op.replace('_e32', '').replace('_e64', '') in TRANS else 'valu'
            if '_co_' in op:
                self.w = R[0] | R[1]; self.r = set().union(*R[2:])
            else:
                self.w = R[0]; self.r = set().union(*R[1:]) if len(R) > 1 else set()
            if op.startswith('v_fmac') or op.startswith('v_dot2c') or op.startswith('v_writelane'):
                self.r |= R[0]
            if op.startswith('v_cndmask') and len(R) == 3:
                self.r |= {'vcc'}
            self.dpp = any(m.startswith(('row_', 'quad_perm', 'wave_')) for m in self.mods) or '_dpp' in op
            if self.dpp:
                self.kind = 'dpp'
        elif op.startswith('ds_read') or op.startswith('ds_bpermute') or op.startswith('ds_swizzle'):
            self.kind = 'dsr'; self.w = R[0]; self.r = set().union(*R[1:])
        elif op.startswith('ds_'):
            self.kind = 'dsw'; self.r = allr
        elif op.startswith('buffer_load') or op.startswith('global_load'):
            if 'lds' in self.mods or '_lds_' in op:
                self.kind = 'dma'; self.r = allr | {'m0'}
            else:
                self.kind = 'vld'; self.w = R[0]; self.r = set().union(*R[1:])
        elif op.startswith('buffer_store') or op.startswith('global_store') or 'atomic' in op:
            self.kind = 'vst'; self.r = allr
            self.wide = op.endswith('x4') or op.endswith('x3')
            self.data = R[0] if op.startswith('buffer') else R[1]
            if 'atomic' in op and 'sc0' in self.mods:
                self.w = R[0]
        elif op.startswith('s_load') or op.startswith('s_memtime') or op.startswith('s_memrealtime'):
            self.kind = 'smem'; self.w = R[0]; self.r = set().union(*R[1:]) if len(R) > 1 else set()
        elif op.startswith(('s_cbranch', 's_branch')):
            self.kind = 'branch'
        elif op.startswith(('s_waitcnt', 's_barrier', 's_setprio', 's_endpgm', 's_sleep', 'buffer_wbl2', 'buffer_inv')):
            self.kind = 'other'
        elif op.startswith('s_cmp'):
            self.kind = 'salu'; self.r = allr
        elif op.startswith('s_'):
            self.kind = 'salu'; self.w = R[0]; self.r = set().union(*R[1:]) if len(R) > 1 else set()
            if 'saveexec' in op:
                self.w |= {'exec'}


VALU_KINDS = ('valu', 'trans', 'dpp', 'permlane', 'readlane')
VMEM_KINDS = ('vld', 'vst', 'dma')


def _vregs(x):
    return {r for r in x if r[0] in 'va' and r not in ('vcc',)}


def _sregs(x):
    return {r for r in x if r == 'vcc' or (r[0] == 's' and r != 'scc')}


def need(p, c):
    n = 0
    pv = p.kind in VALU_KINDS
    cv = c.kind in VALU_KINDS
    if p.kind == 'mfma':
        big = {8: 12, 4: 8}[p.passes]
        if c.kind == 'mfma':
            if p.w & c.ab:
                n = max(n, big)
            if p.w & c.c and not (p.w == c.c and p.passes == c.passes):
                n = max(n, big - 2)
            if p.w & c.w and not (p.w == c.c and p.passes == c.passes) and not (p.w & c.c):
                n = max(n, 0)
        elif cv or c.kind in VMEM_KINDS or c.kind in ('dsr', 'dsw'):
            if p.w & (c.r | c.w):
                n = max(n, big)
        if cv and (p.c & c.w):
            n = max(n, {8: 7, 4: 3}[p.passes])
    if pv:
        wv = _vregs(p.w); wsr = _sregs(p.w)
        if c.kind == 'mfma' and wv & c.r:
            n = max(n, 2)
        if p.kind == 'trans' and cv and c.kind != 'trans' and wv & c.r:
            n = max(n, 1)
        if c.kind in ('permlane', 'dpp') and wv & c.r:
            n = max(n, 2)
        if c.kind == 'readlane' and wv & c.r:
            n = max(n, 1)
        if c.kind in VMEM_KINDS and wsr & c.r:
            n = max(n, 5)
        if cv and wsr & c.r:
            n = max(n, 4 if c.kind == 'readlane' else 2)
        if 'exec' in p.w:
            if c.kind == 'mfma' or c.kind in ('readlane', 'permlane'):
                n = max(n, 4)
            if c.kind == 'dpp':
                n = max(n, 5)
    if p.kind == 'salu' and 'm0' in p.w and c.kind == 'dma':
        n = max(n, 1)
    if p.kind == 'vst' and getattr(p, 'wide', False) and (p.data & c.w):
        n = max(n, 2 if cv else 1)
    return n


def check(lines, window=24):
    ins = []; labels = {}
    for l in lines:
        t = l.split(';')[0].strip()
        if not t or t.startswith('.'):
            continue
        if t.endswith(':'):
            labels[t[:-1]] = len(ins)
            continue
        ins.append(Ins(t))
    probs = []

    def scan(seq, first_consumer):
        for j in range(first_consumer, len(seq)):
            c = seq[j]; d = 0
            for i in range(j - 1, max(-1, j - window), -1):
                p = seq[i]
                n = need(p, c)
                if n > d:
                    probs.append(f'need {n} have {d}: [{p.text}] -> [{c.text}]')
                d += p.ws
                if d >= 20:
                    break

    seq = []
    for x in ins:
        seq.append(x)
        if x.op in ('s_branch', 's_endpgm'):
            scan(seq, 0); seq = []
    scan(seq, 0)
    for k, x in enumerate(ins):
        if x.kind == 'branch':
            tgt = labels[x.ops[0]]
            pre = ins[max(0, k - window):k + 1]
            post = []
            for y in ins[tgt:tgt + window]:
                post.append(y)
                if y.op in ('s_branch', 's_endpgm'):
                    break
            scan(pre + post, len(pre))
    return sorted(set(probs))


def fix(lines, window=24):
    out = []; hist = []; added = 0
    for l in lines:
        t = l.split(';')[0].strip()
        if not t or t.startswith('.') or t.endswith(':'):
            out.append(l)
            continue
        c = Ins(t)
        d = 0; deficit = 0
        for p in reversed(hist[-window:]):
            n = need(p, c)
            deficit = max(deficit, n - d)
            d += p.ws
            if d >= 20:
                break
        if deficit > 0:
            nop = f's_nop {deficit - 1}'
            out.append(nop); hist.append(Ins(nop)); added += 1
        out.append(l); hist.append(c)
        if c.op in ('s_branch', 's_endpgm'):
            hist = []
    return out, added


def stamp_begin(A, sb=90):
    A(f's_memrealtime s[{sb}:{sb+1}]')
    A(f's_memtime s[{sb+2}:{sb+3}]')


def stamp_end(A, idx, vt, sb=90):
    A('s_waitcnt vmcnt(0)')
    A('s_memrealtime s[72:73]')
    A('s_memtime s[74:75]')
    A('s_load_dwordx2 s[80:81], s[0:1], 96')
    A('s_waitcnt lgkmcnt(0)')
    A('s_mov_b32 s82, 0x4000000\ns_mov_b32 s83, 0x20000')
    A(f's_sub_u32 s74, s74, s{sb+2}')
    A(f'v_lshrrev_b32 v{vt+4}, 6, v0')
    A(f'v_lshlrev_b32 v{vt+4}, 4, v{vt+4}')
    A(f's_lshl_b32 s84, s2, 6\ns_add_u32 s84, s84, {(48 << 20) + idx * 65536}')
    A(f'v_mov_b32 v{vt}, s{sb}\nv_mov_b32 v{vt+1}, s72\nv_mov_b32 v{vt+2}, s74\nv_mov_b32 v{vt+3}, 0')
    A(f'buffer_store_dwordx4 v[{vt}:{vt+3}], v{vt+4}, s[80:83], s84 offen')


def pk(op, dst, srcs):
    ops = []; lo = []; hi = []
    for x in srcs:
        if isinstance(x, tuple):
            kind, r = x[0], x[1]
            pre = 's' if kind == 'bs' else 'v'
            ops.append(f'{pre}[{r & ~1}:{(r & ~1) + 1}]'); lo.append(r & 1); hi.append(r & 1)
        elif isinstance(x, str):
            ops.append(x); lo.append(0); hi.append(0)
        else:
            assert x % 2 == 0
            ops.append(f'v[{x}:{x + 1}]'); lo.append(0); hi.append(1)
    assert dst % 2 == 0
    f = lambda l: '[' + ','.join(map(str, l)) + ']'
    return f'v_pk_{op}_f32 v[{dst}:{dst + 1}], ' + ', '.join(ops) + f' op_sel:{f(lo)} op_sel_hi:{f(hi)}'
```

```python
from asmlib import Asm, v, a, s, pk

WS_O = 0
WS_H = 16 << 20
WS_Q = 32 << 20

SA, SB = 0, 32
NEGM = 64
ADK = 80
ADV = 84
VOK = 92
VOV = 96
LS = 98
LANE = 102
ONES = 103
LS2 = 120
T0 = 104
OACC = 128
QF = 0
KF = 64
VF = 128
SRD_K, SRD_V, SRD_WS = 4, 8, 12
SW, SHEAD, SQB, SOFF, SM0, SCNT = 20, 21, 22, 23, 24, 25
SFLIP = 65
STHR, SARM = 27, 78
MFMA = 'v_mfma_f32_16x16x32_bf16'
LACC, ONESV = 192, 208


def stile(half, ql, kt):
    return (SA if half == 0 else SB) + 8 * (2 * ql + (kt >> 1)) + 4 * (kt & 1)


def period(A, j, first=False, tail=False, opts=None, vmn=8, dma_k=True, dma_v=True, extra=(), k_next=True, late=()):
    o = opts or {}
    ms = o.get('sum') == 'mfma'
    mx = o.get('mx', 4)
    PL = 32 + mx if ms else 32
    bym = lambda ql, kp: ms and (mx == 4 or ql == 0)
    NG = 64 + 2 * PL; H = 32 + PL
    slot = j & 3
    gaps = [[] for _ in range(NG)]
    mf = [None] * NG
    needs = [None] * NG
    for half, g0 in ((0, 0), (1, H)):
        if first or tail:
            continue
        for kt in range(4):
            for ql in range(2):
                qt = 2 * half + ql
                for ks in range(4):
                    g = g0 + 8 * kt + 4 * ql + ks
                    S = stile(half, ql, kt)
                    mf[g] = f'{MFMA} {v(S,4)}, {a(KF+4*(4*kt+ks),4)}, {a(QF+4*(4*qt+ks),4)}, {v(NEGM+4*qt,4) if ks == 0 else v(S,4)}'
                    if half == 0:
                        needs[g] = ('K', 4 * kt + ks)
    for half, g0 in ((1, 32), (0, H + 32)):
        if (half == 1 and first) or (half == 0 and tail):
            continue
        for dt in range(8):
            for ql in range(2):
                qt = 2 * half + ql
                for kp in range(2):
                    g = g0 + 4 * dt + 2 * ql + kp
                    O = OACC + 4 * (8 * qt + dt)
                    mf[g] = f'{MFMA} {v(O,4)}, {a(VF+4*(2*dt+kp),4)}, {v(stile(half, ql, 2*kp),4)}, {v(O,4)}'
                    if half == 0:
                        needs[g] = ('V', 2 * dt + kp)
        n = 0
        for ql in range(2):
            for kp in range(2):
                if bym(ql, kp):
                    la = a(LACC + 4 * (2 * half + ql), 4)
                    mf[g0 + 32 + n] = f'{MFMA} {la}, {a(ONESV,4)}, {v(stile(half, ql, 2*kp),4)}, {la}'
                    n += 1
    e0 = o.get('e0', 12)

    def sm(half, g0, lo, hi):
        order = [(kt, ql) for kt in range(4) for ql in range(2)]
        for n, (kt, ql) in enumerate(order):
            S = stile(half, ql, kt); lr = LS + 2 * half + ql
            for r in range(4):
                ge = g0 + 8 * n + 2 * r
                if lo <= ge < hi:
                    gaps[ge % NG].append((0, f'v_exp_f32 {v(S+r)}, {v(S+r)}'))
                summ = o.get('sum', 'add')
                if (summ == 'add' or (ms and not bym(ql, kt >> 1))) and lo <= ge + 1 < hi:
                    gaps[(ge + 1) % NG].append((1, f'v_add_f32 {v(lr)}, {v(lr)}, {v(S+r)}'))
                if summ == 'pk' and r & 1 and lo <= ge + 1 < hi:
                    l2 = LS2 + 2 * (2 * half + ql)
                    gaps[(ge + 1) % NG].append((1, f'v_pk_add_f32 {v(l2,2)}, {v(l2,2)}, {v(S+r-1,2)}'))
                if summ == 'dot' and r & 1 and lo <= ge + 5 < hi:
                    dst = S - 4 * (kt & 1) + 2 * (kt & 1) + (r >> 1)
                    gaps[(ge + 5) % NG].append((1, f'v_dot2c_f32_bf16 {v(lr)}, {v(dst)}, {v(ONES)}'))
                if r & 1 and lo <= ge + 3 < hi:
                    dst = S - 4 * (kt & 1) + 2 * (kt & 1) + (r >> 1)
                    gaps[(ge + 3) % NG].append((2, f'v_cvt_pk_bf16_f32 {v(dst)}, {v(S+r-1)}, {v(S+r)}'))
    if not o.get('no_sm'):
        if not tail:
            sm(0, e0, 0, NG)
            sm(1, H + e0, 0, NG)
        if not first:
            sm(1, H + e0, NG, 2 * NG)
    reads = []; prev = []
    if not tail and not o.get('no_lds'):
        for n in range(32):
            f, jh = n >> 1, n & 1
            dt, kp = f >> 1, f & 1
            off = slot * 16384 + (32 * kp + 16 * jh) * 256
            reads.append((o.get('vpos', lambda n: 36 + 2 * n)(n), ('V', f), f'ds_read_b64_tr_b16 {a(VF+4*f+2*jh,2)}, {v(ADV+dt)} offset:{off}'))
        for n in range(16):
            kt, ks = n >> 2, n & 3
            g = o.get('kpos', lambda n: 75 + 2 * n + 2 * (n >> 2) * 2 if n < 16 else 0)(n)
            if g >= NG:
                if first:
                    continue
                off = ((j - 1) & 3) * 16384 + kt * 4096
                reads.append((g - NG, ('Kl', n), f'ds_read_b128 {a(KF+4*n,4)}, {v(ADK+ks)} offset:{off}'))
                for gg in range(NG):
                    if needs[gg] == ('K', n):
                        needs[gg] = ('Kl', n)
            else:
                off = slot * 16384 + kt * 4096
                reads.append((g, ('K', n), f'ds_read_b128 {a(KF+4*n,4)}, {v(ADK+ks)} offset:{off}'))
        if o.get('no_k'):
            reads = [r for r in reads if r[1][0] != 'K']
            needs = [n if n and n[0] != 'K' else None for n in needs]
        if o.get('no_v'):
            reads = [r for r in reads if r[1][0] != 'V']
            needs = [n if n and n[0] != 'V' else None for n in needs]
        prev = sorted(reads, key=lambda r: r[0])
        if not k_next:
            reads = [r for r in reads if r[1][0] != 'K']
        for g, tag, txt in reads:
            gaps[g % NG].append((o.get('rprio', lambda g: -1)(g), txt))
    for g, txt in extra:
        gaps[g].append((-2, txt))
    for g, txt in late:
        gaps[g].append((9, txt))
    if not tail:
        dslot = (j + 2) & 3
        if not o.get('no_bar'):
            gaps[1].append((-2, f's_waitcnt vmcnt({vmn})' if not o.get('no_dma') else 's_nop 0'))
            gaps[2].append((-2, 's_barrier'))
        if not o.get('no_dma') and dma_k:
            gaps[o.get('km', 3)].append((-2, f's_add_u32 m0, {s(SM0)}, {dslot*16384}'))
            for i in range(4):
                gaps[o.get('kd', lambda i: 5 + 3 * i)(i)].append((-2, f'buffer_load_dwordx4 {v(VOK+i)}, {s(SRD_K,4)}, {s(SOFF)} offen offset:{1024*i} lds'))
        if not o.get('no_dma') and dma_v:
            gaps[o.get('vm', 17)].append((-2, f's_add_u32 m0, {s(SM0)}, {65536+dslot*16384}'))
            for i in range(4):
                gaps[o.get('vd', lambda i: 19 + 3 * i)(i)].append((-2, f'buffer_load_dwordx4 {v(VOV+(i&1))}, {s(SRD_V,4)}, {s(SOFF)} offen offset:{1024*i} lds'))
            gaps[NG - 1].append((-2, f's_add_u32 {s(SOFF)}, {s(SOFF)}, 16384'))
    if o.get('pstamp'):
        gaps[6].append((-2, 's_memtime s[66:67]'))
        gaps[60].append((-2, 's_waitcnt lgkmcnt(0)'))
        gaps[61].append((3, f'v_cmp_eq_u32 vcc, s70, {v(LANE)}\nv_mov_b32 v104, s66'))
        gaps[63].append((3, 'v_cndmask_b32 v103, v103, v104, vcc'))
        gaps[62].append((-2, 's_add_u32 s70, s70, 1'))
    sr = sorted(reads, key=lambda r: r[0])
    order = [(g - NG, tag) for g, tag, _ in prev] + [(g, tag) for g, tag, _ in sr]
    nprev = len(prev)
    done = -1
    waits = {}
    lat = o.get('lat', 10)
    for g in range(NG):
        if needs[g] is None or not order:
            continue
        tag = needs[g]
        if tag[0] == 'K':
            cand = [i for i, (gg, tg) in enumerate(order) if tg == tag and i < nprev]
        else:
            cand = [i for i, (gg, tg) in enumerate(order) if tg == tag and i >= nprev]
        idx = max(cand)
        assert order[idx][0] < g - 2, (tag, g, order[idx])
        if idx > done:
            issued = [i for i, (gg, tg) in enumerate(order) if gg < g]
            old = [i for i, (gg, tg) in enumerate(order) if gg <= g - lat]
            cover = max(idx, max(old))
            n = max(issued) - cover
            assert n <= 15
            waits[g] = n
            done = cover
    last = H if tail else NG
    for g in range(last):
        if g == 0 and g in waits:
            A(f's_waitcnt lgkmcnt({waits[g]})')
        if mf[g] and not o.get('no_mfma'):
            A(mf[g])
        items = sorted(gaps[g], key=lambda x: x[0])
        if (g + 1) in waits:
            k = len([1 for pr, _ in items if pr < 0])
            items.insert(k, (0, f's_waitcnt lgkmcnt({waits[g+1]})'))
        for _, txt in items:
            A(txt)


def lane_setup(A, rot=False):
    L = LANE; t1 = T0; t2 = T0 + 1; t3 = T0 + 2; r = T0 + 4; base = T0 + 5; x = T0 + 6
    if not rot:
        A(f'v_and_b32 {v(L)}, 63, v0')
    A(f'v_lshrrev_b32 {v(t1)}, 4, {v(L)}')
    A(f'v_and_b32 {v(t2)}, 15, {v(L)}')
    for i in range(4):
        A(f'v_add_u32 {v(t3)}, {4*i}, {v(t1)}')
        A(f'v_xor_b32 {v(t3)}, {v(t3)}, {v(t2)}')
        A(f'v_lshlrev_b32 {v(t3)}, 4, {v(t3)}')
        A(f'v_lshl_add_u32 {v(VOK+i)}, {v(t1)}, 8, {v(t3)}')
        if rot:
            A(f's_xor_b32 s29, {s(SW)}, {i}')
            A('s_lshl_b32 s29, s29, 2')
            A(f'v_add_u32 {v(t3)}, s29, {v(t1)}')
            A(f'v_xor_b32 {v(t3)}, {v(t3)}, {v(t2)}')
            A(f'v_lshlrev_b32 {v(t3)}, 4, {v(t3)}')
        A(f'v_lshl_add_u32 {v(ADK+i)}, {v(t2)}, 8, {v(t3)}')
    for i in range(2):
        A(f'v_add_u32 {v(t3)}, {4*i}, {v(t1)}')
        A(f'v_lshlrev_b32 {v(t3)}, 1, {v(t3)}')
        A(f'v_xor_b32 {v(t3)}, {v(t3)}, {v(t2)}')
        A(f'v_lshlrev_b32 {v(t3)}, 4, {v(t3)}')
        A(f'v_lshl_add_u32 {v(VOV+i)}, {v(t1)}, 8, {v(t3)}')
    A(f'v_lshrrev_b32 {v(r)}, 2, {v(L)}')
    A(f'v_and_b32 {v(t3)}, 3, {v(L)}')
    A(f'v_lshlrev_b32 {v(t3)}, 3, {v(t3)}')
    A(f'v_lshl_add_u32 {v(base)}, {v(r)}, 8, {v(t3)}')
    A(f'v_add_u32 {v(base)}, 0x10000, {v(base)}')
    A(f'v_and_b32 {v(x)}, 7, {v(r)}')
    for dt in range(8):
        A(f'v_xor_b32 {v(t3)}, {dt}, {v(x)}')
        A(f'v_lshl_add_u32 {v(ADV+dt)}, {v(t3)}, 5, {v(base)}')


def kv_dma(A, which, slot, soff, srd=None):
    if which == 'K':
        A(f's_add_u32 m0, {s(SM0)}, {slot*16384}')
        A('s_nop 0')
        for i in range(4):
            A(f'buffer_load_dwordx4 {v(VOK+i)}, {s(srd or SRD_K,4)}, {s(soff)} offen offset:{1024*i} lds')
    else:
        A(f's_add_u32 m0, {s(SM0)}, {65536+slot*16384}')
        A('s_nop 0')
        for i in range(4):
            A(f'buffer_load_dwordx4 {v(VOV+(i&1))}, {s(SRD_V,4)}, {s(soff)} offen offset:{1024*i} lds')


def xlane(A, op, reg, tmp):
    for sw in ('v_permlane32_swap_b32', 'v_permlane16_swap_b32'):
        A(f'v_mov_b32 {v(tmp)}, {v(reg)}')
        A('s_nop 1')
        A(f'{sw} {v(reg)}, {v(tmp)}')
        A(f'{op} {v(reg)}, {v(reg)}, {v(tmp)}')


def attn_start(A, k0=3*16384, ms=False):
    for i in range(4):
        A(f'v_add_u32 {v(T0+16+i)}, {k0}, {v(ADK+i)}')
    for n in range(16):
        A(f'ds_read_b128 {a(KF+4*n,4)}, {v(T0+16+(n&3))} offset:{(n>>2)*4096}')
    for i in range(4):
        A(f'v_mov_b32 {v(LS+i)}, 0')
    zero = [f'v_mov_b32 {v(OACC+i)}, 0' for i in range(128)]
    if ms:
        A(f'v_mov_b32 {v(T0+20)}, 0x3f803f80')
        zero += [f'v_accvgpr_write_b32 {a(LACC+i)}, 0' for i in range(16)] + [f'v_accvgpr_write_b32 {a(ONESV+i)}, {v(T0+20)}' for i in range(4)]
    for _ in range(24):
        A(zero.pop())

    def finish(qt):
        B = Asm()
        S = stile(qt >> 1, qt & 1, 0); m = T0 + 2 * qt
        B(f'v_max3_f32 {v(m)}, {v(S)}, {v(S+1)}, {v(S+2)}')
        for i in range(3, 15, 2):
            B(f'v_max3_f32 {v(m)}, {v(m)}, {v(S+i)}, {v(S+i+1)}')
        B(f'v_max_f32 {v(m)}, {v(m)}, {v(S+15)}')
        xlane(B, 'v_max_f32', m, m + 1)
        for i in range(4):
            B(f'v_sub_f32 {v(NEGM+4*qt+i)}, 0, {v(m)}')
        return [l for l in B.lines if not l.startswith('s_nop')]
    work = []
    for qt in range(4):
        for kt in range(4):
            S = stile(qt >> 1, qt & 1, kt)
            for ks in range(4):
                if qt == 0 and ks == 0:
                    A(f's_waitcnt lgkmcnt({12 - 4 * kt})')
                A(f'{MFMA} {v(S,4)}, {a(KF+4*(4*kt+ks),4)}, {a(QF+4*(4*qt+ks),4)}, {0 if ks == 0 else v(S,4)}')
                if kt == 1 and ks == 0 and qt > 0:
                    work += finish(qt - 1)
                if work:
                    A(work.pop(0))
                    if zero:
                        A(zero.pop())
                else:
                    for _ in range(2):
                        if zero:
                            A(zero.pop())
    for l in work + zero + finish(3):
        A(l)
    for qt in range(4):
        S = stile(qt >> 1, qt & 1, 0)
        for i in range(0, 16, 2):
            A(pk('add', S + i, [S + i, ('b', NEGM + 4 * qt)]))


def attn_open(A, k0, opts):
    for i in range(4):
        A(f'v_add_u32 {v(T0+16+i)}, {k0}, {v(ADK+i)}')
    for n in range(16):
        A(f'ds_read_b128 {a(KF+4*n,4)}, {v(T0+16+(n&3))} offset:{(n>>2)*4096}')
    A(f'v_mov_b32 {v(T0+20)}, 0x3f803f80')
    zero = [f'v_mov_b32 {v(OACC+64+i)}, 0' for i in range(64)] + [f'v_accvgpr_write_b32 {a(LACC+8+i)}, 0' for i in range(8)]
    zero += [f'v_accvgpr_write_b32 {a(ONESV+i)}, {v(T0+20)}' for i in range(4)]
    for _ in range(20):
        A(zero.pop())
    A('s_waitcnt lgkmcnt(12)')
    for qt in range(4):
        S = stile(qt >> 1, qt & 1, 0)
        for ks in range(4):
            A(f'{MFMA} {v(S,4)}, {a(KF+4*ks,4)}, {a(QF+4*(4*qt+ks),4)}, {0 if ks == 0 else v(S,4)}')
            A(zero.pop()); A(zero.pop())
    A(f's_waitcnt vmcnt({opts["first_vm"]})')
    A('s_barrier')
    S4 = [stile(qt >> 1, qt & 1, 0) for qt in range(4)]
    m = lambda qt: T0 + 2 * qt
    steps = [lambda q: f'v_max3_f32 {v(m(q))}, {v(S4[q])}, {v(S4[q]+1)}, {v(S4[q]+2)}', lambda q: f'v_max_f32 {v(m(q))}, {v(m(q))}, {v(S4[q]+3)}']
    for sw in ('v_permlane32_swap_b32', 'v_permlane16_swap_b32'):
        steps += [lambda q: f'v_mov_b32 {v(m(q)+1)}, {v(m(q))}', lambda q, sw=sw: f'{sw} {v(m(q))}, {v(m(q)+1)}',
                  lambda q: f'v_max_f32 {v(m(q))}, {v(m(q))}, {v(m(q)+1)}']
    vr = []
    for n in range(32):
        f, jh = n >> 1, n & 1
        vr.append(f'ds_read_b64_tr_b16 {a(VF+4*f+2*jh,2)}, {v(ADV+(f>>1))} offset:{(32*(f&1)+16*jh)*256}')
    for st in steps:
        for q in range(4):
            A(st(q))
        if zero:
            A(zero.pop())
    for q in range(4):
        for i in range(4):
            A(f'v_sub_f32 {v(NEGM+4*q+i)}, 0, {v(m(q))}')
        for i in range(0, 4, 2):
            A(pk('add', S4[q] + i, [S4[q] + i, ('b', NEGM + 4 * q)]))
    for x in zero:
        A(x)
    A('s_waitcnt lgkmcnt(0)')
    mf = []
    for half in range(2):
        for kt in range(1, 4):
            for ql in range(2):
                qt = 2 * half + ql; S = stile(half, ql, kt)
                for ks in range(4):
                    mf.append(f'{MFMA} {v(S,4)}, {a(KF+4*(4*kt+ks),4)}, {a(QF+4*(4*qt+ks),4)}, {v(NEGM+4*qt,4) if ks == 0 else v(S,4)}')
    mf += [None] * 20
    for dt in range(8):
        for ql in range(2):
            for kp in range(2):
                O = v(OACC + 4 * (8 * ql + dt), 4)
                mf.append(f'{MFMA} {O}, {a(VF+4*(2*dt+kp),4)}, {v(stile(0, ql, 2*kp),4)}, {0 if kp == 0 else O}')
    for ql in range(2):
        for kp in range(2):
            la = a(LACC + 4 * ql, 4)
            mf.append(f'{MFMA} {la}, {a(ONESV,4)}, {v(stile(0, ql, 2*kp),4)}, {0 if kp == 0 else la}')
    NGP = 68 + 56 + 2
    mf += [None] * (NGP - len(mf))
    gaps = [[] for _ in range(NGP)]
    order = [(kt, ql) for kt in range(4) for ql in range(2)]
    for half, g0, cut in ((0, 0, 999), (1, 66, 56)):
        for n, (kt, ql) in enumerate(order):
            S = stile(half, ql, kt)
            for r in range(4):
                e = 8 * n + 2 * r
                if e < cut:
                    gaps[g0 + e].append((0, f'v_exp_f32 {v(S+r)}, {v(S+r)}'))
                if r & 1 and e + 3 < cut:
                    gaps[g0 + e + 3].append((2, f'v_cvt_pk_bf16_f32 {v(S - 2*(kt&1) + (r>>1))}, {v(S+r-1)}, {v(S+r)}'))
    for n, x in enumerate(vr):
        gaps[1 + 2 * n].append((-1, x))
    gaps[67].append((-1, 's_waitcnt lgkmcnt(0)'))
    for n in range(16):
        gaps[69 + 2 * n].append((-1, f'ds_read_b128 {a(KF+4*n,4)}, {v(ADK+(n&3))} offset:{(n>>2)*4096}'))
    for i in range(4):
        gaps[4 + 4 * i].append((-2, (f's_add_u32 m0, {s(SM0)}, {2*16384}\ns_nop 0\n' if i == 0 else '') +
                                f'buffer_load_dwordx4 {v(VOK+i)}, {s(SRD_K,4)}, {s(SOFF)} offen offset:{1024*i} lds'))
        gaps[22 + 4 * i].append((-2, (f's_add_u32 m0, {s(SM0)}, {65536+2*16384}\ns_nop 0\n' if i == 0 else '') +
                                 f'buffer_load_dwordx4 {v(VOV+(i&1))}, {s(SRD_V,4)}, {s(SOFF)} offen offset:{1024*i} lds'))
    gaps[40].append((-2, f's_add_u32 {s(SOFF)}, {s(SOFF)}, 16384'))
    for g in range(NGP):
        if mf[g]:
            A(mf[g])
        for _, x in sorted(gaps[g], key=lambda y: y[0]):
            A(x)


def attn_loop(A, opts=None, pf=()):
    if not opts.get('opened'):
        period(A, 0, first=True, opts=opts, vmn=opts.get('first_vm', 8), extra=opts.get('x0', ()))
    if opts.get('after0'):
        A(opts['after0'])
    A(f's_mov_b32 {s(SCNT)}, 7')
    A.label('L_attn_loop')
    for j in range(1, 5):
        period(A, j, opts=opts, extra=opts.get('loopx', {}).get(j, ()))
    A(f's_sub_u32 {s(SCNT)}, {s(SCNT)}, 1')
    A(f's_cmp_lg_u32 {s(SCNT)}, 0')
    A('s_cbranch_scc1 L_attn_loop')
    n0 = (len(pf) + 1) // 2
    p0 = list(zip([39 + 8 * i for i in range(12)] + [129], pf[:n0]))
    p1 = list(zip([7 + 10 * i for i in range(13)], pf[n0:]))
    nv = lambda l: sum(1 for _, x in l if x.startswith('buffer'))
    period(A, 29, opts=opts, dma_k=False, extra=p0 + list(opts.get('x29', ())))
    period(A, 30, opts=opts, dma_k=False, dma_v=False, extra=p1, vmn=4 + nv(p0))
    period(A, 31, opts=opts, dma_k=False, dma_v=False, vmn=nv(p0) + nv(p1), k_next=False, extra=opts.get('x31', ()))
    period(A, 32, tail=True, opts=opts, extra=list(opts.get('x32', ())), late=early_half(opts))


def store_setup():
    return [f'v_lshlrev_b32 {v(T0+8)}, 4, {v(LANE)}', f's_lshl_b32 s28, {s(SQB)}, 4', f's_lshl_b32 s29, {s(SW)}, 2', 's_add_u32 s28, s28, s29',
            's_lshl_b32 s28, s28, 10', f's_lshl_b32 s29, {s(SHEAD)}, 19', 's_add_u32 s28, s28, s29', f's_lshl_b32 s29, {s(SFLIP)}, 6',
            's_add_u32 s28, s28, s29', 's_xor_b32 s29, s28, 2048']


def half_store(half, stmod, packed):
    out = []; n = 0
    for k in range(4):
        for qt in (2 * half, 2 * half + 1):
            b = OACC + (qt * 8 + 2 * k) * 4
            d = SA + 4 * (n % 4) + 16 * half; n += 1
            if packed:
                out += [pk('mul', b + i, [b + i, ('b', T0 + 4 + qt)]) for i in range(0, 8, 2)]
            else:
                out += [f'v_mul_f32 {v(b+i)}, {v(b+i)}, {v(T0+4+qt)}' for i in range(8)]
            out += [f'v_cvt_pk_bf16_f32 {v(d+i)}, {v(b+2*i)}, {v(b+2*i+1)}' for i in range(4)]
            out.append(f'buffer_store_dwordx4 {v(d,4)}, {v(T0+8)}, {s(SRD_WS,4)}, s{28+half} offen offset:{(qt&1)*1024}{stmod}')
        if k < 3:
            out[-1] += f'\ns_add_u32 s{28+half}, s{28+half}, 0x20000'
    return out


def lsum(qts, opts):
    if opts.get('mx', 4) == 4:
        return [f'v_accvgpr_read_b32 {v(LS+qt)}, {a(LACC+4*qt)}' for qt in qts]
    B = Asm()
    for qt in qts:
        if qt & 1:
            xlane(B, 'v_add_f32', LS + qt, T0)
        else:
            B(f'v_accvgpr_read_b32 {v(LS+qt)}, {a(LACC+4*qt)}')
    return [l for l in B.lines if not l.startswith('s_nop')]


def early_half(opts):
    w = lsum(range(2), opts) + [f'v_rcp_f32 {v(T0+4+qt)}, {v(LS+qt)}' for qt in range(2)]
    w += half_store(0, opts.get('stmod', ''), False)
    out = [(24 + i // 4, x) for i, x in enumerate(store_setup())]
    g = 32; n = 0
    for x in w:
        out.append((min(g, 63 + opts.get('mx', 4)), x))
        n += 1
        if n % 2 == 0:
            g += 1
    return out


def attn_store(A, opts=None):
    for x in lsum(range(2, 4), opts):
        A(x)
    A.label('L_attn_finish')
    for qt in range(4):
        A(f'v_cmp_ngt_f32 s[{32+2*qt}:{33+2*qt}], {s(STHR)}, {v(LS+qt)}')
    for qt in range(2, 4):
        A(f'v_rcp_f32 {v(T0+4+qt)}, {v(LS+qt)}')
    A('s_or_b64 s[32:33], s[32:33], s[34:35]')
    A('s_or_b64 s[36:37], s[36:37], s[38:39]')
    A('s_or_b64 s[32:33], s[32:33], s[36:37]')
    A(f's_and_b64 s[32:33], s[32:33], {s(SARM,2)}')
    A('s_cbranch_scc1 L_attn_exact')
    if opts.get('pre_finish'):
        opts['pre_bar'](A)
        A('s_barrier')
        opts['pre_finish'](A)
    for x in half_store(1, opts.get('stmod', ''), True):
        A(x)


def attn_exact(A, srd_kfull, stmod=''):
    KO = T0 + 9; M = T0 + 12; AV = SA + 0
    A.label('L_attn_exact')
    A(f's_mov_b64 {s(SARM,2)}, 0')
    A('s_waitcnt vmcnt(0)')
    A(f'v_and_b32 {v(KO)}, 15, {v(LANE)}')
    A(f'v_lshrrev_b32 {v(T0)}, 4, {v(LANE)}')
    A(f'v_lshlrev_b32 {v(T0)}, 4, {v(T0)}')
    A(f'v_lshl_add_u32 {v(KO)}, {v(KO)}, 8, {v(T0)}')
    for ks in range(4):
        A(f's_xor_b32 s{32+ks}, {s(SW)}, {ks}')
        A(f's_lshl_b32 s{32+ks}, s{32+ks}, 6')
    A(f's_and_b32 s36, {s(SW)}, 1')
    A('s_lshl_b32 s36, s36, 14')
    A(f's_lshr_b32 s37, {s(SW)}, 1')
    A('s_lshl_b32 s37, s37, 16')
    A('s_add_u32 s36, s36, s37')
    A('s_sub_u32 s37, s36, 0x10000')
    for dt in range(8):
        A(f'v_add_u32 {v(ADV+dt)}, s37, {v(ADV+dt)}')
    for i in range(4):
        A(f'v_mov_b32 {v(M+i)}, 0xff800000')
        A(f'v_mov_b32 {v(LS+i)}, 0')
    for i in range(16):
        A(f'v_mov_b32 {v(NEGM+i)}, 0')
    for i in range(128):
        A(f'v_mov_b32 {v(OACC+i)}, 0')
    A('s_mov_b32 s38, 0')
    A.label('L_ex_sweep')
    A('s_mov_b32 s39, 0')
    A.label('L_ex_tile')
    for kt in range(4):
        for ks in range(4):
            A(f's_add_u32 s31, s39, s{32+ks}')
            A(f's_add_u32 s31, s31, {4096*kt}')
            A(f'buffer_load_dwordx4 {a(KF+4*(4*kt+ks),4)}, {v(KO)}, {s(srd_kfull,4)}, s31 offen')
    A('s_cmp_eq_u32 s38, 0')
    A('s_cbranch_scc1 L_ex_nov')
    for grp in range(4):
        A(f's_add_u32 m0, s36, {4096*grp}')
        A(f's_add_u32 s31, s39, {4096*grp}')
        for i in range(4):
            A(f'buffer_load_dwordx4 {v(VOV+(i&1))}, {s(SRD_V,4)}, s31 offen offset:{1024*i} lds')
    A.label('L_ex_nov')
    A('s_waitcnt vmcnt(0)')
    for qt in range(4):
        for kt in range(4):
            S = stile(qt >> 1, qt & 1, kt)
            for ks in range(4):
                A(f'{MFMA} {v(S,4)}, {a(KF+4*(4*kt+ks),4)}, {a(QF+4*(4*qt+ks),4)}, {v(NEGM+4*qt,4) if ks == 0 else v(S,4)}')
    A('s_cmp_eq_u32 s38, 0')
    A('s_cbranch_scc0 L_ex_pv')
    A('s_nop 7')
    for qt in range(4):
        S = stile(qt >> 1, qt & 1, 0)
        for i in range(0, 16, 2):
            A(f'v_max3_f32 {v(M+qt)}, {v(M+qt)}, {v(S+i)}, {v(S+i+1)}')
    A('s_branch L_ex_next')
    A.label('L_ex_pv')
    for n in range(32):
        f, jh = n >> 1, n & 1
        A(f'ds_read_b64_tr_b16 {a(VF+4*f+2*jh,2)}, {v(ADV+(f>>1))} offset:{(32*(f&1)+16*jh)*256}')
    for i in range(64):
        A(f'v_exp_f32 {v(SA+i)}, {v(SA+i)}')
    for i in range(64):
        A(f'v_add_f32 {v(LS+(i>>4))}, {v(LS+(i>>4))}, {v(SA+i)}')
    for i in range(32):
        A(f'v_cvt_pk_bf16_f32 {v(SA+8*(i>>2)+(i&3))}, {v(SA+2*i)}, {v(SA+2*i+1)}')
    A('s_waitcnt lgkmcnt(0)')
    for qt in range(4):
        for dt in range(8):
            for kp in range(2):
                O = OACC + 4 * (8 * qt + dt)
                A(f'{MFMA} {v(O,4)}, {a(VF+4*(2*dt+kp),4)}, {v(stile(qt >> 1, qt & 1, 2*kp),4)}, {v(O,4)}')
    A.label('L_ex_next')
    A('s_add_u32 s39, s39, 16384')
    A('s_cmp_lt_u32 s39, 0x80000')
    A('s_cbranch_scc1 L_ex_tile')
    A('s_cmp_eq_u32 s38, 0')
    A('s_cbranch_scc0 L_ex_done')
    for qt in range(4):
        xlane(A, 'v_max_f32', M + qt, T0)
        for i in range(4):
            A(f'v_sub_f32 {v(NEGM+4*qt+i)}, 0, {v(M+qt)}')
    A('s_mov_b32 s38, 1')
    A('s_branch L_ex_sweep')
    A.label('L_ex_done')
    for qt in range(4):
        xlane(A, 'v_add_f32', LS + qt, T0)
    for qt in range(2):
        A(f'v_rcp_f32 {v(T0+4+qt)}, {v(LS+qt)}')
    for x in store_setup() + half_store(0, stmod, True):
        A(x)
    A('s_branch L_attn_finish')
```

```python
from asmlib import Asm, v, a, s, pk
from gen_attn16 import *

X_RING = 0
W_RING = 65536
K0_LDS = 139264
CS_LDS = 155648
VXO = 0
VWQ = 8
VW1 = 12
RX = 14
RWQ = 16
RW1 = 20
B1R = 24
CSR = 32
PT = 64
XB = 0
AR = 64
ONESA = 96
HB, HE, SUM, GRAM, CSQ, CS1 = 128, 160, 176, 192, 208, 216
SRD_X, SRD_WQ, SRD_W1, SRD_K0, SRD_H, SRD_B1 = 16, 40, 44, 48, 52, 56
SXM, SXO, SWQO, SW1O, SM1, SFLIP = 60, 61, 62, 63, 64, 65
SROT, SXT, SXT2, SWQT, SW1T = 28, 74, 75, 76, 77
NPOS = 14


def p1_lane_setup(A, exp=None):
    L = LANE; t1, t2, t3, t4 = PT, PT + 1, PT + 2, PT + 3
    A(f'v_lshrrev_b32 {v(t1)}, 3, {v(L)}')
    A(f'v_lshrrev_b32 {v(t2)}, 4, {v(L)}')
    A(f'v_and_b32 {v(t3)}, 7, {v(L)}')
    for i in range(2):
        A(f'v_add_u32 {v(t4)}, {4*i}, {v(t2)}')
        A(f'v_xor_b32 {v(t4)}, {v(t4)}, {v(t3)}')
        A(f'v_lshlrev_b32 {v(t4)}, 4, {v(t4)}')
        A(f'v_lshl_add_u32 {v(VXO+i)}, {v(t1)}, 10, {v(t4)}')
    A(f'v_add_u32 {v(VXO+1)}, 7168, {v(VXO+1)}')
    for i in range(2):
        A(f'v_add_u32 {v(VXO+2+i)}, 14336, {v(VXO+i)}')
    A(f'v_and_b32 {v(t3)}, 15, {v(L)}')
    A(f'v_lshlrev_b32 {v(t4)}, 2, {v(t2)}')
    A(f'v_xor_b32 {v(t4)}, {v(t4)}, {v(t3)}')
    A(f'v_lshlrev_b32 {v(t4)}, 4, {v(t4)}')
    A(f'v_lshl_add_u32 {v(VWQ)}, {v(t2)}, 13, {v(t4)}')
    for i in range(1, 4):
        A(f'v_add_u32 {v(VWQ+i)}, {4*i*8192 - 1024*i}, {v(VWQ)}')
    A(f's_lshl_b32 s30, {s(SHEAD)}, 6')
    A(f's_lshr_b32 s31, {s(SHEAD)}, 1')
    A('s_add_u32 s31, s31, 32')
    A('s_lshl_b32 s31, s31, 6')
    A('s_movk_i32 s29, 2752')
    if exp == 'adj':
        A('s_lshl_b32 s30, s30, 1\ns_and_b32 s30, s30, 0x7ff\ns_add_u32 s31, s30, 64')
    if exp == 'same':
        A('s_mov_b32 s31, s30')
    if exp == 'al':
        A('s_lshl_b32 s30, s30, 1\ns_and_b32 s30, s30, 0x7ff\ns_add_u32 s31, s30, 64\ns_movk_i32 s29, 2688')
    A(f'v_mov_b32 {v(PT+5)}, s31')
    for i in range(2):
        A(f'v_and_b32 {v(t3)}, 7, {v(L)}')
        A(f'v_and_b32 {v(t4)}, 1, {v(t2)}')
        A(f'v_lshlrev_b32 {v(t4)}, 1, {v(t4)}')
        A(f'v_xor_b32 {v(t3)}, {v(t3)}, {v(t4)}')
        if i:
            A(f'v_xor_b32 {v(t3)}, 4, {v(t3)}')
        A(f'v_and_b32 {v(t4)}, 3, {v(t3)}')
        A(f'v_lshlrev_b32 {v(t4)}, 4, {v(t4)}')
        A(f'v_mov_b32 {v(PT+4)}, s30')
        A(f'v_cmp_gt_u32 vcc, 4, {v(t3)}')
        A(f'v_cndmask_b32 {v(PT+4)}, {v(PT+5)}, {v(PT+4)}, vcc')
        A(f'v_add_u32 {v(t4)}, {v(t4)}, {v(PT+4)}')
        A(f'v_mad_u32_u24 {v(VW1+i)}, {v(t1)}, s29, {v(t4)}')
    A(f'v_add_u32 {v(VW1+1)}, {8*2752 - 1024}, {v(VW1+1)}')


def p1_read_setup(A):
    L = LANE; t1, t2, t3, t4 = PT, PT + 1, PT + 2, PT + 3
    A(f'v_lshrrev_b32 {v(t2)}, 4, {v(L)}')
    A(f'v_and_b32 {v(t3)}, 15, {v(L)}')
    A(f'v_lshrrev_b32 {v(t4)}, 1, {v(t3)}')
    A(f'v_lshlrev_b32 {v(t3)}, 7, {v(t3)}')
    A(f'v_add_u32 {v(t3)}, {s(SXM)}, {v(t3)}')
    for kk in range(2):
        A(f'v_add_u32 {v(t1)}, {4*kk}, {v(t2)}')
        A(f'v_xor_b32 {v(t1)}, {v(t1)}, {v(t4)}')
        A(f'v_lshl_add_u32 {v(RX+kk)}, {v(t1)}, 4, {v(t3)}')
    A(f'v_bfe_u32 {v(t3)}, {v(L)}, 2, 2')
    A(f'v_lshl_add_u32 {v(t1)}, {v(t2)}, 3, {v(t3)}')
    A(f'v_and_b32 {v(PT+4)}, 1, {v(t2)}')
    A(f'v_and_b32 {v(t2)}, 3, {v(L)}')
    A(f'v_lshlrev_b32 {v(PT+5)}, 4, {v(t2)}')
    A(f'v_lshl_add_u32 {v(PT+5)}, {v(t1)}, 8, {v(PT+5)}')
    A(f'v_add_u32 {v(PT+5)}, {W_RING}, {v(PT+5)}')
    for k in range(4):
        A(f's_xor_b32 s29, {s(SW)}, {k}')
        A(f'v_xor_b32 {v(t4)}, s29, {v(t3)}')
        A(f'v_lshl_add_u32 {v(RWQ+k)}, {v(t4)}, 6, {v(PT+5)}')
    A(f'v_lshrrev_b32 {v(t3)}, 1, {v(t3)}')
    A(f'v_lshl_add_u32 {v(t3)}, {v(PT+4)}, 1, {v(t3)}')
    A(f'v_lshlrev_b32 {v(t2)}, 3, {v(t2)}')
    A(f'v_lshl_add_u32 {v(t2)}, {v(t1)}, 7, {v(t2)}')
    A(f'v_add_u32 {v(t2)}, {W_RING + 16384}, {v(t2)}')
    for u in range(4):
        A(f'v_xor_b32 {v(t4)}, {u}, {v(t3)}')
        A(f'v_lshl_add_u32 {v(RW1+u)}, {v(t4)}, 5, {v(t2)}')
    A(f'v_mov_b32 {v(t1)}, 0x3f803f80')
    for i in range(4):
        A(f'v_accvgpr_write_b32 {a(ONESA+i)}, {v(t1)}')


class VM:
    def __init__(self):
        self.ops = []

    def add(self, tag):
        self.ops.append(tag)

    def wait_for(self, tags):
        idx = max(i for i, t in enumerate(self.ops) if t in tags)
        n = len(self.ops) - 1 - idx
        n = min(n, 63)
        return n


def x_dma(c):
    out = []
    for i in range(8):
        pre = f's_add_u32 m0, {s(SXM)}, {X_RING + (c & 1)*32768 + (i >> 2)*4096}\n' if i & 3 == 0 else ''
        if i == 0:
            pre = (f's_add_u32 s78, {s(SROT)}, {c}\ns_and_b32 s78, s78, 7\ns_lshl_b32 s78, s78, 7\n'
                   f's_add_u32 {s(SXT)}, {s(SXO)}, s78\ns_xor_b32 {s(SXT2)}, {s(SXT)}, 0x8000\n') + pre
        so = SXT if i < 4 else SXT2
        out.append((pre, f'buffer_load_dwordx4 {v(VXO+(i&3))}, {s(SRD_X,4)}, {s(so)} offen offset:{1024*(i&3)} lds'))
    return out


def w_dma(c):
    sl = W_RING + (c % 3) * 24576
    out = []
    for i in range(4):
        pre = ''
        if i == 0:
            pre = (f's_add_u32 s78, {s(SROT)}, {c}\ns_and_b32 s78, s78, 7\ns_lshl_b32 s79, s78, 19\n'
                   f's_add_u32 {s(SWQT)}, {s(SWQO)}, s79\ns_mul_i32 s79, s78, {64*2752}\ns_add_u32 {s(SW1T)}, {s(SW1O)}, s79\n'
                   f's_add_u32 m0, {s(SM0)}, {sl}\n')
        out.append((pre, f'buffer_load_dwordx4 {v(VWQ+i)}, {s(SRD_WQ,4)}, {s(SWQT)} offen offset:{1024*i} lds'))
    for i in range(2):
        pre = f's_add_u32 m0, {s(SM1)}, {sl + 16384}\n' if i == 0 else ''
        out.append((pre, f'buffer_load_dwordx4 {v(VW1+i)}, {s(SRD_W1,4)}, {s(SW1T)} offen offset:{1024*i} lds'))
    return out


def kv_list(which, slot, srd=None):
    out = []
    for i in range(4):
        if which == 'K':
            pre = f's_add_u32 m0, {s(SM0)}, {slot*16384}\n' if i == 0 else ''
            out.append((pre, f'buffer_load_dwordx4 {v(VOK+i)}, {s(srd or SRD_K,4)}, {s(SOFF)} offen offset:{1024*i} lds'))
        else:
            pre = f's_add_u32 m0, {s(SM0)}, {65536+slot*16384}\n' if i == 0 else ''
            out.append((pre, f'buffer_load_dwordx4 {v(VOV+(i&1))}, {s(SRD_V,4)}, {s(SOFF)} offen offset:{1024*i} lds'))
    return out


def tile_reads(c, t):
    out = []
    for kk in range(2):
        for jh in range(2):
            dst = a(AR + 8 * (t % 4) + 4 * kk + 2 * jh, 2)
            if t < 8:
                off = (c % 3) * 24576 + (32 * kk + 4 * jh) * 256 + 8 * (t & 1)
                out.append(f'ds_read_b64_tr_b16 {dst}, {v(RWQ+(t>>1))} offset:{off}')
            else:
                off = (c % 3) * 24576 + (32 * kk + 4 * jh) * 128
                out.append(f'ds_read_b64_tr_b16 {dst}, {v(RW1+t-8)} offset:{off}')
    return out


def x_reads(c):
    out = []
    for kk in range(2):
        for qt in range(4):
            out.append(f'ds_read_b128 {a(XB+32*(c&1)+4*(4*kk+qt),4)}, {v(RX+kk)} offset:{X_RING+(c&1)*32768+qt*2048}')
    return out


def tile_mfmas(c, pos):
    xs = XB + 32 * (c & 1)
    out = []

    def mm(acc, A_, B_, kk):
        out.append(f'{MFMA} {acc}, {A_}, {B_}, {0 if (c == 0 and kk == 0) else acc}')
    xf = lambda kk, qt: a(xs + 4 * (4 * kk + qt), 4)
    ones = a(ONESA, 4)
    if pos < 12:
        wf = lambda kk: a(AR + 8 * (pos % 4) + 4 * kk, 4)
        nq = 2 if pos >= 10 else 4
        for qt in range(nq):
            if pos < 8:
                acc = v(OACC + 4 * (8 * qt + pos), 4)
            elif pos < 10:
                acc = a(HB + 4 * (4 * (pos - 8) + qt), 4)
            else:
                acc = a(HE + 4 * (2 * (pos - 10) + qt), 4)
            for kk in range(2):
                mm(acc, wf(kk), xf(kk, qt), kk)
        if pos < 2 or pos >= 8:
            acc = a(CSQ + 4 * pos, 4) if pos < 2 else a(CS1 + 4 * (pos - 8), 4)
            for kk in range(2):
                mm(acc, wf(kk), ones, kk)
    else:
        for qt in (2 * (pos - 12), 2 * (pos - 12) + 1):
            for kk in range(2):
                mm(a(SUM + 4 * qt, 4), ones, xf(kk, qt), kk)
            for kk in range(2):
                mm(a(GRAM + 4 * qt, 4), xf(kk, qt), xf(kk, qt), kk)
    return out


def phase1(A, vm, diag=False, side=(), early=0, side2=()):
    lds = []
    done = [-1]

    def lds_wait(tag):
        idx = max(i for i, t in enumerate(lds) if t == tag)
        if idx > done[0]:
            n = len(lds) - 1 - idx
            A(f's_waitcnt lgkmcnt({min(n, 15)})')
            done[0] = idx

    A(f's_waitcnt vmcnt({vm.wait_for([("x", 0), ("W", 0)])})')
    if diag:
        A('s_memrealtime s[66:67]\ns_waitcnt lgkmcnt(0)\nv_writelane_b32 v63, s66, 12')
    A('s_barrier')
    if diag:
        A('s_memrealtime s[66:67]\ns_waitcnt lgkmcnt(0)\nv_writelane_b32 v63, s66, 13')
    for r in x_reads(0):
        A(r); lds.append(('x', 0))
    for t in range(2):
        for r in tile_reads(0, t):
            A(r); lds.append(('t', 0, t))
    for c in range(8):
        if diag:
            A(f's_memrealtime s[{66+2*(c&1)}:{67+2*(c&1)}]')
            if c:
                A(f'v_writelane_b32 v63, s{66+2*((c-1)&1)}, {c-1}')
        if c == 5:
            assert not side
            side = side2
        for pos in range(NPOS):
            mf = tile_mfmas(c, pos)
            fill = [[] for _ in mf]
            slot = [0]

            def put(txt, tag=None, kind=None, at=None):
                i = slot[0] if at is None else at
                fill[i].append((txt, tag, kind))
                if at is None:
                    slot[0] += 1

            def put_dma(lst, tag):
                for pre, ins in lst:
                    if pre:
                        fill[max(slot[0] - 1, 0)].append((pre.strip(), None, None))
                        slot[0] = max(slot[0], 1)
                    put(ins, tag, 'vm')
            if pos == 12:
                if c < 7:
                    put(('vmwait', [('W', c + 1)]))
                put('s_barrier')
            nxt = (c, pos + 2) if pos + 2 < 12 else ((c + 1, pos - 12) if pos >= 12 and c < 7 else None)
            if nxt:
                for r in tile_reads(*nxt):
                    put(r, ('t',) + nxt, 'lds')
            if c < 7:
                if pos == 10:
                    put(('vmwait', [('x', c + 1)]))
                if pos in (10, 11):
                    for r in x_reads(c + 1)[4 * (pos - 10):4 * (pos - 10) + 4]:
                        put(r, ('x', c + 1), 'lds')
            if c == 0:
                plan0 = {0: (x_dma(1)[:4], ('x', 1)), 1: (x_dma(1)[4:], ('x', 1)), 2: (w_dma(1)[:3], ('W', 1)), 3: (w_dma(1)[3:], ('W', 1)),
                         4: (x_dma(2)[:4], ('x', 2)), 5: (x_dma(2)[4:], ('x', 2)), 6: (w_dma(2)[:3], ('W', 2)), 7: (w_dma(2)[3:], ('W', 2))}
                if early:
                    plan0 = {k - 4: x for k, x in plan0.items() if k >= 4}
                if pos in plan0:
                    put_dma(*plan0[pos])
            elif pos in (0, 1, 2, 3) and c + 2 <= 7:
                put_dma(x_dma(c + 2)[2 * pos:2 * pos + 2], ('x', c + 2))
            if pos in (12, 13) and c + 3 <= 7:
                put_dma(w_dma(c + 3)[2 * (pos - 12) + 0:2 + 4 * (pos - 12)], ('W', c + 3))
            if c == 6 and pos == 4:
                put_dma([(f's_add_u32 m0, {s(SM0)}, {K0_LDS}\n' if i == 0 else '',
                          f'buffer_load_dwordx4 {v(VOK+i)}, {s(SRD_K0,4)}, {s(SOFF)} offen offset:{1024*i} lds') for i in range(4)], 'k0')
            if c == 7 and pos in (0, 1, 2):
                lst = [kv_list('K', 0), kv_list('V', 0), kv_list('K', 1)][pos]
                put_dma(lst, ('kv', 0 if pos < 2 else 1))
                if pos == 1:
                    fill[-1].append((f's_add_u32 {s(SOFF)}, {s(SOFF)}, 16384', None, None))
            if c == 7 and pos == 12:
                put_dma(kv_list('V', 1), ('kv', 1))
                fill[-1].append((f's_add_u32 {s(SOFF)}, {s(SOFF)}, 16384', None, None))
            if pos < 12:
                lds_wait(('t', c, pos))
            for m, fl in zip(mf, fill):
                A(m)
                if not fl and side and (c, pos) >= (0, 8):
                    for _ in range(2):
                        if side:
                            txt, tag = side.pop(0)
                            A(txt)
                            if tag:
                                vm.add(tag)
                            if tag or txt.startswith('s_add_u32 m0'):
                                break
                for txt, tag, kind in fl:
                    if isinstance(txt, tuple):
                        A(f's_waitcnt vmcnt({vm.wait_for(txt[1])})')
                        continue
                    A(txt)
                    if kind == 'lds':
                        lds.append(tag)
                    elif kind == 'vm':
                        vm.add(tag)


WS_S = 41 << 20
SRD_S, SRD_D = 84, 88
ROWR, UNP, STR, STL = 32, 40, 56, 104


def stat_loads(A, vm):
    A(f'v_lshlrev_b32 {v(PT+9)}, 5, {v(LANE)}')
    A(f's_lshl_b32 s26, {s(SQB)}, 5\ns_add_u32 s26, s26, {s(SHEAD)}\ns_lshl_b32 s26, s26, 2\ns_add_u32 s26, s26, {s(SW)}\ns_lshl_b32 s31, s26, 11')
    for i in range(2):
        A(f'buffer_load_dwordx4 {v(ROWR+4*i,4)}, {v(PT+9)}, {s(SRD_X,4)}, s31 offen offset:{16*i}'); vm.add('row')
    A('s_lshl_b32 s69, s26, 5')


def half_sum(B, r, t):
    for m in ('quad_perm:[1,0,3,2]', 'quad_perm:[2,3,0,1]', 'row_half_mirror', 'row_mirror'):
        B(f'v_add_f32_dpp {v(r)}, {v(r)}, {v(r)} {m} row_mask:0xf bank_mask:0xf')
    B(f'v_mov_b32 {v(t)}, {v(r)}')
    B(f'v_permlane16_swap_b32 {v(r)}, {v(t)}')
    B(f'v_add_f32 {v(r)}, {v(r)}, {v(t)}')


def stat_work(ws_lo, ws_hi, dbg_lo):
    B = Asm()
    a0, a1, t = STR, STR + 1, STR + 3
    for i in range(16):
        B(f'v_and_b32 {v(UNP+i)}, 0xffff0000, {v(ROWR+(i>>1))}' if i & 1 else f'v_lshlrev_b32 {v(UNP+i)}, 16, {v(ROWR+(i>>1))}')
    B(f'v_add_f32 {v(a0)}, {v(UNP)}, {v(UNP+1)}')
    B(f'v_add_f32 {v(a1)}, {v(UNP+2)}, {v(UNP+3)}')
    for i in range(4, 16):
        B(f'v_add_f32 {v(a0+(i&1))}, {v(a0+(i&1))}, {v(UNP+i)}')
    B(f'v_add_f32 {v(a0)}, {v(a0)}, {v(a1)}')
    half_sum(B, a0, t)
    B(f'v_mul_f32 {v(a0)}, 0xbb000000, {v(a0)}')
    for i in range(16):
        B(f'v_add_f32 {v(UNP+i)}, {v(UNP+i)}, {v(a0)}')
    B(f'v_mul_f32 {v(a1)}, {v(UNP)}, {v(UNP)}')
    B(f'v_mul_f32 {v(a1+1)}, {v(UNP+1)}, {v(UNP+1)}')
    for i in range(2, 16):
        B(f'v_fmac_f32 {v(a1+(i&1))}, {v(UNP+i)}, {v(UNP+i)}')
    B(f'v_add_f32 {v(a1)}, {v(a1)}, {v(a1+1)}')
    half_sum(B, a1, t)
    B(f'v_mul_f32 {v(a1)}, 0x3b000000, {v(a1)}')
    B(f'v_add_f32 {v(t)}, 0x3727c5ac, {v(a1)}')
    B(f'v_rsq_f32 {v(t)}, {v(t)}')
    B(f'v_mov_b32 {v(UNP)}, 0x3727c5ac')
    B(f'v_mul_f32 {v(a1)}, {v(a1)}, {v(t)}')
    B(f'v_fma_f32 {v(a1+1)}, {v(a1)}, {v(t)}, {v(UNP)}')
    B(f'v_rsq_f32 {v(a1+1)}, {v(a1+1)}')
    B(f'v_mul_f32 {v(a1)}, 0x3e0293ee, {v(t)}')
    B(f'v_and_b32 {v(UNP)}, 31, {v(LANE)}')
    B(f'v_mul_f32 {v(a1+1)}, {v(a1+1)}, {v(t)}')
    B(f'v_lshrrev_b32 {v(UNP+1)}, 1, {v(LANE)}')
    B(f'v_lshl_add_u32 {v(UNP)}, {v(UNP)}, 20, {v(UNP+1)}')
    items = [(l, None) for l in B.lines]
    items.append((f's_add_u32 s{SRD_S}, s{ws_lo}, {WS_S}\ns_addc_u32 s{SRD_S+1}, s{ws_hi}, 0', None))
    items.append((f's_mov_b32 s{SRD_S+2}, 32768\ns_mov_b32 s{SRD_S+3}, 0x20000', None))
    items.append((f'buffer_store_dwordx4 {v(STR,4)}, {v(UNP)}, {s(SRD_S,4)}, s69 offen sc1', 'st'))
    items.append((f's_mov_b32 s{SRD_D}, s{dbg_lo}\ns_mov_b32 s{SRD_D+1}, s{dbg_lo+1}', None))
    items.append((f's_movk_i32 s{SRD_D+2}, 256\ns_mov_b32 s{SRD_D+3}, 0x20000', None))
    items.append((f'v_and_b32 {v(UNP+2)}, 7, {v(LANE)}\nv_lshlrev_b32 {v(UNP+2)}, 2, {v(UNP+2)}', None))
    items.append((f's_lshl_b32 s69, {s(SQB)}, 5', None))
    return items


def phase1c(A, vm, cold, diag=False, side=(), pubc=3):
    lds = []
    done = [-1]
    Z = UNP + 2

    def lds_wait(tag):
        idx = max(i for i, t in enumerate(lds) if t == tag)
        if idx > done[0]:
            A(f's_waitcnt lgkmcnt({min(len(lds) - 1 - idx, 15)})')
            done[0] = idx

    A(f's_waitcnt vmcnt({vm.wait_for([("x", 0), ("W", 0)])})')
    A('s_barrier')
    for r in x_reads(0):
        A(r); lds.append(('x', 0))
    for t in range(2):
        for r in tile_reads(0, t):
            A(r); lds.append(('t', 0, t))
    for c in range(8):
        if diag:
            A(f's_waitcnt lgkmcnt(0)\ns_memrealtime s[100:101]\ns_waitcnt lgkmcnt(0)\nv_writelane_b32 v63, s100, {c}')
            done[0] = len(lds) - 1
        for pos in range(12):
            mf = tile_mfmas(c, pos)
            fill = [[] for _ in mf]
            slot = [0]

            def put(txt, tag=None, kind=None):
                fill[min(slot[0], len(mf) - 1)].append((txt, tag, kind)); slot[0] += 1

            def put_dma(lst, tag):
                for pre, ins in lst:
                    if pre:
                        fill[max(min(slot[0], len(mf)) - 1, 0)].append((pre.strip(), None, None))
                        slot[0] = max(slot[0], 1)
                    put(ins, tag, 'vm')
            if pos == 10:
                tags = ([('W', c + 1)] if c < 7 else []) + (['st'] if c == pubc else []) + (['mask'] if c == 6 else [])
                put(('bar', tags))
                if c == pubc:
                    assert 'st' in vm.ops
                    put('\n'.join([f's_cmp_lg_u32 {s(SW)}, 0', 's_cbranch_scc1 L_st_sig', f's_add_u32 s30, s69, {s(SHEAD)}', 's_mov_b64 exec, 1',
                                   f'v_mov_b32 {v(Z+1)}, 1', f'buffer_store_byte {v(Z+1)}, {v(Z)}, {s(SRD_D,4)}, s30 offen sc1',
                                   's_mov_b64 exec, -1', 'L_st_sig:']))
                if c == 6:
                    chk = f'v_and_b32 {v(Z+1)}, 0x01010101, {v(Z+1)}\nv_cmp_ne_u32 vcc, 0x01010101, {v(Z+1)}'
                    put(chk)
                    put('s_nop 0\ns_cbranch_vccnz L_st_poll\nL_st_ok:')
                    cold.append('\n'.join(['L_st_poll:', 's_mov_b32 s31, 0x40000', 'L_st_again:',
                                           f'buffer_load_dword {v(Z+1)}, {v(Z)}, {s(SRD_D,4)}, s69 offen sc1', 's_waitcnt vmcnt(0)', chk,
                                           's_sub_u32 s31, s31, 1', 's_cbranch_scc1 L_st_ok', 's_cbranch_vccnz L_st_again', 's_branch L_st_ok']))
            nxt = (c, pos + 2) if pos + 2 < 12 else ((c + 1, pos - 10) if c < 7 else None)
            if nxt:
                for r in tile_reads(*nxt):
                    put(r, ('t',) + nxt, 'lds')
            if c < 7 and pos in (6, 7, 8, 9):
                if pos == 6:
                    put(('vmwait', [('x', c + 1)]))
                for r in x_reads(c + 1)[2 * (pos - 6):2 * (pos - 6) + 2]:
                    put(r, ('x', c + 1), 'lds')
            if c + 2 <= 7:
                if pos in (0, 1):
                    put_dma(w_dma(c + 2)[3 * pos:3 * pos + 3], ('W', c + 2))
                if pos in (2, 3, 4, 5):
                    put_dma(x_dma(c + 2)[2 * (pos - 2):2 * (pos - 2) + 2], ('x', c + 2))
            if c == 5 and pos == 9:
                fill[7].append((f'buffer_load_dword {v(Z+1)}, {v(Z)}, {s(SRD_D,4)}, s69 offen sc1', 'mask', 'vm'))
            if c == 6 and pos == 2:
                put_dma([(f's_add_u32 m0, {s(SM0)}, {K0_LDS}\n' if i == 0 else '',
                          f'buffer_load_dwordx4 {v(VOK+i)}, {s(SRD_K0,4)}, {s(SOFF)} offen offset:{1024*i} lds') for i in range(4)], 'k0')
            if c == 6 and pos == 4:
                put(f'v_and_b32 {v(Z+2)}, 15, {v(LANE)}\nv_lshlrev_b32 {v(Z+2)}, 4, {v(Z+2)}')
                put(f's_lshl_b32 s26, {s(SQB)}, 12\ns_lshl_b32 s27, {s(SW)}, 10\ns_add_u32 s26, s26, s27')
                put(f's_lshl_b32 s27, {s(SFLIP)}, 4\ns_add_u32 s26, s26, s27\ns_xor_b32 s27, s26, 512')
            if c == 7 and pos == 3:
                for qt in range(4):
                    put(f'buffer_load_dwordx4 {v(STL+4*qt,4)}, {v(Z+2)}, {s(SRD_S,4)}, s{26+(qt>>1)} offen offset:{256*(qt&1)} sc1', 'stl', 'vm')
            if c == 7 and pos in (0, 1, 2):
                lst = [kv_list('K', 0), kv_list('V', 0), kv_list('K', 1)][pos]
                put_dma(lst, ('kv', 0 if pos < 2 else 1))
                if pos == 1:
                    fill[-1].append((f's_add_u32 {s(SOFF)}, {s(SOFF)}, 16384', None, None))
            if c == 7 and pos == 10:
                put_dma(kv_list('V', 1), ('kv', 1))
                fill[-1].append((f's_add_u32 {s(SOFF)}, {s(SOFF)}, 16384', None, None))
            lds_wait(('t', c, pos))
            for m, fl in zip(mf, fill):
                A(m)
                n = 2 if not fl else (1 if len(fl) == 1 and fl[0][2] == 'lds' else 0)
                while n and side and (not side[0][1] or not fl):
                    txt, tag = side.pop(0)
                    A(txt); n -= 1
                    if tag:
                        vm.add(tag); n = 0
                    if not side:
                        vm.ops.insert(0, 'sd')
                for txt, tag, kind in fl:
                    if isinstance(txt, tuple):
                        if txt[0] == 'bar':
                            A((f's_waitcnt vmcnt({vm.wait_for(txt[1])}) lgkmcnt(0)' if txt[1] else 's_waitcnt lgkmcnt(0)') + '\ns_barrier')
                            done[0] = len(lds) - 1
                        else:
                            A(f's_waitcnt vmcnt({vm.wait_for(txt[1])})')
                        continue
                    A(txt)
                    if kind == 'lds':
                        lds.append(tag)
                    elif kind == 'vm':
                        vm.add(tag)


def p1_epilogue(A, vm, stmod='', coop=False):
    L = LANE
    lo = PT; t0 = PT + 1; t1 = PT + 2; t2 = PT + 3; t3 = PT + 4
    if coop:
        nmu = lambda qt: STL + 4 * qt; aq = lambda qt: STL + 4 * qt + 1; ah = lambda qt: STL + 4 * qt + 2
        KC = T0 + 16
    else:
        nmu = lambda qt: T0 + qt; aq = lambda qt: T0 + 4 + qt; ah = lambda qt: T0 + 8 + qt
        KC = T0 + 12
    NMU, AQ, AH = T0, T0 + 4, T0 + 8
    A(f'v_lshlrev_b32 {v(lo)}, 4, {v(L)}')
    A(f's_lshl_b32 s29, {s(SW)}, 11')
    A(f's_add_u32 s29, s29, {CS_LDS}')
    A(f'v_add_u32 {v(t0)}, s29, {v(lo)}')
    for e in range(2):
        A(f'ds_write_b128 {v(t0)}, {a(CSQ+4*e,4)} offset:{1024*e}')
    if not coop:
        A(f'v_and_b32 {v(t1)}, 3, {v(L)}')
        for k in range(1, 4):
            A(f'v_cmp_eq_u32 s[{66+2*k}:{67+2*k}], {k}, {v(t1)}')
        A(f'v_bfe_u32 {v(t1)}, {v(L)}, 2, 2')
        A(f'v_lshrrev_b32 {v(t2)}, 4, {v(L)}')
        A(f'v_cmp_eq_u32 s[74:75], {v(t1)}, {v(t2)}')
        A('s_mov_b32 s76, 0x3b000000')
        A('s_mov_b32 s77, 0x3727c5ac')
        A('s_mov_b32 s78, 0x3e0293ee')
    A(f's_waitcnt vmcnt({vm.wait_for(["k0", "stl"])}) lgkmcnt(0)')
    A('s_barrier')
    for k in range(4):
        A(f's_xor_b32 s29, {s(SW)}, {k}')
        A('s_lshl_b32 s29, s29, 11')
        A(f's_add_u32 s29, s29, {CS_LDS}')
        A(f'v_add_u32 {v(t0)}, s29, {v(lo)}')
        for e in range(2):
            A(f'ds_read_b128 {v(CSR+4*(2*k+e),4)}, {v(t0)} offset:{1024*e}')
    for qt in range(0 if coop else 4):
        g = PT + 8
        for r in range(4):
            A(f'v_accvgpr_read_b32 {v(g+r)}, {a(GRAM+4*qt+r)}')
        A(f'v_accvgpr_read_b32 {v(t1)}, {a(SUM+4*qt)}')
        for k in range(1, 4):
            A(f'v_cndmask_b32 {v(g)}, {v(g)}, {v(g+k)}, s[{66+2*k}:{67+2*k}]')
        A(f'v_cndmask_b32 {v(g)}, 0, {v(g)}, s[74:75]')
        xlane(A, 'v_add_f32', g, g + 1)
        A(f'v_mul_f32 {v(t1)}, s76, {v(t1)}')
        A(f'v_mul_f32 {v(g)}, s76, {v(g)}')
        A(f'v_fma_f32 {v(g)}, -{v(t1)}, {v(t1)}, {v(g)}')
        A(f'v_max_f32 {v(g)}, 0, {v(g)}')
        A(f'v_add_f32 {v(t2)}, s77, {v(g)}')
        A(f'v_rsq_f32 {v(t2)}, {v(t2)}')
        A(f'v_sub_f32 {v(NMU+qt)}, 0, {v(t1)}')
        A(f'v_mul_f32 {v(g)}, {v(g)}, {v(t2)}')
        A(f'v_fma_f32 {v(g)}, {v(g)}, {v(t2)}, s77')
        A(f'v_rsq_f32 {v(g)}, {v(g)}')
        A(f'v_mul_f32 {v(AQ+qt)}, s78, {v(t2)}')
        A(f'v_mul_f32 {v(AH+qt)}, {v(g)}, {v(t2)}')
    A('s_waitcnt lgkmcnt(0)')
    for qt in range(4):
        for k in range(4):
            b = OACC + 4 * (8 * qt + 2 * k)
            for i in range(0, 8, 2):
                A(pk('fma', b + i, [('b', nmu(qt)), CSR + 8 * k + i, b + i]))
            for i in range(0, 8, 2):
                A(pk('mul', b + i, [('b', aq(qt)), b + i]))
            for i in range(4):
                A(f'v_cvt_pk_bf16_f32 {v(b+i)}, {v(b+2*i)}, {v(b+2*i+1)}')
            for i in range(4):
                A(f'v_accvgpr_write_b32 {a(QF+4*(4*qt+k)+i)}, {v(b+i)}')
    C1 = CSR; BB = CSR + 16
    A(f's_waitcnt vmcnt({vm.wait_for(["b1"])})')
    for i in range(16):
        A(f'v_accvgpr_read_b32 {v(C1+i)}, {a(CS1+i)}')
        src = B1R + (i >> 1)
        A(f'v_and_b32 {v(BB+i)}, 0xffff0000, {v(src)}' if i & 1 else f'v_lshlrev_b32 {v(BB+i)}, 16, {v(src)}')
    A('s_mov_b32 s66, 0xc0135761')
    A('s_mov_b32 s67, 0xbdd2d3e8')
    A(f'v_mov_b32 {v(KC)}, s66')
    A(f's_lshl_b32 s29, {s(SQB)}, 4')
    A(f's_lshl_b32 s30, {s(SW)}, 2')
    A('s_add_u32 s29, s29, s30')
    A('s_lshl_b32 s29, s29, 10')
    A(f's_lshl_b32 s30, {s(SFLIP)}, 6')
    A(f's_lshl_b32 s31, {s(SHEAD)}, 17')
    A('s_add_u32 s31, s31, s29')
    A('s_add_u32 s68, s31, s30')
    A('s_xor_b32 s69, s68, 2048')
    A(f's_lshr_b32 s31, {s(SHEAD)}, 1')
    A('s_add_u32 s31, s31, 32')
    A('s_lshl_b32 s31, s31, 17')
    A('s_add_u32 s31, s31, s29')
    A('s_add_u32 s70, s31, s30')
    n = 0
    for pair, nq in ((0, 4), (1, 2)):
        for qt in range(nq):
            w = OACC + 16 * (n % 4); u = w + 8; n += 1
            for i in range(8):
                e, r = i >> 2, i & 3
                src = (HB + 4 * (4 * e + qt) + r) if pair == 0 else (HE + 4 * (2 * e + qt) + r)
                A(f'v_accvgpr_read_b32 {v(w+i)}, {a(src)}')
            ev = range(0, 8, 2)
            for i in ev:
                A(pk('fma', w + i, [('b', nmu(qt)), C1 + 8 * pair + i, w + i]))
            for i in ev:
                A(pk('fma', w + i, [('b', ah(qt)), w + i, BB + 8 * pair + i]))
            for i in ev:
                A(pk('mul', u + i, [w + i, w + i]))
            for i in ev:
                A(pk('fma', u + i, [u + i, ('bs', 67), ('b', KC)]))
            for i in ev:
                A(pk('mul', u + i, [u + i, w + i]))
            for i in range(8):
                A(f'v_exp_f32 {v(u+i)}, {v(u+i)}')
            for i in ev:
                A(pk('add', u + i, [u + i, '1.0']))
            for i in range(8):
                A(f'v_rcp_f32 {v(u+i)}, {v(u+i)}')
            for i in ev:
                A(pk('mul', w + i, [w + i, u + i]))
            for i in range(4):
                A(f'v_cvt_pk_bf16_f32 {v(u+i)}, {v(w+2*i)}, {v(w+2*i+1)}')
            so = 70 if pair else (68 if qt < 2 else 69)
            A(f'buffer_store_dwordx4 {v(u,4)}, {v(lo)}, {s(SRD_H,4)}, s{so} offen offset:{1024*(qt&1)}{stmod}')
            vm.add('hst')
```

```python
from asmlib import Asm, v, a, s, pk
from gen_attn16 import SW, SHEAD, SQB, SM0, SRD_WS, LANE, VOV
from gen_p1 import SRD_H, VM

MFMA = 'v_mfma_f32_16x16x32_bf16'
WS_X = 24 << 20
X_BYTES = 12 << 20
NS = 22
RING = 5
BBASE = RING * 16384
AH = 4

ACC, AF, BF = 0, 128, 192
VB, VA, RA, RB, XR, T = 127, 92, 64, 72, 104, 80
SRD_W, SRD_XC, SRD_B, SRD_DBG, SRD_XO, SRD_B2 = 40, 44, 8, 16, 4, 56
SKQ, SAO, SBO, SHAVE, SKS, SFO, SLIM, SALL = 26, 60, 61, 62, 63, 64, 25, 23
ZERO = T + 10


WS_F = 40 << 20
SRD_F = 72
SFA, SFB, SFC = 76, 77, 71
SPUB = 70
DYN = [0]
STODO, SSNAP, SAB, SBB = 77, 69, 65, 63
SNAP_LDS = BBASE + 4 * 16384


def flag_setup(A, ws_lo, ws_hi):
    A(f's_add_u32 s{SRD_F}, s{ws_lo}, {WS_F}\ns_addc_u32 s{SRD_F+1}, s{ws_hi}, 0')
    A(f's_movk_i32 s{SRD_F+2}, 16384\ns_mov_b32 s{SRD_F+3}, 0x20000')
    A(f's_lshl_b32 s30, {s(SQB)}, 11')
    A(f's_lshl_b32 s31, {s(SHEAD)}, 2')
    A('s_add_u32 s30, s30, s31')
    A(f's_lshl_b32 s31, {s(SW)}, 7')
    A('s_add_u32 s30, s30, s31')
    A(f's_add_u32 s{SFC}, s30, 1536')
    for d, lo, hi in ((SFA, 11, 22),):
        A(f's_cmp_ge_u32 {s(SHEAD)}, {lo}\ns_cselect_b32 s31, 512, 0\ns_add_u32 s{d}, s30, s31')
        A(f's_cmp_ge_u32 {s(SHEAD)}, {hi}\ns_cselect_b32 s31, 512, 0\ns_add_u32 s{d}, s{d}, s31')
    A(f's_lshl_b32 {s(SFO)}, {s(SQB)}, 2')
    A('s_and_b32 s31, s2, 3')
    A(f's_add_u32 {s(SFO)}, {s(SFO)}, s31')
    A(f's_lshl_b32 {s(SFO)}, {s(SFO)}, 2')
    A('s_bfe_u32 s31, s2, 0x10002')
    A('s_lshl_b32 s31, s31, 1')
    A(f's_add_u32 {s(SFO)}, {s(SFO)}, s31')
    A(f's_and_b32 s31, {s(SW)}, 1')
    A(f's_add_u32 {s(SFO)}, {s(SFO)}, s31')
    A(f's_lshl_b32 {s(SFO)}, {s(SFO)}, 7')


def flag_store(val, d, z):
    out = ['s_mov_b64 exec, 1', f'v_mov_b32 v{d}, {val}'] + \
          [f'buffer_store_dword v{d}, v{z}, {s(SRD_F,4)}, s{o} offen sc1' for o in (SFA, SFC)] + ['s_mov_b64 exec, -1']
    return '\n'.join(out)


def publish(label):
    return '\n'.join([f's_cmp_lg_u32 s{SPUB}, 0', f's_cbranch_scc1 {label}', flag_store(1, T + 7, ZERO), f's_mov_b32 s{SPUB}, 1', f'{label}:'])


def signal_ready(label):
    out = [f's_cmp_lg_u32 {s(SW)}, 0', f's_cbranch_scc1 {label}', f's_lshl_b32 s31, {s(SQB)}, 5', f's_add_u32 s31, s31, {s(SHEAD)}',
           's_mov_b64 exec, 1', 'v_mov_b32 v124, 3', f'buffer_store_byte v124, v125, {s(SRD_DBG,4)}, s31 offen sc1',
           's_mov_b64 exec, -1', f'{label}:']
    return '\n'.join(out)


def ready_load():
    return f's_lshl_b32 s31, {s(SQB)}, 5\nbuffer_load_dword v124, v125, {s(SRD_DBG,4)}, s31 offen sc1'


def first_look(lane4):
    return f's_andn2_b32 s31, {s(SFO)}, 0x80\nbuffer_load_dword v103, {v(lane4)}, {s(SRD_F,4)}, s31 offen sc1'


def snap_write(A):
    A('s_waitcnt vmcnt(8)')
    A('v_cmp_eq_u32 vcc, 1, v103')
    A(f's_and_b32 s30, {s(SW)}, 1')
    A(f's_cselect_b32 {s(SHAVE)}, vcc_hi, vcc_lo')
    if DYN[0]:
        A('s_and_b32 s30, vcc_lo, vcc_hi')
        A(f'v_mov_b32 {v(T+7)}, {SNAP_LDS}')
        A(f'v_mov_b32 {v(T+8)}, s30')
        A(f's_cmp_lg_u32 {s(SW)}, 0')
        A('s_cbranch_scc1 L_snap')
        A(f'ds_write_b32 {v(T+7)}, {v(T+8)}')
        A('s_waitcnt lgkmcnt(0)')
        A.label('L_snap')


COLD = []


def poll(tag, need, pub=False):
    COLD.append('\n'.join([f'L_p{tag}:'] + (['s_waitcnt vmcnt(0)', publish(f'L_s{tag}')] if pub else []) + [f'buffer_load_dword {v(T+8)}, {v(T+9)}, {s(SRD_F,4)}, {s(SFO)} offen sc1', 's_waitcnt vmcnt(0)',
                           f'v_cmp_eq_u32 vcc, 1, {v(T+8)}', f's_sub_u32 {s(SLIM)}, {s(SLIM)}, 1', f's_mov_b32 {s(SHAVE)}, vcc_lo',
                           f's_cbranch_scc1 L_r{tag}', f's_andn2_b32 s31, {need}, {s(SHAVE)}', f's_cbranch_scc1 L_p{tag}', f's_branch L_q{tag}',
                           f'L_r{tag}:', f's_mov_b32 {s(SLIM)}, 0', f's_branch L_q{tag}']))
    return '\n'.join([f's_andn2_b32 s31, {need}, {s(SHAVE)}', f's_cbranch_scc1 L_p{tag}', f'L_q{tag}:'])


def tail_loads(A):
    if DYN[0]:
        A(f'ds_read_b32 {v(T+8)}, {v(T+7)}')
    A('s_load_dwordx2 s[32:33], s[0:1], 0')
    A('s_load_dwordx4 s[36:39], s[0:1], 72')


SXOFF, SCOFF, SAB2 = 66, 67, 58


def presetup():
    B = Asm()
    B(f's_and_b32 {s(SKQ)}, s2, 3')
    B(f's_cmp_eq_u32 {s(SKQ)}, 3\ns_cselect_b32 s29, 0, {s(SKQ)}\ns_cselect_b32 {s(SALL)}, 0, -1')
    B('s_mul_i32 s29, s29, 11')
    B(f's_lshl_b32 {s(STODO)}, 0x7ff, s29')
    B(f's_lshl_b32 s{SAB2}, {s(SW)}, 14')
    B('s_bfe_u32 s28, s2, 0x20003')
    B(f's_lshl_b32 {s(SCOFF)}, s28, 8')
    B(f's_add_u32 s{SAB2}, s{SAB2}, {s(SCOFF)}')
    B(f's_lshr_b32 s30, {s(SW)}, 1')
    B('s_lshl_b32 s31, s30, 7')
    B(f's_add_u32 {s(SCOFF)}, {s(SCOFF)}, s31')
    B(f's_lshl_b32 {s(SKS)}, s30, 17')
    B(f's_lshl_b32 s29, {s(SQB)}, 4')
    B('s_bfe_u32 s30, s2, 0x10002')
    B('s_lshl_b32 s30, s30, 3')
    B('s_add_u32 s29, s29, s30')
    B(f's_and_b32 s68, {s(SW)}, 1')
    B('s_lshl_b32 s68, s68, 2')
    B('s_add_u32 s29, s29, s68')
    B('s_lshl_b32 s30, s29, 10')
    B(f's_add_u32 {s(SKS)}, {s(SKS)}, s30')
    B(f's_add_u32 s29, s29, {s(SKQ)}')
    B(f's_lshl_b32 {s(SXOFF)}, s29, 14')
    B(f's_add_u32 {s(SXOFF)}, {s(SXOFF)}, {s(SCOFF)}')
    B(f's_mov_b32 s{SPUB}, 0')
    B(f's_mov_b32 {s(SLIM)}, 0x40000')
    B(f'v_lshrrev_b32 {v(T+2)}, 4, {v(LANE)}')
    B(f'v_mul_u32_u24 {v(T+2)}, 0x300, {v(T+2)}')
    for i in range(2):
        B(f'v_add_u32 {v(VA+i)}, {v(VOV+i)}, {v(T+2)}')
    B(f'v_add_u32 {v(VA+1)}, 3072, {v(VA+1)}')
    for i in range(2):
        B(f'v_add_u32 {v(VA+2+i)}, 6144, {v(VA+i)}')
    items = []
    for l in B.lines:
        if l.startswith('s_cselect'):
            items[-1] += '\n' + l
        else:
            items.append(l)
    return [(5 + 2 * i, x) for i, x in enumerate(items)]


def tail(A, o):
    st_ = o.get('stamp')
    ld = o.get('ldmod', ' sc1')
    vm = VM()
    vm.add('O')
    L = LANE
    A('v_and_b32 v124, 0x02020202, v124')
    if DYN[0]:
        A('s_waitcnt lgkmcnt(0)')
        A(f'v_readfirstlane_b32 {s(SSNAP)}, {v(T+8)}')
    A(f'v_lshlrev_b32 {v(T+9)}, 2, {v(L)}')
    A(f'v_mov_b32 {v(ZERO)}, 0')
    A(f's_mov_b32 s27, s{SAB2}')
    A(f's_cmp_eq_u32 {s(SKQ)}, 3')
    for i in range(3):
        A(f's_cselect_b32 {s(SRD_B+i)}, {s(SRD_H+i)}, {s(SRD_WS+i)}')

    def a_list(st):
        slot = st % RING
        if st & 1:
            pre = [f's_add_u32 {s(SAO)}, {s(SAO)}, 0x10000\ns_add_u32 m0, {s(SM0)}, {slot*16384}']
        else:
            pre = [f's_and_b32 s30, {s(STODO)}, {s(SSNAP)}\ns_cselect_b32 s30, s30, {s(STODO)}\ns_ff1_i32_b32 s29, s30' if DYN[0] else f's_ff1_i32_b32 s29, {s(STODO)}',
                   f's_bitset0_b32 {s(STODO)}, s29\ns_lshl_b32 s30, s29, 17\ns_add_u32 {s(SAO)}, s30, s27',
                   f's_lshl_b32 s30, s29, 19\ns_add_u32 {s(SBO)}, s30, {s(SKS)}\ns_add_u32 m0, {s(SM0)}, {slot*16384}']
        return [(pre if i == 0 else None, f'buffer_load_dwordx4 {v(VA+i)}, {s(SRD_W,4)}, {s(SAO)} offen offset:{1024*i} lds') for i in range(4)]

    def b_list(st):
        slot = st % RING
        if st & 1:
            pre = [f's_add_u32 {s(SBO)}, {s(SBO)}, 0x40000\ns_add_u32 m0, {s(SM0)}, {BBASE + slot*16384}']
        else:
            pre = [f's_lshl_b32 s28, 1, s29\ns_and_b32 s28, s28, {s(SALL)}', poll(f'b{st}', 's28', st < AH), f's_add_u32 m0, {s(SM0)}, {BBASE + slot*16384}']
        return [(pre if i == 0 else None, f'buffer_load_dwordx4 {v(VB)}, {s(SRD_B,4)}, {s(SBO)} offen offset:{1024*i}{ld} lds') for i in range(4)]

    def run(lst, tag):
        for pre, x in lst:
            if pre:
                A(('\n'.join(pre) if isinstance(pre, list) else pre) + '\ns_nop 0')
            A(x); vm.add(tag)

    def read_list(st):
        slot = st % RING; se = st & 1; win = slot // 4; off0 = (slot % 4) * 16384
        out = []
        nk = 2
        for kk in range(nk):
            for qt in range(4):
                out.append(f'ds_read_b128 {v(BF+32*se+4*(4*kk+qt),4)}, {v(RB+4*win+qt)} offset:{off0 + kk*8192}')
        for nt in range(4):
            for kk in range(nk):
                for jh in range(2):
                    off = off0 + (32 * kk + 16 * jh) * 256
                    out.append(f'ds_read_b64_tr_b16 {v(AF+32*se+4*(4*kk+nt)+2*jh,2)}, {v(RA+4*win+nt)} offset:{off}')
        return out

    A('v_cmp_ne_u32 vcc, 0x02020202, v124')
    A('s_nop 0')
    A('s_cbranch_vccnz L_rdy')
    A.label('L_rdy_ok')
    COLD.append('\n'.join(['L_rdy:', f's_mov_b32 {s(SHAVE)}, 0', 's_waitcnt vmcnt(0)', publish('L_rdy_s'), ready_load(), 's_waitcnt vmcnt(0)',
                           'v_and_b32 v124, 0x02020202, v124', 'v_cmp_ne_u32 vcc, 0x02020202, v124', f's_sub_u32 {s(SLIM)}, {s(SLIM)}, 1', 's_cbranch_scc1 L_rdy_t',
                           's_cbranch_vccnz L_rdy', 's_branch L_rdy_ok',
                           'L_rdy_t:', f's_mov_b32 {s(SLIM)}, 0', 's_branch L_rdy_ok']))
    if st_:
        A('s_memrealtime s[52:53]')
    for st in range(AH):
        run(a_list(st), ('A', st))
        run(b_list(st), ('B', st))
    A(f'v_lshrrev_b32 {v(T+2)}, 2, {v(L)}')
    A(f'v_and_b32 {v(T+3)}, 7, {v(T+2)}')
    A(f'v_and_b32 {v(T+4)}, 3, {v(L)}')
    A(f'v_lshlrev_b32 {v(T+4)}, 3, {v(T+4)}')
    A(f'v_lshl_add_u32 {v(T+4)}, {v(T+2)}, 8, {v(T+4)}')
    A(f's_and_b32 s30, {s(SW)}, 2')
    A('s_lshl_b32 s30, s30, 1')
    for k in range(4):
        A(f's_add_u32 s31, s30, {k}')
        A(f'v_xor_b32 {v(T+5)}, s31, {v(T+3)}')
        A(f'v_lshl_add_u32 {v(RA+k)}, {v(T+5)}, 5, {v(T+4)}')
        A(f'v_add_u32 {v(RA+4+k)}, 0x10000, {v(RA+k)}')
    for qt in range(4):
        A(f's_xor_b32 s31, {s(SKQ)}, {qt}')
        A('s_add_u32 s31, s31, s68')
        A('s_lshl_b32 s31, s31, 10')
        A(f's_add_u32 s31, s31, {BBASE}')
        A(f'v_add_u32 {v(RB+qt)}, s31, {v(VB)}')
        A(f'v_add_u32 {v(RB+4+qt)}, 0x10000, {v(RB+qt)}')
    A(f'v_and_b32 {v(T+2)}, 15, {v(L)}')
    A(f'v_lshrrev_b32 {v(T+3)}, 4, {v(L)}')
    A(f'v_lshlrev_b32 {v(T+3)}, 3, {v(T+3)}')
    A(f'v_lshl_add_u32 {v(T+5)}, {v(T+2)}, 10, {v(T+3)}')
    A('s_waitcnt lgkmcnt(0)')
    A(f's_mov_b32 {s(SRD_XO)}, s32\ns_mov_b32 {s(SRD_XO+1)}, s33\ns_mov_b32 {s(SRD_XO+2)}, 0x200000')
    A(f's_mov_b32 {s(SRD_B2)}, s36\ns_mov_b32 {s(SRD_B2+1)}, s37\ns_mov_b32 {s(SRD_B2+2)}, 1024\ns_mov_b32 {s(SRD_B2+3)}, 0x20000')
    for nt in range(4):
        A(f'buffer_load_dwordx2 {v(XR+2*nt,2)}, {v(T+5)}, {s(SRD_XO,4)}, s66 offen offset:{32*nt}'); vm.add('x')
        A(f'buffer_load_dwordx2 {v(XR+8+2*nt,2)}, {v(T+3)}, {s(SRD_B2,4)}, s67 offen offset:{32*nt}'); vm.add('x')
    A(f's_waitcnt vmcnt({vm.wait_for([("A", 0), ("B", 0)])})')
    A(publish('L_pub'))
    A('s_barrier')
    if st_:
        A('s_memrealtime s[54:55]')
    lds = []

    def rtag(st, i):
        nk = 2
        return (st, 0) if i < 4 * nk + 2 * nk else (st, (i - 4 * nk) // (2 * nk))
    for i, x in enumerate(read_list(0)):
        A(x); lds.append(rtag(0, i))
    for st in range(NS):
        nk = 2
        mf = []
        for nt in range(4):
            for qt in range(4):
                for kk in range(nk):
                    c = ACC + 4 * (4 * nt + qt)
                    mf.append(f'{MFMA} {v(c,4)}, {v(AF+32*(st&1)+4*(4*kk+nt),4)}, {v(BF+32*(st&1)+4*(4*kk+qt),4)}, {0 if st == 0 and kk == 0 else v(c,4)}')
        fill = [[] for _ in mf]
        if st + 1 < NS:
            fill[0].append((f's_waitcnt vmcnt({vm.wait_for([("A", st + 1), ("B", st + 1)])})', None))
            fill[0].append(('s_barrier', None))
            dpos = [4, 8, 12, 16, 20, 24, 28, 31]
            rpos = [g for g in range(1, 32) if g not in dpos]
            rl = read_list(st + 1)
            rpos = rpos[:len(rl) - 1] + [rpos[-1]] if len(rl) > len(rpos) else rpos
            for i, x in enumerate(rl):
                fill[rpos[min(i, len(rpos) - 1)]].append((x, ('L',) + rtag(st + 1, i)))
            if st + AH < NS:
                for i, (pre, x) in enumerate(a_list(st + AH) + b_list(st + AH)):
                    if isinstance(pre, list):
                        for k, y in enumerate(pre):
                            fill[dpos[i] - len(pre) + k].append((y, None))
                    elif pre:
                        fill[dpos[i] - 1].append((pre, None))
                    fill[dpos[i]].insert(0, (x, ('AB'[i >> 2], st + AH)))
            if st == NS - 4:
                fill[18].append((f's_andn2_b32 {s(SFO)}, s{SFC}, 0x7f', None))
                fill[20].append((f'buffer_load_dword {v(T+8)}, {v(T+9)}, {s(SRD_F,4)}, {s(SFO)} offen sc1', 'flag'))
        if st == NS - 2:
            A(f's_cmp_eq_u32 {s(SKQ)}, 2')
            A('s_cbranch_scc1 L_t_done')
        for g, (m, fl) in enumerate(zip(mf, fill)):
            if g % (4 * nk) == 0:
                idx = max(i for i, tg in enumerate(lds) if tg == (st, g // (4 * nk)))
                A(f's_waitcnt lgkmcnt({min(len(lds) - 1 - idx, 15)})')
            A(m)
            for x, tag in fl:
                A(x)
                if tag and tag[0] == 'L':
                    lds.append(tag[1:])
                elif tag:
                    vm.add(tag)
    A.label('L_t_done')
    A('s_waitcnt vmcnt(0)')
    if st_:
        A('s_memrealtime s[58:59]')
    A(f'v_cmp_eq_u32 vcc, 1, {v(T+8)}')
    A(f's_and_b32 s29, {s(SHEAD)}, 0x13')
    A('s_lshl_b32 s30, 0x1111, s29')
    A(f's_mov_b32 {s(SHAVE)}, vcc_lo')
    A(poll('x', 's30'))
    for j in (1, 2, 3):
        A(f's_xor_b32 s31, s2, {j}')
        A('s_mul_i32 s31, s31, 49152')
        A(f's_add_u32 s31, s31, {s(SM0)}')
        A(f's_add_u32 s31, s31, {(j-1)*16384}')
        for nt in range(4):
            for r in range(4):
                A(f'v_min_u32 {v(ACC+4*(4*nt+j)+r)}, -2, {v(ACC+4*(4*nt+j)+r)}')
            A(f'buffer_store_dwordx4 {v(ACC+4*(4*nt+j),4)}, {v(VB)}, {s(SRD_XC,4)}, s31 offen offset:{1024*nt} sc1')
    A('s_mul_i32 s49, s2, 49152')
    A(f's_add_u32 s49, s49, {s(SM0)}')
    A('s_add_u32 s50, s49, 16384')
    A('s_add_u32 s51, s49, 32768')
    A(f's_mov_b32 {s(SRD_XO)}, s38\ns_mov_b32 {s(SRD_XO+1)}, s39')
    A('s_mov_b32 s67, 0xbfb8aa3b')
    for j in (1, 2, 3):
        A(f's_cmp_eq_u32 {s(SKQ)}, {3 ^ j}')
        A(f's_cselect_b64 s[{30+2*j}:{31+2*j}], -1, 0')
    R = AF
    XU, BU = BF + 32, BF + 48
    for j in range(16):
        A(f'v_and_b32 {v(XU+j)}, 0xffff0000, {v(XR+(j>>1))}' if j & 1 else f'v_lshlrev_b32 {v(XU+j)}, 16, {v(XR+(j>>1))}')
        A(f'v_and_b32 {v(BU+j)}, 0xffff0000, {v(XR+8+(j>>1))}' if j & 1 else f'v_lshlrev_b32 {v(BU+j)}, 16, {v(XR+8+(j>>1))}')
    A.label('L_x_poll')
    for j in (1, 2, 3):
        for nt in range(4):
            A(f'buffer_load_dwordx4 {v(R+16*(j-1)+4*nt,4)}, {v(VB)}, {s(SRD_XC,4)}, s{48+j} offen offset:{1024*nt} sc1')
    for j in range(3):
        A(f's_waitcnt vmcnt({8-4*j})')
        b = R + 16 * j
        A(f'v_max3_u32 {v(T+6)}, {v(b)}, {v(b+1)}, {v(b+2) if j == 0 else v(T+6)}')
        rest = list(range(3 if j == 0 else 2, 16))
        while rest:
            x = rest.pop(0)
            y = rest.pop(0) if rest else x
            A(f'v_max3_u32 {v(T+6)}, {v(b+x)}, {v(b+y)}, {v(T+6)}')
    A(f'v_cmp_eq_u32 vcc, -1, {v(T+6)}')
    A(f's_sub_u32 {s(SLIM)}, {s(SLIM)}, 16')
    A('s_cbranch_scc1 L_x_go')
    A('s_cbranch_vccnz L_x_poll')
    A.label('L_x_go')
    if st_:
        A('s_memrealtime s[78:79]')
    G = BF
    own = lambda i: ACC + 16 * (i >> 2) + (i & 3)
    for i in range(16):
        A(f'v_cndmask_b32 {v(G+i)}, {v(own(i))}, {v(R+i)}, s[32:33]')
    for i in range(16):
        A(f'v_cndmask_b32 {v(G+i)}, {v(G+i)}, {v(R+16+i)}, s[34:35]')
    for i in range(16):
        A(f'v_cndmask_b32 {v(G+i)}, {v(G+i)}, {v(R+32+i)}, s[36:37]')
    for i in range(0, 16, 2):
        A(pk('add', R + i, [R + i, own(i)]))
        A(pk('add', R + 16 + i, [R + 16 + i, R + 32 + i]))
    for i in range(0, 16, 2):
        A(pk('add', R + i, [R + i, R + 16 + i]))
        A(pk('add', BU + i, [BU + i, G + i]))
    for i in range(0, 16, 2):
        A(pk('add', R + i, [R + i, G + i]) + ' neg_lo:[0,1] neg_hi:[0,1]')
        A(pk('mul', G + 16 + i, [BU + i, ('bs', 67)]))
    for i in range(16):
        A(f'v_exp_f32 {v(G+16+i)}, {v(G+16+i)}')
    for i in range(0, 16, 2):
        A(pk('add', G + 16 + i, [G + 16 + i, '1.0']))
        A(pk('mul', R + i, [R + i, BU + i]))
    for i in range(16):
        A(f'v_rcp_f32 {v(G+16+i)}, {v(G+16+i)}')
    for nt in range(4):
        for i in (4 * nt, 4 * nt + 2):
            A(pk('fma', R + i, [R + i, G + 16 + i, XU + i]))
        for k in range(2):
            A(f'v_cvt_pk_bf16_f32 {v(G+2*nt+k)}, {v(R+4*nt+2*k)}, {v(R+4*nt+2*k+1)}')
        A(f'buffer_store_dwordx2 {v(G+2*nt,2)}, {v(T+5)}, {s(SRD_XO,4)}, s66 offen offset:{32*nt}' + o.get('outmod', ''))
```

```python
import sys
from asmlib import Asm, v, a, s, check, fix, stamp_begin, stamp_end
from gen_attn16 import *
from gen_p1 import *
import gen_k3b as gen_k3
import gen_tail
NAME = 'recurrent_scan__mha_block_cached__mixer_channel_mlp__prompt_kernel'

VLIST = sorted([39 + 4 * i for i in range(20)] + [41 + 8 * i for i in range(7)] + [45 + 8 * i for i in range(5)])
KLIST = [77, 85, 93, 101, 105, 109, 113, 117, 119, 123, 127, 131, 135, 139, 143, 147]
PLAN = dict(vpos=lambda n: VLIST[n], kpos=lambda n: KLIST[n], km=4, kd=lambda i: [5, 9, 23, 27][i], vm=28, vd=lambda i: [31, 35, 37, 33][i])
PLANM = dict(sum='mfma', vpos=lambda n: 37 + 2 * n, kpos=lambda n: 101 + 2 * n, km=5, kd=lambda i: 7 + 4 * i, vm=22, vd=lambda i: 23 + 4 * i)
def planx(mx, dstart=6, dgap=4, dend=40):
    H = 32 + 32 + mx
    NG = 2 * H
    load = [0] * NG
    for g0 in (12, H + 12):
        for n, (kt, ql) in enumerate([(kt, ql) for kt in range(4) for ql in range(2)]):
            for r in range(4):
                ge = g0 + 8 * n + 2 * r
                load[ge % NG] += 2
                if not (mx == 4 or ql == 0):
                    load[(ge + 1) % NG] += 1
                if r & 1:
                    load[(ge + 3) % NG] += 1
    mem = [0] * NG

    def place(wins, gap=1):
        out = []; last = -99
        for i, (lo, hi) in enumerate(wins):
            lo = max(lo, last + gap)
            hi = max(lo, min([hi] + [h - gap * (k + 1) for k, (_, h) in enumerate(wins[i + 1:])]))
            free = [g for g in range(lo, hi + 1) if load[g % NG] + mem[g % NG] < 2 and not mem[g % NG]]
            g = free[0] if free else min(range(lo, hi + 1), key=lambda g: (mem[g % NG], load[g % NG], g))
            mem[g % NG] += 1; out.append(g); last = g
        return out
    d = place([(dstart, dend)] * 8, dgap)
    vp = place([(36 + 4 * (n >> 2), H + 32 + 4 * (n >> 2) - 8) for n in range(32)])
    kp = place([(H + 8 + 8 * (n >> 2), NG + 8 * (n >> 2) - 8) for n in range(16)])
    over = sum(max(0, load[g] + mem[g] - 2) for g in range(NG))
    return dict(sum='mfma', mx=mx, vpos=lambda n: vp[n], kpos=lambda n: kp[n], km=d[0] - 1, kd=lambda i: d[i], vm=d[4] - 1, vd=lambda i: d[4 + i], dbg=(d, vp, kp, over))


HEADER = open('recurrent_scan__mha_block_cached__mixer_channel_mlp__prompt.s.ref').read().split('; Override')[0]


def srd(A, d, lo, hi, off, nbytes):
    if off is None:
        A(f's_mov_b32 s{d}, s{lo}\ns_mov_b32 s{d+1}, s{hi}')
    else:
        A(f's_add_u32 s{d}, s{lo}, {off}\ns_addc_u32 s{d+1}, s{hi}, 0')
    A(f's_mov_b32 s{d+2}, {nbytes}\ns_mov_b32 s{d+3}, 0x20000')


def k2(A, o):
    cold = []
    gen_tail.DYN[0] = o.get('dyn', 0)
    fused = o.get('fused')
    name = NAME if fused else 'attn_kernel'
    nxt = 'L_attn_finish' if fused else 'out_kernel'
    st = o.get('stamp')
    A(f'.globl {name}\n.p2align 8\n.type {name},@function')
    A.label(name)
    A('s_cmp_ge_u32 s2, 256')
    A('s_cbranch_scc1 L_k2_end')
    if st:
        stamp_begin(A, 92)
    A('s_load_dwordx8 s[32:39], s[0:1], 0')
    A('s_load_dwordx4 s[68:71], s[0:1], 48')
    A('s_load_dwordx2 s[72:73], s[0:1], 96')
    coop = o.get('coop')
    if coop:
        A('s_load_dwordx2 s[66:67], s[0:1], 88')
    A(f'v_lshrrev_b32 {v(T0)}, 6, v0')
    A('s_and_b32 s26, s2, 7')
    A('s_lshl_b32 s26, s26, 2')
    A('s_bfe_u32 s27, s2, 0x20003')
    A(f'v_readfirstlane_b32 {s(SW)}, {v(T0)}')
    A(f's_add_u32 {s(SHEAD)}, s26, s27')
    A(f's_lshr_b32 {s(SQB)}, s2, 5')
    A(f's_and_b32 {s(SFLIP)}, {s(SHEAD)}, 1')
    A(f's_lshl_b32 {s(SFLIP)}, {s(SFLIP)}, 5')
    A(f's_lshl_b32 {s(SM0)}, {s(SW)}, 12')
    A(f's_lshl_b32 {s(SM1)}, {s(SW)}, 11')
    A(f's_lshl_b32 {s(SXM)}, {s(SW)}, 13')
    A(f's_lshl_b32 {s(SXO)}, {s(SQB)}, 18')
    A(f's_lshl_b32 s26, {s(SW)}, 16')
    A(f's_add_u32 {s(SXO)}, {s(SXO)}, s26')
    A(f's_lshl_b32 s26, {s(SFLIP)}, 10')
    A(f's_add_u32 {s(SXO)}, {s(SXO)}, s26')
    rot = o.get('rot', 0)
    if rot == 0:
        A(f's_mov_b32 {s(SROT)}, 0')
    elif rot == 1:
        A(f's_lshl_b32 {s(SROT)}, s27, 1')
    elif rot == 2:
        A(f's_lshl_b32 {s(SROT)}, s27, 1')
        A(f's_and_b32 s26, {s(SQB)}, 1')
        A(f's_add_u32 {s(SROT)}, {s(SROT)}, s26')
    elif rot == 4:
        A(f's_xor_b32 {s(SROT)}, s27, {s(SQB)}')
        A(f's_and_b32 {s(SROT)}, {s(SROT)}, 1')
        A(f's_lshl_b32 {s(SROT)}, {s(SROT)}, 2')
    elif rot == 5:
        A(f's_xor_b32 {s(SROT)}, s27, {s(SQB)}')
        A(f's_and_b32 {s(SROT)}, {s(SROT)}, 3')
        A(f's_lshl_b32 {s(SROT)}, {s(SROT)}, 1')
    elif rot == 3:
        A(f's_lshl_b32 {s(SROT)}, s27, 1')
        A(f's_and_b32 s26, {s(SQB)}, 4')
        A(f's_add_u32 {s(SROT)}, {s(SROT)}, s26')
    A(f's_lshl_b32 {s(SWQO)}, {s(SW)}, 17')
    A(f's_lshl_b32 s26, {s(SHEAD)}, 8')
    A(f's_add_u32 {s(SWQO)}, {s(SWQO)}, s26')
    A(f's_mul_i32 {s(SW1O)}, {s(SW)}, {16*2752}')
    A(f's_mov_b32 {s(SOFF)}, {s(SM0)}')
    A(f'v_and_b32 {v(LANE)}, 63, v0')
    if not o.get('nocpf'):
        A('s_getpc_b64 s[56:57]')
        A.label('L_code0')
        A('s_mov_b32 s58, L_code_end-L_code0')
        A('s_mov_b32 s59, 0x20000')
        A('s_lshr_b32 s26, s2, 3')
        A('s_lshl_b32 s26, s26, 2')
        A(f's_add_u32 s26, s26, {s(SW)}')
        A('s_lshl_b32 s26, s26, 9')
        A(f'v_lshlrev_b32 {v(PT+8)}, 3, {v(LANE)}')
        A(f'buffer_load_dwordx2 {v(PT+10,2)}, {v(PT+8)}, s[56:59], s26 offen')
    p1_lane_setup(A, o.get('exp'))
    A('s_waitcnt lgkmcnt(0)')
    srd(A, SRD_X, 32, 33, None, 0 if o.get('kill') == 'x' else 2 << 20)
    srd(A, SRD_WQ, 38, 39, None, 0 if o.get('kill') in ('wq', 'w') else 4 << 20)
    srd(A, SRD_W1, 68, 69, None, 0 if o.get('kill') in ('w1', 'w') else 512 * 2752)
    vm = VM()
    vm.add('code')

    def run(lst, tag):
        for pre, ins in lst:
            A(pre + ('s_nop 0\n' if pre else '') + ins); vm.add(tag)
    if coop:
        stat_loads(A, vm)
    run(x_dma(0), ('x', 0)); run(w_dma(0), ('W', 0))
    mode = o.get('pmode', 0)
    if o.get('tlb'):
        A(f'v_lshlrev_b32 {v(PT+9)}, {o["tlb"]}, {v(LANE)}')
        A(f's_lshl_b32 s26, {s(SHEAD)}, 8')
        A(f's_lshl_b32 s27, {s(SW)}, {o["tlb"] + 6}')
        A('s_add_u32 s26, s26, s27')
        A(f'buffer_load_dword {v(PT+12)}, {v(PT+9)}, {s(SRD_WQ,4)}, s26 offen'); vm.add('pf')
        A(f'buffer_load_dword {v(PT+12)}, {v(PT+9)}, {s(SRD_W1,4)}, s27 offen'); vm.add('pf')
    if mode & 1:
        run(x_dma(1), ('x', 1)); run(w_dma(1), ('W', 1))
    if mode & 2:
        P0, P1, P2, PD = PT + 8, PT + 9, PT + 10, PT + 11
        A(f'v_lshlrev_b32 {v(P0)}, 6, {v(LANE)}')
        A(f'v_lshrrev_b32 {v(P1)}, 2, {v(LANE)}')
        A(f'v_and_b32 {v(P2)}, 3, {v(LANE)}')
        A(f'v_lshlrev_b32 {v(P2)}, 6, {v(P2)}')
        A(f'v_lshl_add_u32 {v(P1)}, {v(P1)}, 13, {v(P2)}')
        A('s_bfe_u32 s26, s2, 0x20003')
        A('s_lshl_b32 s26, s26, 16')
        A(f's_lshl_b32 s27, {s(SQB)}, 18')
        A('s_add_u32 s26, s26, s27')
        A(f's_lshl_b32 s27, {s(SW)}, 14')
        A('s_add_u32 s26, s26, s27')
        for i in range(4):
            A(f'buffer_load_dword {v(PD)}, {v(P0)}, {s(SRD_X,4)}, s26 offen'); vm.add('pf')
            A('s_add_u32 s26, s26, 4096')
        A(f's_lshl_b32 s27, {s(SQB)}, 19')
        A(f's_add_u32 s27, s27, {s(SWQO)}')
        A(f'buffer_load_dword {v(PD)}, {v(P1)}, {s(SRD_WQ,4)}, s27 offen'); vm.add('pf')
        A(f's_mul_i32 s27, {s(SQB)}, {64*2752}')
        A(f's_add_u32 s27, s27, {s(SW1O)}')
        A(f'buffer_load_dword {v(PD)}, {v(VW1)}, {s(SRD_W1,4)}, s27 offen'); vm.add('pf')
        A(f'buffer_load_dword {v(PD)}, {v(VW1+1)}, {s(SRD_W1,4)}, s27 offen offset:1024'); vm.add('pf')
    p1_read_setup(A)
    B = Asm()
    lane_setup(B, rot=True)
    B(f's_lshl_b32 s26, {s(SHEAD)}, 19')
    B('s_add_u32 s27, s26, 16384')
    srd(B, SRD_K, 34, 35, 's27', 524288 - 16384)
    srd(B, SRD_K0, 34, 35, 's26', 16384)
    srd(B, SRD_V, 36, 37, 's26', 524288)
    srd(B, SRD_WS, 72, 73, None, 16 << 20)
    srd(B, SRD_H, 72, 73, WS_H, 43 * 128 * 1024)
    srd(B, SRD_B1, 70, 71, None, 2752)
    B(f'v_lshrrev_b32 {v(PT)}, 4, {v(LANE)}')
    B(f'v_lshlrev_b32 {v(PT)}, 3, {v(PT)}')
    B(f's_lshl_b32 s26, {s(SHEAD)}, 6')
    B(f's_lshr_b32 s27, {s(SHEAD)}, 1')
    B('s_add_u32 s27, s27, 32')
    B('s_lshl_b32 s27, s27, 6')
    side = []
    for l in B.lines:
        if l.startswith('s_addc'):
            side[-1] = (side[-1][0] + '\n' + l, None)
        else:
            side.append((l, None))
    for u in range(4):
        side.append((f'buffer_load_dwordx2 {v(B1R+2*u,2)}, {v(PT)}, {s(SRD_B1,4)}, s{26+(u>>1)} offen offset:{32*(u&1)}', 'b1'))
    side2 = []
    if coop:
        sw = stat_work(72, 73, 66)
        side = sw + side
        phase1c(A, vm, cold, diag=bool(st), side=side, pubc=coop)
    else:
        phase1(A, vm, diag=bool(st), side=side, early=mode & 1, side2=side2)
    assert not side2
    assert not side
    if st:
        A('v_writelane_b32 v63, s68, 7') if not coop else None
        A('v_writelane_b32 v63, s92, 8')
        A('s_lshl_b32 s26, s2, 2\ns_add_u32 s26, s26, s20\ns_lshl_b32 s26, s26, 8\ns_add_u32 s26, s26, 0x3100000\ns_mov_b32 s14, 0x4000000')
        A(f'v_lshlrev_b32 v62, 2, {v(LANE)}')
        A('buffer_store_dword v63, v62, s[12:15], s26 offen'); vm.add('diag')
        A('s_memrealtime s[80:81]')
    p1_epilogue(A, vm, o.get('stmod', ''), coop)
    if st:
        A('s_memrealtime s[82:83]')
    A('s_and_b32 s27, s2, 3')
    A('s_cmp_eq_u32 s27, 3')
    A('s_cselect_b32 s26, 64, 32')
    A('s_load_dwordx2 s[40:41], s[0:1], s26')
    A(f's_cselect_b32 s42, {1376*1024}, s42')
    A('s_cselect_b32 s27, 0, s27')
    A(f's_mul_i32 s61, s27, {(1408 if fused else 1376)*1024}')
    A('s_lshr_b32 s26, s2, 3')
    A('s_lshl_b32 s26, s26, 2')
    A(f's_add_u32 s26, s26, {s(SW)}')
    A('s_mul_i32 s26, s26, 11264')
    A('s_add_u32 s61, s61, s26')
    A(f's_add_u32 s44, {s(SRD_WS)}, {gen_k3.WS_X}')
    A(f's_addc_u32 s45, {s(SRD_WS+1)}, 0')
    A(f's_mov_b32 s46, {gen_k3.X_BYTES}')
    A('s_mul_i32 s62, s2, 49152')
    A(f's_add_u32 s62, s62, {s(SM0)}')
    A(f'v_lshlrev_b32 {v(LS2+7)}, 4, {v(LANE)}')
    for i in range(4):
        A(f'v_mov_b32 {v(T0+12+i)}, -1')
    pf = []
    poison = []
    for i in range(12):
        pf.append(f'buffer_store_dwordx4 {v(T0+12,4)}, {v(LS2+7)}, s[44:47], s62 offen offset:{1024*(i&3)} sc1' + ('\ns_add_u32 s62, s62, 16384' if i & 3 == 3 else ''))
    if o.get('touch'):
        sh = o['touch']
        A(f'v_lshlrev_b32 {v(T0+11)}, {sh}, {v(LANE)}')
        for i in range((11264 + (64 << sh) - 1) // (64 << sh)):
            pf.append(f'buffer_load_dword {v(T0+16)}, {v(T0+11)}, s[40:43], s61 offen\ns_add_u32 s61, s61, {64 << sh}')
    elif not o.get('nopf'):
        for i in range(11):
            pf.append(f'buffer_load_dwordx4 {v(T0+16,4)}, {v(LS2+7)}, s[40:43], s61 offen offset:{1024*(i&3)}' + ('\ns_add_u32 s61, s61, 4096' if i & 3 == 3 else ''))
    if not o.get('nocpf'):
        A('s_getpc_b64 s[56:57]')
        A.label('L_code1')
        A(f's_add_u32 s56, s56, {nxt}-L_code1')
        A('s_addc_u32 s57, s57, 0')
        A(f's_mov_b32 s58, {"L_attn_exact" if fused else "L_code_end"}-{nxt}')
        A('s_lshr_b32 s63, s2, 3')
        A('s_lshl_b32 s63, s63, 2')
        A(f's_add_u32 s63, s63, {s(SW)}')
        A('s_lshl_b32 s63, s63, 8')
        A(f'v_lshlrev_b32 {v(LS2+6)}, 2, {v(LANE)}')
        pf.append(f'buffer_load_dword {v(T0+16)}, {v(LS2+6)}, s[56:59], s63 offen')
    pf = pf[12:] + pf[:12]
    A(f's_mov_b32 {s(STHR)}, {o.get("thr", 0x5d800000)}')
    A(f's_mov_b64 {s(SARM,2)}, -1')
    A(f's_mov_b32 {s(SRD_K0+2)}, 524288')
    if fused:
        A('s_load_dwordx2 s[16:17], s[0:1], 88')
        A('s_movk_i32 s18, 256')
        A(f'v_and_b32 v125, 7, {v(LANE)}')
        A('v_lshlrev_b32 v125, 2, v125')
        gen_tail.flag_setup(A, SRD_WS, SRD_WS + 1)
        A(gen_tail.flag_store(0, 124, 125))
    plan = o.get('plan', PLAN)
    opts = dict(plan, first_vm=vm.wait_for([('kv', 0)]), stmod=o.get('stmod', ''), opened=o.get('open', 1))
    if opts['opened']:
        attn_open(A, K0_LDS, opts)
    else:
        attn_start(A, K0_LDS, ms=plan.get('sum') == 'mfma')
    if fused:
        opts['pre_finish'] = gen_tail.tail_loads
        opts['pre_bar'] = gen_tail.snap_write
        opts['x29'] = [(4, gen_tail.ready_load())]
        opts['x31'] = gen_tail.presetup()
        opts['x32'] = [(20, gen_tail.first_look(LS2 + 6))]
        opts['after0'] = 's_waitcnt vmcnt(8)\ns_barrier\n' + gen_tail.signal_ready('L_sig_h')
    if st:
        A('s_memrealtime s[98:99]')
    if o.get('pstamp'):
        opts['pstamp'] = 1
        A('s_mov_b32 s70, 0')
    attn_loop(A, opts, pf)
    if o.get('pstamp'):
        A('s_lshl_b32 s26, s2, 2\ns_add_u32 s26, s26, s20\ns_lshl_b32 s26, s26, 8\ns_add_u32 s26, s26, 0x3200000')
        A(f'v_lshlrev_b32 v62, 2, {v(LANE)}')
        A('buffer_store_dword v103, v62, s[12:15], s26 offen')
    if st:
        A('s_memrealtime s[100:101]')
    attn_store(A, opts)
    if fused:
        del gen_tail.COLD[:]
        gen_tail.tail(A, o)
        cold += gen_tail.COLD
    if st and fused:
        A('s_waitcnt lgkmcnt(0)')
        A('s_sub_u32 s78, s78, s58\ns_sub_u32 s58, s58, s54\ns_sub_u32 s54, s54, s52\ns_sub_u32 s52, s52, s100')
        A('v_mov_b32 v16, s52\nv_mov_b32 v17, s54\nv_mov_b32 v18, s58\nv_mov_b32 v19, s78')
    if st:
        A(f's_lshl_b32 s85, {s(SW)}, 6')
        A('v_mov_b32 v0, s85')
        A('s_waitcnt lgkmcnt(0)')
        A('s_sub_u32 s100, s100, s98\ns_sub_u32 s98, s98, s82\ns_sub_u32 s88, s82, s80\ns_sub_u32 s86, s80, s92')
        stamp_end(A, 0, 0, 92)
        A('v_mov_b32 v8, s86\nv_mov_b32 v9, s88\nv_mov_b32 v10, s98\nv_mov_b32 v11, s100')
        A('s_add_u32 s84, s84, 0x8000')
        A('buffer_store_dwordx4 v[8:11], v4, s[80:83], s84 offen')
        if fused:
            A('s_add_u32 s84, s84, 0x10000')
            A('buffer_store_dwordx4 v[16:19], v4, s[80:83], s84 offen')
    A.label('L_k2_end')
    A('s_endpgm')
    A('\n'.join(cold)) if cold else None
    attn_exact(A, SRD_K0, o.get('stmod', ''))


def build(o):
    A = Asm()
    for l in HEADER.strip().split('\n'):
        A.lines.append(l)
    fused = o.get('fused')
    if fused and o.get('plain'):
        A('; @launch grid=(256,1,1) block=(256,1,1) lds=163840')
    elif fused:
        A(f'; @launch kernel={NAME} grid=(256,1,1) block=(256,1,1) lds=163840')
    else:
        A('; @launch kernel=attn_kernel grid=(256,1,1) block=(256,1,1) lds=163840')
        A('; @launch kernel=out_kernel grid=(256,1,1) block=(256,1,1) lds=163840')
    A('.amdgcn_target "amdgcn-amd-amdhsa--gfx950"\n.text')
    k2(A, o)
    if not fused:
        gen_k3.k3(A, opts=dict(o.get('k3', {}), **(dict(stamp=1) if o.get('stamp') else {})))
    A.label('L_code_end')
    A('.section .rodata,"a"\n.p2align 6')
    A(f'.amdhsa_kernel {NAME if fused else "attn_kernel"}\n.amdhsa_next_free_vgpr 512\n.amdhsa_next_free_sgpr 102\n.amdhsa_accum_offset 256')
    A('.amdhsa_group_segment_fixed_size 0\n.amdhsa_kernarg_size 104\n.amdhsa_user_sgpr_count 2\n.amdhsa_user_sgpr_kernarg_segment_ptr 1\n.amdhsa_system_sgpr_workgroup_id_x 1\n.end_amdhsa_kernel')
    if not fused:
        A('.p2align 6')
        gen_k3.k3_desc(A)
    A.lines, n = fix(A.lines)
    p = check(A.lines)
    print(len(A.lines), 'lines; nops', n, 'hazards', p[:8])
    txt = A.text()
    if o.get('cyc'):
        for r in ('86:87', '88:89', '98:99', '100:101', '52:53', '54:55', '58:59', '78:79'):
            txt = txt.replace(f's_memrealtime s[{r}]', f's_memtime s[{r}]')
        txt = txt.replace('s_sub_u32 s86, s86, s90', 's_sub_u32 s86, s86, s92')
    return txt


if __name__ == '__main__':
    two = dict(stmod=' sc1', k3={}, pmode=1, plan=PLANM)
    best = dict(two, fused=1, rot=4, plan=planx(4, 6, 8, 80))
    variants = {'best': best, 't7': dict(best, touch=7), 't6': dict(best, touch=6)}
    for n, o in variants.items():
        open(f'all_{n}_stamp.s', 'w').write(build(dict(o, stamp=1)))
    open('all.s', 'w').write(build(best))
    open('alt1.s', 'w').write(build(dict(best, plain=1, outmod=' sc1')))
    open('recurrent_scan__mha_block_cached__mixer_channel_mlp__prompt.s', 'w').write(build(dict(best, plain=1)))
```

```python
from asmlib import Asm, v, a, s, pk
from gen_attn16 import *

X_RING = 0
W_RING = 65536
K0_LDS = 139264
CS_LDS = 155648
VXO = 0
VWQ = 8
VW1 = 12
RX = 14
RWQ = 16
RW1 = 20
B1R = 24
CSR = 32
PT = 64
XB = 0
AR = 64
ONESA = 96
HB, HE, SUM, GRAM, CSQ, CS1 = 128, 160, 192, 208, 224, 232
SXP = 25
MODE = dict(nq=2, nt=12)
SRD_X, SRD_WQ, SRD_W1, SRD_K0, SRD_H, SRD_B1 = 16, 40, 44, 48, 52, 56
SXM, SXO, SWQO, SW1O, SM1, SFLIP = 60, 61, 62, 63, 64, 65
SROT, SXT, SXT2, SWQT, SW1T = 28, 74, 75, 76, 77
NPOS = 14


def p1_lane_setup(A, exp=None):
    L = LANE; t1, t2, t3, t4 = PT, PT + 1, PT + 2, PT + 3
    A(f'v_lshrrev_b32 {v(t1)}, 3, {v(L)}')
    A(f'v_lshrrev_b32 {v(t2)}, 4, {v(L)}')
    A(f'v_and_b32 {v(t3)}, 7, {v(L)}')
    for i in range(2):
        A(f'v_add_u32 {v(t4)}, {4*i}, {v(t2)}')
        A(f'v_xor_b32 {v(t4)}, {v(t4)}, {v(t3)}')
        A(f'v_lshlrev_b32 {v(t4)}, 4, {v(t4)}')
        A(f'v_lshl_add_u32 {v(VXO+i)}, {v(t1)}, 10, {v(t4)}')
    A(f'v_add_u32 {v(VXO+1)}, 7168, {v(VXO+1)}')
    for i in range(2):
        A(f'v_add_u32 {v(VXO+2+i)}, 14336, {v(VXO+i)}')
    A(f'v_and_b32 {v(t3)}, 15, {v(L)}')
    A(f'v_lshlrev_b32 {v(t4)}, 2, {v(t2)}')
    A(f'v_xor_b32 {v(t4)}, {v(t4)}, {v(t3)}')
    A(f'v_lshlrev_b32 {v(t4)}, 4, {v(t4)}')
    A(f'v_lshl_add_u32 {v(VWQ)}, {v(t2)}, 13, {v(t4)}')
    for i in range(1, 4):
        A(f'v_add_u32 {v(VWQ+i)}, {4*i*8192 - 1024*i}, {v(VWQ)}')
    A(f's_lshl_b32 s30, {s(SHEAD)}, 6')
    A(f's_lshl_b32 s31, {s(SXP)}, 6')
    A('s_movk_i32 s29, 2752')
    if exp == 'adj':
        A('s_lshl_b32 s30, s30, 1\ns_and_b32 s30, s30, 0x7ff\ns_add_u32 s31, s30, 64')
    if exp == 'same':
        A('s_mov_b32 s31, s30')
    if exp == 'al':
        A('s_lshl_b32 s30, s30, 1\ns_and_b32 s30, s30, 0x7ff\ns_add_u32 s31, s30, 64\ns_movk_i32 s29, 2688')
    A(f'v_mov_b32 {v(PT+5)}, s31')
    for i in range(2):
        A(f'v_and_b32 {v(t3)}, 7, {v(L)}')
        A(f'v_and_b32 {v(t4)}, 1, {v(t2)}')
        A(f'v_lshlrev_b32 {v(t4)}, 1, {v(t4)}')
        A(f'v_xor_b32 {v(t3)}, {v(t3)}, {v(t4)}')
        if i:
            A(f'v_xor_b32 {v(t3)}, 4, {v(t3)}')
        A(f'v_and_b32 {v(t4)}, 3, {v(t3)}')
        A(f'v_lshlrev_b32 {v(t4)}, 4, {v(t4)}')
        A(f'v_mov_b32 {v(PT+4)}, s30')
        A(f'v_cmp_gt_u32 vcc, 4, {v(t3)}')
        A(f'v_cndmask_b32 {v(PT+4)}, {v(PT+5)}, {v(PT+4)}, vcc')
        A(f'v_add_u32 {v(t4)}, {v(t4)}, {v(PT+4)}')
        A(f'v_mad_u32_u24 {v(VW1+i)}, {v(t1)}, s29, {v(t4)}')
    A(f'v_add_u32 {v(VW1+1)}, {8*2752 - 1024}, {v(VW1+1)}')


def p1_read_setup(A):
    L = LANE; t1, t2, t3, t4 = PT, PT + 1, PT + 2, PT + 3
    A(f'v_lshrrev_b32 {v(t2)}, 4, {v(L)}')
    A(f'v_and_b32 {v(t3)}, 15, {v(L)}')
    A(f'v_lshrrev_b32 {v(t4)}, 1, {v(t3)}')
    A(f'v_lshlrev_b32 {v(t3)}, 7, {v(t3)}')
    A(f'v_add_u32 {v(t3)}, {s(SXM)}, {v(t3)}')
    for kk in range(2):
        A(f'v_add_u32 {v(t1)}, {4*kk}, {v(t2)}')
        A(f'v_xor_b32 {v(t1)}, {v(t1)}, {v(t4)}')
        A(f'v_lshl_add_u32 {v(RX+kk)}, {v(t1)}, 4, {v(t3)}')
    A(f'v_bfe_u32 {v(t3)}, {v(L)}, 2, 2')
    A(f'v_lshl_add_u32 {v(t1)}, {v(t2)}, 3, {v(t3)}')
    A(f'v_and_b32 {v(PT+4)}, 1, {v(t2)}')
    A(f'v_and_b32 {v(t2)}, 3, {v(L)}')
    A(f'v_lshlrev_b32 {v(PT+5)}, 4, {v(t2)}')
    A(f'v_lshl_add_u32 {v(PT+5)}, {v(t1)}, 8, {v(PT+5)}')
    A(f'v_add_u32 {v(PT+5)}, {W_RING}, {v(PT+5)}')
    for k in range(4):
        A(f's_xor_b32 s29, {s(SW)}, {k}')
        A(f'v_xor_b32 {v(t4)}, s29, {v(t3)}')
        A(f'v_lshl_add_u32 {v(RWQ+k)}, {v(t4)}, 6, {v(PT+5)}')
    A(f'v_lshrrev_b32 {v(t3)}, 1, {v(t3)}')
    A(f'v_lshl_add_u32 {v(t3)}, {v(PT+4)}, 1, {v(t3)}')
    A(f'v_lshlrev_b32 {v(t2)}, 3, {v(t2)}')
    A(f'v_lshl_add_u32 {v(t2)}, {v(t1)}, 7, {v(t2)}')
    A(f'v_add_u32 {v(t2)}, {W_RING + 16384}, {v(t2)}')
    for u in range(4):
        A(f'v_xor_b32 {v(t4)}, {u}, {v(t3)}')
        A(f'v_lshl_add_u32 {v(RW1+u)}, {v(t4)}, 5, {v(t2)}')
    A(f'v_mov_b32 {v(t1)}, 0x3f803f80')
    for i in range(4):
        A(f'v_accvgpr_write_b32 {a(ONESA+i)}, {v(t1)}')


class VM:
    def __init__(self):
        self.ops = []

    def add(self, tag):
        self.ops.append(tag)

    def wait_for(self, tags):
        idx = max(i for i, t in enumerate(self.ops) if t in tags)
        n = len(self.ops) - 1 - idx
        n = min(n, 63)
        return n


def x_dma(c):
    out = []
    for i in range(8):
        pre = f's_add_u32 m0, {s(SXM)}, {X_RING + (c & 1)*32768 + (i >> 2)*4096}\n' if i & 3 == 0 else ''
        if i == 0:
            pre = (f's_add_u32 s78, {s(SROT)}, {c}\ns_and_b32 s78, s78, 7\ns_lshl_b32 s78, s78, 7\n'
                   f's_add_u32 {s(SXT)}, {s(SXO)}, s78\ns_xor_b32 {s(SXT2)}, {s(SXT)}, 0x8000\n') + pre
        so = SXT if i < 4 else SXT2
        out.append((pre, f'buffer_load_dwordx4 {v(VXO+(i&3))}, {s(SRD_X,4)}, {s(so)} offen offset:{1024*(i&3)} lds'))
    return out


def w_dma(c):
    sl = W_RING + (c % 3) * 24576
    out = []
    for i in range(4):
        pre = ''
        if i == 0:
            pre = (f's_add_u32 s78, {s(SROT)}, {c}\ns_and_b32 s78, s78, 7\ns_lshl_b32 s79, s78, 19\n'
                   f's_add_u32 {s(SWQT)}, {s(SWQO)}, s79\ns_mul_i32 s79, s78, {64*2752}\ns_add_u32 {s(SW1T)}, {s(SW1O)}, s79\n'
                   f's_add_u32 m0, {s(SM0)}, {sl}\n')
        out.append((pre, f'buffer_load_dwordx4 {v(VWQ+i)}, {s(SRD_WQ,4)}, {s(SWQT)} offen offset:{1024*i} lds'))
    for i in range(2):
        pre = f's_add_u32 m0, {s(SM1)}, {sl + 16384}\n' if i == 0 else ''
        out.append((pre, f'buffer_load_dwordx4 {v(VW1+i)}, {s(SRD_W1,4)}, {s(SW1T)} offen offset:{1024*i} lds'))
    return out


def kv_list(which, slot, srd=None):
    out = []
    for i in range(4):
        if which == 'K':
            pre = f's_add_u32 m0, {s(SM0)}, {slot*16384}\n' if i == 0 else ''
            out.append((pre, f'buffer_load_dwordx4 {v(VOK+i)}, {s(srd or SRD_K,4)}, {s(SOFF)} offen offset:{1024*i} lds'))
        else:
            pre = f's_add_u32 m0, {s(SM0)}, {65536+slot*16384}\n' if i == 0 else ''
            out.append((pre, f'buffer_load_dwordx4 {v(VOV+(i&1))}, {s(SRD_V,4)}, {s(SOFF)} offen offset:{1024*i} lds'))
    return out


def tile_reads(c, t, slot=None):
    out = []
    for kk in range(2):
        for jh in range(2):
            dst = a(AR + 8 * ((t if slot is None else slot) % 4) + 4 * kk + 2 * jh, 2)
            if t < 8:
                off = (c % 3) * 24576 + (32 * kk + 4 * jh) * 256 + 8 * (t & 1)
                out.append(f'ds_read_b64_tr_b16 {dst}, {v(RWQ+(t>>1))} offset:{off}')
            else:
                off = (c % 3) * 24576 + (32 * kk + 4 * jh) * 128
                out.append(f'ds_read_b64_tr_b16 {dst}, {v(RW1+t-8)} offset:{off}')
    return out


def x_reads(c):
    out = []
    for kk in range(2):
        for qt in range(4):
            out.append(f'ds_read_b128 {a(XB+32*(c&1)+4*(4*kk+qt),4)}, {v(RX+kk)} offset:{X_RING+(c&1)*32768+qt*2048}')
    return out


def tile_mfmas(c, pos, slot=None):
    xs = XB + 32 * (c & 1)
    out = []

    def mm(acc, A_, B_, kk):
        out.append(f'{MFMA} {acc}, {A_}, {B_}, {0 if (c == 0 and kk == 0) else acc}')
    xf = lambda kk, qt: a(xs + 4 * (4 * kk + qt), 4)
    ones = a(ONESA, 4)
    if pos < 12:
        wf = lambda kk: a(AR + 8 * ((pos if slot is None else slot) % 4) + 4 * kk, 4)
        nq = MODE['nq'] if pos >= 10 else 4
        for qt in range(nq):
            if pos < 8:
                acc = v(OACC + 4 * (8 * qt + pos), 4)
            elif pos < 10:
                acc = a(HB + 4 * (4 * (pos - 8) + qt), 4)
            else:
                acc = a(HE + 4 * (4 * (pos - 10) + qt), 4)
            for kk in range(2):
                mm(acc, wf(kk), xf(kk, qt), kk)
        if pos < 2 or pos >= 8:
            acc = a(CSQ + 4 * pos, 4) if pos < 2 else a(CS1 + 4 * (pos - 8), 4)
            for kk in range(2):
                mm(acc, wf(kk), ones, kk)
    else:
        for qt in (2 * (pos - 12), 2 * (pos - 12) + 1):
            for kk in range(2):
                mm(a(SUM + 4 * qt, 4), ones, xf(kk, qt), kk)
            for kk in range(2):
                mm(a(GRAM + 4 * qt, 4), xf(kk, qt), xf(kk, qt), kk)
    return out


def phase1(A, vm, diag=False, side=(), early=0, side2=(), last=None):
    NT = MODE['nt']
    T7 = list(range(8, NT)) + list(range(8))
    lds = []
    done = [-1]

    def lds_wait(tag):
        idx = max(i for i, t in enumerate(lds) if t == tag)
        if idx > done[0]:
            n = len(lds) - 1 - idx
            A(f's_waitcnt lgkmcnt({min(n, 15)})')
            done[0] = idx

    A(f's_waitcnt vmcnt({vm.wait_for([("x", 0), ("W", 0)])})')
    if diag:
        A('s_memrealtime s[66:67]\ns_waitcnt lgkmcnt(0)\nv_writelane_b32 v123, s66, 12')
    A('s_barrier')
    if diag:
        A('s_memrealtime s[66:67]\ns_waitcnt lgkmcnt(0)\nv_writelane_b32 v123, s66, 13')
    for r in x_reads(0):
        A(r); lds.append(('x', 0))
    for t in range(2):
        for r in tile_reads(0, t):
            A(r); lds.append(('t', 0, t))
    for c in range(7 if last else 8):
        if diag:
            A(f's_memrealtime s[{66+2*(c&1)}:{67+2*(c&1)}]')
            if c:
                A(f'v_writelane_b32 v123, s{66+2*((c-1)&1)}, {c-1}')
        if c == 5:
            assert not side
            side = side2
        for pos in list(range(NT)) + [12, 13]:
            mf = tile_mfmas(c, pos)
            fill = [[] for _ in mf]
            slot = [0]

            def put(txt, tag=None, kind=None, at=None):
                i = slot[0] if at is None else at
                fill[i].append((txt, tag, kind))
                if at is None:
                    slot[0] += 1

            def put_dma(lst, tag):
                for pre, ins in lst:
                    if pre:
                        fill[max(slot[0] - 1, 0)].append((pre.strip(), None, None))
                        slot[0] = max(slot[0], 1)
                    put(ins, tag, 'vm')
            if pos == 12:
                if c < 7:
                    put(('vmwait', [('W', c + 1)]))
                put('s_barrier')
            nxt = (c, pos + 2) if pos + 2 < NT else ((c + 1, pos - 12) if pos >= 12 and c < 7 else None)
            if nxt and last and nxt[0] == 7:
                for r in tile_reads(7, T7[nxt[1]], nxt[1]):
                    put(r, ('t', 7, nxt[1]), 'lds')
            elif nxt:
                for r in tile_reads(*nxt):
                    put(r, ('t',) + nxt, 'lds')
            if c < 7:
                if pos == NT - 2:
                    put(('vmwait', [('x', c + 1)]))
                if pos in (NT - 2, NT - 1):
                    for r in x_reads(c + 1)[4 * (pos - NT + 2):4 * (pos - NT + 2) + 4]:
                        put(r, ('x', c + 1), 'lds')
            if c == 0:
                plan0 = {0: (x_dma(1)[:4], ('x', 1)), 1: (x_dma(1)[4:], ('x', 1)), 2: (w_dma(1)[:3], ('W', 1)), 3: (w_dma(1)[3:], ('W', 1)),
                         4: (x_dma(2)[:4], ('x', 2)), 5: (x_dma(2)[4:], ('x', 2)), 6: (w_dma(2)[:3], ('W', 2)), 7: (w_dma(2)[3:], ('W', 2))}
                if early:
                    plan0 = {k - 4: x for k, x in plan0.items() if k >= 4}
                if pos in plan0:
                    put_dma(*plan0[pos])
            elif pos in (0, 1, 2, 3) and c + 2 <= 7:
                put_dma(x_dma(c + 2)[2 * pos:2 * pos + 2], ('x', c + 2))
            if pos in (12, 13) and c + 3 <= 7:
                put_dma(w_dma(c + 3)[2 * (pos - 12) + 0:2 + 4 * (pos - 12)], ('W', c + 3))
            if c == 6 and pos == 4:
                put_dma([(f's_add_u32 m0, {s(SM0)}, {K0_LDS}\n' if i == 0 else '',
                          f'buffer_load_dwordx4 {v(VOK+i)}, {s(SRD_K0,4)}, {s(SOFF)} offen offset:{1024*i} lds') for i in range(4)], 'k0')
            if c == 7 and pos in (0, 1, 2):
                lst = [kv_list('K', 0), kv_list('V', 0), kv_list('K', 1)][pos]
                put_dma(lst, ('kv', 0 if pos < 2 else 1))
                if pos == 1:
                    fill[-1].append((f's_add_u32 {s(SOFF)}, {s(SOFF)}, 16384', None, None))
            if c == 7 and pos == 12:
                put_dma(kv_list('V', 1), ('kv', 1))
                fill[-1].append((f's_add_u32 {s(SOFF)}, {s(SOFF)}, 16384', None, None))
            if pos < 12:
                lds_wait(('t', c, pos))
            for m, fl in zip(mf, fill):
                A(m)
                if not fl and side and (c, pos) >= (0, 8):
                    for _ in range(2):
                        if side:
                            txt, tag = side.pop(0)
                            A(txt)
                            if tag:
                                vm.add(tag)
                            if tag or txt.startswith('s_add_u32 m0'):
                                break
                for txt, tag, kind in fl:
                    if isinstance(txt, tuple):
                        A(f's_waitcnt vmcnt({vm.wait_for(txt[1])})')
                        continue
                    A(txt)
                    if kind == 'lds':
                        lds.append(tag)
                    elif kind == 'vm':
                        vm.add(tag)


    if not last:
        return
    if diag:
        A('s_waitcnt lgkmcnt(0)\nv_writelane_b32 v123, s66, 6\ns_memrealtime s[68:69]\ns_waitcnt lgkmcnt(0)\nv_writelane_b32 v123, s68, 7')
        done[0] = len(lds) - 1
    stat, cs_w, cs_r, prep = last
    for step in range(NT + 2):
        k = step - 2
        mf = tile_mfmas(7, 12 + step) if k < 0 else tile_mfmas(7, T7[k], k)
        fill = [[] for _ in mf]
        n = 0
        if k == NT - 2:
            fill[0].append((f's_waitcnt vmcnt({vm.wait_for(["k0"])}) lgkmcnt(0)\ns_barrier', None, None)); n = 1
            done[0] = len(lds) - 1
        rd = step + 2 if k < 0 else (k + 3 if 1 <= k <= NT - 4 else None)
        if rd is not None:
            for r in tile_reads(7, T7[rd], rd):
                fill[n].append((r, ('t', 7, rd), 'lds')); n += 1
        dma = {0: ('K', 0, 0), 1: ('V', 0, 0), 2: ('K', 1, 1), NT: ('V', 1, 1)}.get(step)
        if dma:
            for pre, ins in kv_list(dma[0], dma[1]):
                if pre:
                    fill[max(n - 1, 0)].append((pre.strip(), None, None)); n = max(n, 1)
                fill[n].append((ins, ('kv', dma[2]), 'vm')); n += 1
            if dma[0] == 'V':
                fill[-1].append((f's_add_u32 {s(SOFF)}, {s(SOFF)}, 16384', None, None))
        if k == NT - 5:
            fill[5].append((cs_w, None, None))
        if k == NT - 1:
            for i, r in enumerate(cs_r):
                fill[i].append((r, None, None))
        work = stat if (k >= 1 and stat) else (prep if k >= NT - 7 else [])
        if k >= 0:
            lds_wait(('t', 7, k))
        for m, fl in zip(mf, fill):
            A(m)
            for txt, tag, kind in fl:
                A(txt)
                if kind == 'lds':
                    lds.append(tag)
                elif kind == 'vm':
                    vm.add(tag)
            for _ in range(2 - min(len(fl), 2)):
                if work:
                    A(work.pop(0))
    for x in stat + prep:
        A(x)


WS_S = 41 << 20
SRD_S, SRD_D = 84, 88
ROWR, UNP, STR, STL = 32, 40, 56, 104


def stat_loads(A, vm):
    A(f'v_lshlrev_b32 {v(PT+9)}, 5, {v(LANE)}')
    A(f's_lshl_b32 s26, {s(SQB)}, 5\ns_add_u32 s26, s26, {s(SHEAD)}\ns_lshl_b32 s26, s26, 2\ns_add_u32 s26, s26, {s(SW)}\ns_lshl_b32 s31, s26, 11')
    for i in range(2):
        A(f'buffer_load_dwordx4 {v(ROWR+4*i,4)}, {v(PT+9)}, {s(SRD_X,4)}, s31 offen offset:{16*i}'); vm.add('row')
    A('s_lshl_b32 s69, s26, 5')


def half_sum(B, r, t):
    for m in ('quad_perm:[1,0,3,2]', 'quad_perm:[2,3,0,1]', 'row_half_mirror', 'row_mirror'):
        B(f'v_add_f32_dpp {v(r)}, {v(r)}, {v(r)} {m} row_mask:0xf bank_mask:0xf')
    B(f'v_mov_b32 {v(t)}, {v(r)}')
    B(f'v_permlane16_swap_b32 {v(r)}, {v(t)}')
    B(f'v_add_f32 {v(r)}, {v(r)}, {v(t)}')


def stat_work(ws_lo, ws_hi, dbg_lo):
    B = Asm()
    a0, a1, t = STR, STR + 1, STR + 3
    for i in range(16):
        B(f'v_and_b32 {v(UNP+i)}, 0xffff0000, {v(ROWR+(i>>1))}' if i & 1 else f'v_lshlrev_b32 {v(UNP+i)}, 16, {v(ROWR+(i>>1))}')
    B(f'v_add_f32 {v(a0)}, {v(UNP)}, {v(UNP+1)}')
    B(f'v_add_f32 {v(a1)}, {v(UNP+2)}, {v(UNP+3)}')
    for i in range(4, 16):
        B(f'v_add_f32 {v(a0+(i&1))}, {v(a0+(i&1))}, {v(UNP+i)}')
    B(f'v_add_f32 {v(a0)}, {v(a0)}, {v(a1)}')
    half_sum(B, a0, t)
    B(f'v_mul_f32 {v(a0)}, 0xbb000000, {v(a0)}')
    for i in range(16):
        B(f'v_add_f32 {v(UNP+i)}, {v(UNP+i)}, {v(a0)}')
    B(f'v_mul_f32 {v(a1)}, {v(UNP)}, {v(UNP)}')
    B(f'v_mul_f32 {v(a1+1)}, {v(UNP+1)}, {v(UNP+1)}')
    for i in range(2, 16):
        B(f'v_fmac_f32 {v(a1+(i&1))}, {v(UNP+i)}, {v(UNP+i)}')
    B(f'v_add_f32 {v(a1)}, {v(a1)}, {v(a1+1)}')
    half_sum(B, a1, t)
    B(f'v_mul_f32 {v(a1)}, 0x3b000000, {v(a1)}')
    B(f'v_add_f32 {v(t)}, 0x3727c5ac, {v(a1)}')
    B(f'v_rsq_f32 {v(t)}, {v(t)}')
    B(f'v_mov_b32 {v(UNP)}, 0x3727c5ac')
    B(f'v_mul_f32 {v(a1)}, {v(a1)}, {v(t)}')
    B(f'v_fma_f32 {v(a1+1)}, {v(a1)}, {v(t)}, {v(UNP)}')
    B(f'v_rsq_f32 {v(a1+1)}, {v(a1+1)}')
    B(f'v_mul_f32 {v(a1)}, 0x3e0293ee, {v(t)}')
    B(f'v_and_b32 {v(UNP)}, 31, {v(LANE)}')
    B(f'v_mul_f32 {v(a1+1)}, {v(a1+1)}, {v(t)}')
    B(f'v_lshrrev_b32 {v(UNP+1)}, 1, {v(LANE)}')
    B(f'v_lshl_add_u32 {v(UNP)}, {v(UNP)}, 20, {v(UNP+1)}')
    items = [(l, None) for l in B.lines]
    items.append((f's_add_u32 s{SRD_S}, s{ws_lo}, {WS_S}\ns_addc_u32 s{SRD_S+1}, s{ws_hi}, 0', None))
    items.append((f's_mov_b32 s{SRD_S+2}, 32768\ns_mov_b32 s{SRD_S+3}, 0x20000', None))
    items.append((f'buffer_store_dwordx4 {v(STR,4)}, {v(UNP)}, {s(SRD_S,4)}, s69 offen sc1', 'st'))
    items.append((f's_mov_b32 s{SRD_D}, s{dbg_lo}\ns_mov_b32 s{SRD_D+1}, s{dbg_lo+1}', None))
    items.append((f's_movk_i32 s{SRD_D+2}, 256\ns_mov_b32 s{SRD_D+3}, 0x20000', None))
    items.append((f'v_and_b32 {v(UNP+2)}, 7, {v(LANE)}\nv_lshlrev_b32 {v(UNP+2)}, 2, {v(UNP+2)}', None))
    items.append((f's_lshl_b32 s69, {s(SQB)}, 5', None))
    return items


def phase1c(A, vm, cold, diag=False, side=(), pubc=3):
    lds = []
    done = [-1]
    Z = UNP + 2

    def lds_wait(tag):
        idx = max(i for i, t in enumerate(lds) if t == tag)
        if idx > done[0]:
            A(f's_waitcnt lgkmcnt({min(len(lds) - 1 - idx, 15)})')
            done[0] = idx

    A(f's_waitcnt vmcnt({vm.wait_for([("x", 0), ("W", 0)])})')
    A('s_barrier')
    for r in x_reads(0):
        A(r); lds.append(('x', 0))
    for t in range(2):
        for r in tile_reads(0, t):
            A(r); lds.append(('t', 0, t))
    for c in range(8):
        if diag:
            A(f's_waitcnt lgkmcnt(0)\ns_memrealtime s[100:101]\ns_waitcnt lgkmcnt(0)\nv_writelane_b32 v123, s100, {c}')
            done[0] = len(lds) - 1
        for pos in range(12):
            mf = tile_mfmas(c, pos)
            fill = [[] for _ in mf]
            slot = [0]

            def put(txt, tag=None, kind=None):
                fill[min(slot[0], len(mf) - 1)].append((txt, tag, kind)); slot[0] += 1

            def put_dma(lst, tag):
                for pre, ins in lst:
                    if pre:
                        fill[max(min(slot[0], len(mf)) - 1, 0)].append((pre.strip(), None, None))
                        slot[0] = max(slot[0], 1)
                    put(ins, tag, 'vm')
            if pos == 10:
                tags = ([('W', c + 1)] if c < 7 else []) + (['st'] if c == pubc else []) + (['mask'] if c == 6 else [])
                put(('bar', tags))
                if c == pubc:
                    assert 'st' in vm.ops
                    put('\n'.join([f's_cmp_lg_u32 {s(SW)}, 0', 's_cbranch_scc1 L_st_sig', f's_add_u32 s30, s69, {s(SHEAD)}', 's_mov_b64 exec, 1',
                                   f'v_mov_b32 {v(Z+1)}, 1', f'buffer_store_byte {v(Z+1)}, {v(Z)}, {s(SRD_D,4)}, s30 offen sc1',
                                   's_mov_b64 exec, -1', 'L_st_sig:']))
                if c == 6:
                    chk = f'v_and_b32 {v(Z+1)}, 0x01010101, {v(Z+1)}\nv_cmp_ne_u32 vcc, 0x01010101, {v(Z+1)}'
                    put(chk)
                    put('s_nop 0\ns_cbranch_vccnz L_st_poll\nL_st_ok:')
                    cold.append('\n'.join(['L_st_poll:', 's_mov_b32 s31, 0x40000', 'L_st_again:',
                                           f'buffer_load_dword {v(Z+1)}, {v(Z)}, {s(SRD_D,4)}, s69 offen sc1', 's_waitcnt vmcnt(0)', chk,
                                           's_sub_u32 s31, s31, 1', 's_cbranch_scc1 L_st_ok', 's_cbranch_vccnz L_st_again', 's_branch L_st_ok']))
            nxt = (c, pos + 2) if pos + 2 < 12 else ((c + 1, pos - 10) if c < 7 else None)
            if nxt:
                for r in tile_reads(*nxt):
                    put(r, ('t',) + nxt, 'lds')
            if c < 7 and pos in (6, 7, 8, 9):
                if pos == 6:
                    put(('vmwait', [('x', c + 1)]))
                for r in x_reads(c + 1)[2 * (pos - 6):2 * (pos - 6) + 2]:
                    put(r, ('x', c + 1), 'lds')
            if c + 2 <= 7:
                if pos in (0, 1):
                    put_dma(w_dma(c + 2)[3 * pos:3 * pos + 3], ('W', c + 2))
                if pos in (2, 3, 4, 5):
                    put_dma(x_dma(c + 2)[2 * (pos - 2):2 * (pos - 2) + 2], ('x', c + 2))
            if c == 5 and pos == 9:
                fill[7].append((f'buffer_load_dword {v(Z+1)}, {v(Z)}, {s(SRD_D,4)}, s69 offen sc1', 'mask', 'vm'))
            if c == 6 and pos == 2:
                put_dma([(f's_add_u32 m0, {s(SM0)}, {K0_LDS}\n' if i == 0 else '',
                          f'buffer_load_dwordx4 {v(VOK+i)}, {s(SRD_K0,4)}, {s(SOFF)} offen offset:{1024*i} lds') for i in range(4)], 'k0')
            if c == 6 and pos == 4:
                put(f'v_and_b32 {v(Z+2)}, 15, {v(LANE)}\nv_lshlrev_b32 {v(Z+2)}, 4, {v(Z+2)}')
                put(f's_lshl_b32 s26, {s(SQB)}, 12\ns_lshl_b32 s27, {s(SW)}, 10\ns_add_u32 s26, s26, s27')
                put(f's_lshl_b32 s27, {s(SFLIP)}, 4\ns_add_u32 s26, s26, s27\ns_xor_b32 s27, s26, 512')
            if c == 7 and pos == 3:
                for qt in range(4):
                    put(f'buffer_load_dwordx4 {v(STL+4*qt,4)}, {v(Z+2)}, {s(SRD_S,4)}, s{26+(qt>>1)} offen offset:{256*(qt&1)} sc1', 'stl', 'vm')
            if c == 7 and pos in (0, 1, 2):
                lst = [kv_list('K', 0), kv_list('V', 0), kv_list('K', 1)][pos]
                put_dma(lst, ('kv', 0 if pos < 2 else 1))
                if pos == 1:
                    fill[-1].append((f's_add_u32 {s(SOFF)}, {s(SOFF)}, 16384', None, None))
            if c == 7 and pos == 10:
                put_dma(kv_list('V', 1), ('kv', 1))
                fill[-1].append((f's_add_u32 {s(SOFF)}, {s(SOFF)}, 16384', None, None))
            lds_wait(('t', c, pos))
            for m, fl in zip(mf, fill):
                A(m)
                n = 2 if not fl else (1 if len(fl) == 1 and fl[0][2] == 'lds' else 0)
                while n and side and (not side[0][1] or not fl):
                    txt, tag = side.pop(0)
                    A(txt); n -= 1
                    if tag:
                        vm.add(tag); n = 0
                    if not side:
                        vm.ops.insert(0, 'sd')
                for txt, tag, kind in fl:
                    if isinstance(txt, tuple):
                        if txt[0] == 'bar':
                            A((f's_waitcnt vmcnt({vm.wait_for(txt[1])}) lgkmcnt(0)' if txt[1] else 's_waitcnt lgkmcnt(0)') + '\ns_barrier')
                            done[0] = len(lds) - 1
                        else:
                            A(f's_waitcnt vmcnt({vm.wait_for(txt[1])})')
                        continue
                    A(txt)
                    if kind == 'lds':
                        lds.append(tag)
                    elif kind == 'vm':
                        vm.add(tag)


C1, BB, KC = 0, PT, T0 + 12


def p1_hidden():
    L = LANE
    lo = T0 + 13; t0 = PT + 1; t1 = PT + 2; t2 = PT + 3
    NMU, AQ, AH = T0, T0 + 4, T0 + 8
    B = Asm()
    B(f'v_and_b32 {v(t1)}, 3, {v(L)}')
    for k in range(1, 4):
        B(f'v_cmp_eq_u32 s[{66+2*k}:{67+2*k}], {k}, {v(t1)}')
    B(f'v_bfe_u32 {v(t1)}, {v(L)}, 2, 2')
    B(f'v_lshrrev_b32 {v(t2)}, 4, {v(L)}')
    B(f'v_cmp_eq_u32 s[74:75], {v(t1)}, {v(t2)}')
    B('s_mov_b32 s76, 0x3b000000')
    B('s_mov_b32 s77, 0x3727c5ac')
    B('s_mov_b32 s78, 0x3e0293ee')
    B(f'v_lshlrev_b32 {v(lo)}, 4, {v(L)}')
    for qt in range(4):
        g = PT + 8
        for r in range(4):
            B(f'v_accvgpr_read_b32 {v(g+r)}, {a(GRAM+4*qt+r)}')
        B(f'v_accvgpr_read_b32 {v(t1)}, {a(SUM+4*qt)}')
        for k in range(1, 4):
            B(f'v_cndmask_b32 {v(g)}, {v(g)}, {v(g+k)}, s[{66+2*k}:{67+2*k}]')
        B(f'v_cndmask_b32 {v(g)}, 0, {v(g)}, s[74:75]')
        xlane(B, 'v_add_f32', g, g + 1)
        B(f'v_mul_f32 {v(t1)}, s76, {v(t1)}')
        B(f'v_mul_f32 {v(g)}, s76, {v(g)}')
        B(f'v_fma_f32 {v(g)}, -{v(t1)}, {v(t1)}, {v(g)}')
        B(f'v_max_f32 {v(g)}, 0, {v(g)}')
        B(f'v_add_f32 {v(t2)}, s77, {v(g)}')
        B(f'v_rsq_f32 {v(t2)}, {v(t2)}')
        B(f'v_sub_f32 {v(NMU+qt)}, 0, {v(t1)}')
        B(f'v_mul_f32 {v(g)}, {v(g)}, {v(t2)}')
        B(f'v_fma_f32 {v(g)}, {v(g)}, {v(t2)}, s77')
        B(f'v_rsq_f32 {v(g)}, {v(g)}')
        B(f'v_mul_f32 {v(AQ+qt)}, s78, {v(t2)}')
        B(f'v_mul_f32 {v(AH+qt)}, {v(g)}, {v(t2)}')
    stat = [l for l in B.lines if not l.startswith('s_nop')]
    e0 = T0 + 14
    cs_w = '\n'.join([f's_lshl_b32 s29, {s(SW)}, 11', f's_add_u32 s29, s29, {CS_LDS}', f'v_lshl_add_u32 {v(e0)}, {v(L)}, 4, s29'] +
                     [f'ds_write_b128 {v(e0)}, {a(CSQ+4*e,4)} offset:{1024*e}' for e in range(2)])
    cs_r = []
    for k in range(4):
        for e in range(2):
            pre = f'v_xor_b32 {v(e0+1)}, {2048*k}, {v(e0)}\n' if e == 0 else ''
            cs_r.append(pre + f'ds_read_b128 {v(CSR+4*(2*k+e),4)}, {v(e0+1)} offset:{1024*e}')
    B = Asm()
    for i in range(4 * (MODE['nt'] - 8)):
        B(f'v_accvgpr_read_b32 {v(C1+i)}, {a(CS1+i)}')
        src = B1R + (i >> 1)
        B(f'v_and_b32 {v(BB+i)}, 0xffff0000, {v(src)}' if i & 1 else f'v_lshlrev_b32 {v(BB+i)}, 16, {v(src)}')
    B('s_mov_b32 s67, 0xbdd2d3e8')
    B(f'v_mov_b32 {v(KC)}, 0xc0135761')
    B(f's_lshl_b32 s26, {s(SQB)}, 4')
    B(f's_lshl_b32 s30, {s(SW)}, 2')
    B('s_add_u32 s26, s26, s30')
    B('s_lshl_b32 s26, s26, 10')
    B(f's_lshl_b32 s30, {s(SFLIP)}, 6')
    B(f's_lshl_b32 s31, {s(SHEAD)}, 17')
    B('s_add_u32 s31, s31, s26')
    B('s_add_u32 s68, s31, s30')
    B('s_xor_b32 s69, s68, 2048')
    B(f's_lshl_b32 s31, {s(SXP)}, 17')
    B('s_add_u32 s31, s31, s26')
    B('s_add_u32 s70, s31, s30')
    B('s_xor_b32 s71, s70, 2048')
    return stat, cs_w, cs_r, list(B.lines)


def p1_finish(A, vm, stmod=''):
    lo = T0 + 13
    nmu = lambda qt: T0 + qt; aq = lambda qt: T0 + 4 + qt; ah = lambda qt: T0 + 8 + qt
    A('s_waitcnt lgkmcnt(0)')
    for qt in range(4):
        for k in range(4):
            b = OACC + 4 * (8 * qt + 2 * k)
            for i in range(0, 8, 2):
                A(pk('fma', b + i, [('b', nmu(qt)), CSR + 8 * k + i, b + i]))
            for i in range(0, 8, 2):
                A(pk('mul', b + i, [('b', aq(qt)), b + i]))
            for i in range(4):
                A(f'v_cvt_pk_bf16_f32 {v(b+i)}, {v(b+2*i)}, {v(b+2*i+1)}')
            for i in range(4):
                A(f'v_accvgpr_write_b32 {a(QF+4*(4*qt+k)+i)}, {v(b+i)}')
    n = 0
    for pair, nq in ((0, 4), (1, MODE['nq'] if MODE['nt'] > 10 else 0)):
        for qt in range(nq):
            w = OACC + 16 * (n % 4); u = w + 8; n += 1
            for i in range(8):
                e, r = i >> 2, i & 3
                src = (HB + 4 * (4 * e + qt) + r) if pair == 0 else (HE + 4 * (4 * e + qt) + r)
                A(f'v_accvgpr_read_b32 {v(w+i)}, {a(src)}')
            ev = range(0, 8, 2)
            for i in ev:
                A(pk('fma', w + i, [('b', nmu(qt)), C1 + 8 * pair + i, w + i]))
            for i in ev:
                A(pk('fma', w + i, [('b', ah(qt)), w + i, BB + 8 * pair + i]))
            for i in ev:
                A(pk('mul', u + i, [w + i, w + i]))
            for i in ev:
                A(pk('fma', u + i, [u + i, ('bs', 67), ('b', KC)]))
            for i in ev:
                A(pk('mul', u + i, [u + i, w + i]))
            for i in range(8):
                A(f'v_exp_f32 {v(u+i)}, {v(u+i)}')
            for i in ev:
                A(pk('add', u + i, [u + i, '1.0']))
            for i in range(8):
                A(f'v_rcp_f32 {v(u+i)}, {v(u+i)}')
            for i in ev:
                A(pk('mul', w + i, [w + i, u + i]))
            for i in range(4):
                A(f'v_cvt_pk_bf16_f32 {v(u+i)}, {v(w+2*i)}, {v(w+2*i+1)}')
            so = 68 + 2 * pair + (qt >> 1)
            A(f'buffer_store_dwordx4 {v(u,4)}, {v(lo)}, {s(SRD_H,4)}, s{so} offen offset:{1024*(qt&1)}{stmod}')
            vm.add('hst')


def p1_epilogue(A, vm, stmod='', coop=False):
    L = LANE
    lo = PT; t0 = PT + 1; t1 = PT + 2; t2 = PT + 3; t3 = PT + 4
    if coop:
        nmu = lambda qt: STL + 4 * qt; aq = lambda qt: STL + 4 * qt + 1; ah = lambda qt: STL + 4 * qt + 2
        KC = T0 + 16
    else:
        nmu = lambda qt: T0 + qt; aq = lambda qt: T0 + 4 + qt; ah = lambda qt: T0 + 8 + qt
        KC = T0 + 12
    NMU, AQ, AH = T0, T0 + 4, T0 + 8
    A(f'v_lshlrev_b32 {v(lo)}, 4, {v(L)}')
    A(f's_lshl_b32 s29, {s(SW)}, 11')
    A(f's_add_u32 s29, s29, {CS_LDS}')
    A(f'v_add_u32 {v(t0)}, s29, {v(lo)}')
    for e in range(2):
        A(f'ds_write_b128 {v(t0)}, {a(CSQ+4*e,4)} offset:{1024*e}')
    if not coop:
        A(f'v_and_b32 {v(t1)}, 3, {v(L)}')
        for k in range(1, 4):
            A(f'v_cmp_eq_u32 s[{66+2*k}:{67+2*k}], {k}, {v(t1)}')
        A(f'v_bfe_u32 {v(t1)}, {v(L)}, 2, 2')
        A(f'v_lshrrev_b32 {v(t2)}, 4, {v(L)}')
        A(f'v_cmp_eq_u32 s[74:75], {v(t1)}, {v(t2)}')
        A('s_mov_b32 s76, 0x3b000000')
        A('s_mov_b32 s77, 0x3727c5ac')
        A('s_mov_b32 s78, 0x3e0293ee')
    A(f's_waitcnt vmcnt({vm.wait_for(["k0", "stl"])}) lgkmcnt(0)')
    A('s_barrier')
    for k in range(4):
        A(f's_xor_b32 s29, {s(SW)}, {k}')
        A('s_lshl_b32 s29, s29, 11')
        A(f's_add_u32 s29, s29, {CS_LDS}')
        A(f'v_add_u32 {v(t0)}, s29, {v(lo)}')
        for e in range(2):
            A(f'ds_read_b128 {v(CSR+4*(2*k+e),4)}, {v(t0)} offset:{1024*e}')
    for qt in range(0 if coop else 4):
        g = PT + 8
        for r in range(4):
            A(f'v_accvgpr_read_b32 {v(g+r)}, {a(GRAM+4*qt+r)}')
        A(f'v_accvgpr_read_b32 {v(t1)}, {a(SUM+4*qt)}')
        for k in range(1, 4):
            A(f'v_cndmask_b32 {v(g)}, {v(g)}, {v(g+k)}, s[{66+2*k}:{67+2*k}]')
        A(f'v_cndmask_b32 {v(g)}, 0, {v(g)}, s[74:75]')
        xlane(A, 'v_add_f32', g, g + 1)
        A(f'v_mul_f32 {v(t1)}, s76, {v(t1)}')
        A(f'v_mul_f32 {v(g)}, s76, {v(g)}')
        A(f'v_fma_f32 {v(g)}, -{v(t1)}, {v(t1)}, {v(g)}')
        A(f'v_max_f32 {v(g)}, 0, {v(g)}')
        A(f'v_add_f32 {v(t2)}, s77, {v(g)}')
        A(f'v_rsq_f32 {v(t2)}, {v(t2)}')
        A(f'v_sub_f32 {v(NMU+qt)}, 0, {v(t1)}')
        A(f'v_mul_f32 {v(g)}, {v(g)}, {v(t2)}')
        A(f'v_fma_f32 {v(g)}, {v(g)}, {v(t2)}, s77')
        A(f'v_rsq_f32 {v(g)}, {v(g)}')
        A(f'v_mul_f32 {v(AQ+qt)}, s78, {v(t2)}')
        A(f'v_mul_f32 {v(AH+qt)}, {v(g)}, {v(t2)}')
    A('s_waitcnt lgkmcnt(0)')
    for qt in range(4):
        for k in range(4):
            b = OACC + 4 * (8 * qt + 2 * k)
            for i in range(0, 8, 2):
                A(pk('fma', b + i, [('b', nmu(qt)), CSR + 8 * k + i, b + i]))
            for i in range(0, 8, 2):
                A(pk('mul', b + i, [('b', aq(qt)), b + i]))
            for i in range(4):
                A(f'v_cvt_pk_bf16_f32 {v(b+i)}, {v(b+2*i)}, {v(b+2*i+1)}')
            for i in range(4):
                A(f'v_accvgpr_write_b32 {a(QF+4*(4*qt+k)+i)}, {v(b+i)}')
    C1 = CSR; BB = CSR + 16
    A(f's_waitcnt vmcnt({vm.wait_for(["b1"])})')
    for i in range(16):
        A(f'v_accvgpr_read_b32 {v(C1+i)}, {a(CS1+i)}')
        src = B1R + (i >> 1)
        A(f'v_and_b32 {v(BB+i)}, 0xffff0000, {v(src)}' if i & 1 else f'v_lshlrev_b32 {v(BB+i)}, 16, {v(src)}')
    A('s_mov_b32 s66, 0xc0135761')
    A('s_mov_b32 s67, 0xbdd2d3e8')
    A(f'v_mov_b32 {v(KC)}, s66')
    A(f's_lshl_b32 s29, {s(SQB)}, 4')
    A(f's_lshl_b32 s30, {s(SW)}, 2')
    A('s_add_u32 s29, s29, s30')
    A('s_lshl_b32 s29, s29, 10')
    A(f's_lshl_b32 s30, {s(SFLIP)}, 6')
    A(f's_lshl_b32 s31, {s(SHEAD)}, 17')
    A('s_add_u32 s31, s31, s29')
    A('s_add_u32 s68, s31, s30')
    A('s_xor_b32 s69, s68, 2048')
    A(f's_lshr_b32 s31, {s(SHEAD)}, 1')
    A('s_add_u32 s31, s31, 32')
    A('s_lshl_b32 s31, s31, 17')
    A('s_add_u32 s31, s31, s29')
    A('s_add_u32 s70, s31, s30')
    n = 0
    for pair, nq in ((0, 4), (1, 2)):
        for qt in range(nq):
            w = OACC + 16 * (n % 4); u = w + 8; n += 1
            for i in range(8):
                e, r = i >> 2, i & 3
                src = (HB + 4 * (4 * e + qt) + r) if pair == 0 else (HE + 4 * (4 * e + qt) + r)
                A(f'v_accvgpr_read_b32 {v(w+i)}, {a(src)}')
            ev = range(0, 8, 2)
            for i in ev:
                A(pk('fma', w + i, [('b', nmu(qt)), C1 + 8 * pair + i, w + i]))
            for i in ev:
                A(pk('fma', w + i, [('b', ah(qt)), w + i, BB + 8 * pair + i]))
            for i in ev:
                A(pk('mul', u + i, [w + i, w + i]))
            for i in ev:
                A(pk('fma', u + i, [u + i, ('bs', 67), ('b', KC)]))
            for i in ev:
                A(pk('mul', u + i, [u + i, w + i]))
            for i in range(8):
                A(f'v_exp_f32 {v(u+i)}, {v(u+i)}')
            for i in ev:
                A(pk('add', u + i, [u + i, '1.0']))
            for i in range(8):
                A(f'v_rcp_f32 {v(u+i)}, {v(u+i)}')
            for i in ev:
                A(pk('mul', w + i, [w + i, u + i]))
            for i in range(4):
                A(f'v_cvt_pk_bf16_f32 {v(u+i)}, {v(w+2*i)}, {v(w+2*i+1)}')
            so = 70 if pair else (68 if qt < 2 else 69)
            A(f'buffer_store_dwordx4 {v(u,4)}, {v(lo)}, {s(SRD_H,4)}, s{so} offen offset:{1024*(qt&1)}{stmod}')
            vm.add('hst')
```

```python
from asmlib import Asm, v, a, s, pk
from gen_attn16 import SW, SHEAD, SQB, SM0, SRD_WS, LANE, VOV
from gen_p1 import SRD_H, VM

MFMA = 'v_mfma_f32_16x16x32_bf16'
WS_X = 24 << 20
X_BYTES = 12 << 20
NS = 22
RING = 4
BBASE = 65536
AH = 3

ACC, AF, BF = 0, 128, 192
VB, VA, RA, RB, XR, T = 127, 92, 64, 72, 104, 80
SRD_W, SRD_XC, SRD_B, SRD_DBG, SRD_XO, SRD_B2 = 40, 44, 8, 16, 4, 56
SKQ, SAO, SBO, SHAVE, SKS, SFO, SLIM, SALL = 26, 60, 61, 62, 63, 64, 25, 23
ZERO = T + 10


WS_F = 40 << 20
SRD_F = 72
SFA, SFB, SFC = 76, 77, 71
SPUB = 70
DYN = [0]
CFG = dict(tab=0x2013, cut=(12, 22), first=0x0f0f0f0f)
STODO, SSNAP = 77, 65
SNAP_LDS = BBASE + 4 * 16384


def role(d):
    return f's_and_b32 {d}, s2, 3\ns_lshl_b32 {d}, {d}, 2\ns_lshr_b32 {d}, {CFG["tab"]}, {d}\ns_and_b32 {d}, {d}, 3'


def flag_setup(A, ws_lo, ws_hi):
    A(f's_add_u32 s{SRD_F}, s{ws_lo}, {WS_F}\ns_addc_u32 s{SRD_F+1}, s{ws_hi}, 0')
    A(f's_movk_i32 s{SRD_F+2}, 16384\ns_mov_b32 s{SRD_F+3}, 0x20000')
    A(f's_lshl_b32 s30, {s(SQB)}, 11')
    A(f's_lshl_b32 s31, {s(SHEAD)}, 2')
    A('s_add_u32 s30, s30, s31')
    A(f's_lshl_b32 s31, {s(SW)}, 7')
    A('s_add_u32 s30, s30, s31')
    A(f's_add_u32 s{SFC}, s30, 1536')
    for d, lo, hi in ((SFA,) + CFG['cut'],):
        A(f's_cmp_ge_u32 {s(SHEAD)}, {lo}\ns_cselect_b32 s31, 512, 0\ns_add_u32 s{d}, s30, s31')
        A(f's_cmp_ge_u32 {s(SHEAD)}, {hi}\ns_cselect_b32 s31, 512, 0\ns_add_u32 s{d}, s{d}, s31')
    A(f's_lshl_b32 {s(SFO)}, {s(SQB)}, 2')
    A(role('s31'))
    A(f's_add_u32 {s(SFO)}, {s(SFO)}, s31')
    A(f's_lshl_b32 {s(SFO)}, {s(SFO)}, 2')
    A('s_bfe_u32 s31, s2, 0x10002')
    A('s_lshl_b32 s31, s31, 1')
    A(f's_add_u32 {s(SFO)}, {s(SFO)}, s31')
    A(f's_and_b32 s31, {s(SW)}, 1')
    A(f's_add_u32 {s(SFO)}, {s(SFO)}, s31')
    A(f's_lshl_b32 {s(SFO)}, {s(SFO)}, 7')


def flag_store(val, d, z):
    out = ['s_mov_b64 exec, 1', f'v_mov_b32 v{d}, {val}'] + \
          [f'buffer_store_dword v{d}, v{z}, {s(SRD_F,4)}, s{o} offen sc1' for o in (SFA, SFC)] + ['s_mov_b64 exec, -1']
    return '\n'.join(out)


def publish(label):
    return '\n'.join([f's_cmp_lg_u32 s{SPUB}, 0', f's_cbranch_scc1 {label}', flag_store(1, T + 7, ZERO), f's_mov_b32 s{SPUB}, 1', f'{label}:'])


def signal_ready(label):
    out = [f's_cmp_lg_u32 {s(SW)}, 0', f's_cbranch_scc1 {label}', f's_lshl_b32 s31, {s(SQB)}, 5', f's_add_u32 s31, s31, {s(SHEAD)}',
           's_mov_b64 exec, 1', 'v_mov_b32 v124, 3', f'buffer_store_byte v124, v125, {s(SRD_DBG,4)}, s31 offen sc1',
           's_mov_b64 exec, -1', f'{label}:']
    return '\n'.join(out)


def ready_load():
    return f's_lshl_b32 s31, {s(SQB)}, 5\nbuffer_load_dword v124, v125, {s(SRD_DBG,4)}, s31 offen sc1'


def first_look(lane4):
    return f's_andn2_b32 s31, {s(SFO)}, 0x80\nbuffer_load_dword v103, {v(lane4)}, {s(SRD_F,4)}, s31 offen sc1'


def snap_write(A):
    A('s_waitcnt vmcnt(8)')
    A('v_cmp_eq_u32 vcc, 1, v103')
    A(f's_and_b32 s30, {s(SW)}, 1')
    A(f's_cselect_b32 {s(SHAVE)}, vcc_hi, vcc_lo')
    if DYN[0]:
        A('s_and_b32 s30, vcc_lo, vcc_hi')
        A(f'v_mov_b32 {v(T+7)}, {SNAP_LDS}')
        A(f'v_mov_b32 {v(T+8)}, s30')
        A(f's_cmp_lg_u32 {s(SW)}, 0')
        A('s_cbranch_scc1 L_snap')
        A(f'ds_write_b32 {v(T+7)}, {v(T+8)}')
        A('s_waitcnt lgkmcnt(0)')
        A.label('L_snap')


COLD = []


def poll(tag, need, pub=False):
    COLD.append('\n'.join([f'L_p{tag}:'] + (['s_waitcnt vmcnt(0)', publish(f'L_s{tag}')] if pub else []) + [f'buffer_load_dword {v(T+8)}, {v(T+9)}, {s(SRD_F,4)}, {s(SFO)} offen sc1', 's_waitcnt vmcnt(0)',
                           f'v_cmp_eq_u32 vcc, 1, {v(T+8)}', f's_sub_u32 {s(SLIM)}, {s(SLIM)}, 1', f's_mov_b32 {s(SHAVE)}, vcc_lo',
                           f's_cbranch_scc1 L_r{tag}', f's_andn2_b32 s31, {need}, {s(SHAVE)}', f's_cbranch_scc1 L_p{tag}', f's_branch L_q{tag}',
                           f'L_r{tag}:', f's_mov_b32 {s(SLIM)}, 0', f's_branch L_q{tag}']))
    return '\n'.join([f's_andn2_b32 s31, {need}, {s(SHAVE)}', f's_cbranch_scc1 L_p{tag}', f'L_q{tag}:'])


def tail_loads(A):
    if DYN[0]:
        A(f'ds_read_b32 {v(T+8)}, {v(T+7)}')
    A('s_load_dwordx2 s[32:33], s[0:1], 0')
    A('s_load_dwordx4 s[36:39], s[0:1], 72')


SXOFF, SCOFF, SAB2 = 66, 67, 58


def presetup():
    B = Asm()
    B(f's_and_b32 {s(SKQ)}, s2, 3')
    B(role('s57'))
    c1, c2 = CFG['cut']
    B(f's_mov_b32 {s(STODO)}, {(1 << c1) - 1}')
    B(f's_cmp_eq_u32 s57, 1\ns_cselect_b32 {s(STODO)}, {(1 << c2) - (1 << c1)}, {s(STODO)}')
    B(f's_cmp_eq_u32 s57, 2\ns_cselect_b32 {s(STODO)}, {(1 << 32) - (1 << c2)}, {s(STODO)}')
    B(f's_cmp_eq_u32 s57, 3\ns_cselect_b32 {s(STODO)}, 0x7ff, {s(STODO)}\ns_cselect_b32 {s(SALL)}, 0, {s(STODO)}\ns_cselect_b32 s56, 0, {CFG["first"]}')
    B(f's_andn2_b32 s59, s{SFC}, 0x7f')
    B(f's_lshl_b32 s{SAB2}, {s(SW)}, 14')
    B('s_bfe_u32 s28, s2, 0x20003')
    B(f's_lshl_b32 {s(SCOFF)}, s28, 8')
    B(f's_add_u32 s{SAB2}, s{SAB2}, {s(SCOFF)}')
    B(f's_lshr_b32 s30, {s(SW)}, 1')
    B('s_lshl_b32 s31, s30, 7')
    B(f's_add_u32 {s(SCOFF)}, {s(SCOFF)}, s31')
    B(f's_lshl_b32 {s(SKS)}, s30, 17')
    B(f's_lshl_b32 s29, {s(SQB)}, 4')
    B('s_bfe_u32 s30, s2, 0x10002')
    B('s_lshl_b32 s30, s30, 3')
    B('s_add_u32 s29, s29, s30')
    B(f's_and_b32 s68, {s(SW)}, 1')
    B('s_lshl_b32 s68, s68, 2')
    B('s_add_u32 s29, s29, s68')
    B('s_lshl_b32 s30, s29, 10')
    B(f's_add_u32 {s(SKS)}, {s(SKS)}, s30')
    B(f's_add_u32 s29, s29, {s(SKQ)}')
    B(f's_lshl_b32 {s(SXOFF)}, s29, 14')
    B(f's_add_u32 {s(SXOFF)}, {s(SXOFF)}, {s(SCOFF)}')
    B(f's_mov_b32 s{SPUB}, 0')
    B(f's_mov_b32 {s(SLIM)}, 0x40000')
    B(f'v_lshrrev_b32 {v(T+2)}, 4, {v(LANE)}')
    B(f'v_mul_u32_u24 {v(T+2)}, 0x300, {v(T+2)}')
    for i in range(2):
        B(f'v_add_u32 {v(VA+i)}, {v(VOV+i)}, {v(T+2)}')
    B(f'v_add_u32 {v(VA+1)}, 3072, {v(VA+1)}')
    for i in range(2):
        B(f'v_add_u32 {v(VA+2+i)}, 6144, {v(VA+i)}')
    items = []
    for l in B.lines:
        if l.startswith('s_cselect'):
            items[-1] += '\n' + l
        else:
            items.append(l)
    return [(5 + 2 * i, x) for i, x in enumerate(items)]


def tail(A, o):
    st_ = o.get('stamp')
    ld = o.get('ldmod', ' sc1')
    vm = VM()
    vm.add('O')
    L = LANE
    A('v_and_b32 v124, 0x02020202, v124')
    if DYN[0]:
        A('s_waitcnt lgkmcnt(0)')
        A(f'v_readfirstlane_b32 {s(SSNAP)}, {v(T+8)}')
    A(f'v_lshlrev_b32 {v(T+9)}, 2, {v(L)}')
    A(f'v_mov_b32 {v(ZERO)}, 0')
    A(f's_mov_b32 s27, s{SAB2}')
    A('s_mov_b32 s69, s59')
    A('s_mov_b32 s65, s56')
    A('s_cmp_eq_u32 s57, 3')
    for i in range(3):
        A(f's_cselect_b32 {s(SRD_B+i)}, {s(SRD_H+i)}, {s(SRD_WS+i)}')

    def a_list(st):
        slot = st % RING
        if st & 1:
            pre = [f's_add_u32 {s(SAO)}, {s(SAO)}, 0x10000\ns_add_u32 m0, {s(SM0)}, {slot*16384}']
        else:
            pre = [f's_and_b32 s30, {s(STODO)}, {s(SSNAP)}\ns_cselect_b32 s30, s30, {s(STODO)}\ns_ff1_i32_b32 s29, s30',
                   f's_bitset0_b32 {s(STODO)}, s29\ns_lshl_b32 s30, s29, 17\ns_add_u32 {s(SAO)}, s30, s27',
                   f's_lshl_b32 s30, s29, 19\ns_add_u32 {s(SBO)}, s30, {s(SKS)}\ns_add_u32 m0, {s(SM0)}, {slot*16384}']
        return [(pre if i == 0 else None, f'buffer_load_dwordx4 {v(VA+i)}, {s(SRD_W,4)}, {s(SAO)} offen offset:{1024*i} lds') for i in range(4)]

    def b_list(st):
        slot = st % RING
        if st & 1:
            pre = [f's_add_u32 {s(SBO)}, {s(SBO)}, 0x40000\ns_add_u32 m0, {s(SM0)}, {BBASE + slot*16384}']
        else:
            pre = [f's_lshl_b32 s28, 1, s29\ns_and_b32 s28, s28, {s(SALL)}', poll(f'b{st}', 's28', st < AH), f's_add_u32 m0, {s(SM0)}, {BBASE + slot*16384}']
        return [(pre if i == 0 else None, f'buffer_load_dwordx4 {v(VB)}, {s(SRD_B,4)}, {s(SBO)} offen offset:{1024*i}{ld} lds') for i in range(4)]

    def run(lst, tag):
        for pre, x in lst:
            if pre:
                A(('\n'.join(pre) if isinstance(pre, list) else pre) + '\ns_nop 0')
            A(x); vm.add(tag)

    def read_list(st):
        slot = st % RING; se = st & 1; win = 0; off0 = slot * 16384
        out = []
        nk = 2
        for kk in range(nk):
            for qt in range(4):
                out.append(f'ds_read_b128 {v(BF+32*se+4*(4*kk+qt),4)}, {v(RB+4*win+qt)} offset:{off0 + kk*8192}')
        for nt in range(4):
            for kk in range(nk):
                for jh in range(2):
                    off = off0 + (32 * kk + 16 * jh) * 256
                    out.append(f'ds_read_b64_tr_b16 {v(AF+32*se+4*(4*kk+nt)+2*jh,2)}, {v(RA+4*win+nt)} offset:{off}')
        return out

    A('v_cmp_ne_u32 vcc, 0x02020202, v124')
    A('s_nop 0')
    A('s_cbranch_vccnz L_rdy')
    A.label('L_rdy_ok')
    COLD.append('\n'.join(['L_rdy:', f's_mov_b32 {s(SHAVE)}, 0', 's_waitcnt vmcnt(0)', publish('L_rdy_s'), ready_load(), 's_waitcnt vmcnt(0)',
                           'v_and_b32 v124, 0x02020202, v124', 'v_cmp_ne_u32 vcc, 0x02020202, v124', f's_sub_u32 {s(SLIM)}, {s(SLIM)}, 1', 's_cbranch_scc1 L_rdy_t',
                           's_cbranch_vccnz L_rdy', 's_branch L_rdy_ok',
                           'L_rdy_t:', f's_mov_b32 {s(SLIM)}, 0', 's_branch L_rdy_ok']))
    if st_:
        A('s_memrealtime s[52:53]')
    LOOK = f'buffer_load_dword {v(T+6)}, {v(T+9)}, {s(SRD_F,4)}, s69 offen sc1'
    for st in range(AH):
        run(a_list(st), ('A', st))
        run(b_list(st), ('B', st))
    A(f'v_lshrrev_b32 {v(T+2)}, 2, {v(L)}')
    A(f'v_and_b32 {v(T+3)}, 7, {v(T+2)}')
    A(f'v_and_b32 {v(T+4)}, 3, {v(L)}')
    A(f'v_lshlrev_b32 {v(T+4)}, 3, {v(T+4)}')
    A(f'v_lshl_add_u32 {v(T+4)}, {v(T+2)}, 8, {v(T+4)}')
    A(f's_and_b32 s30, {s(SW)}, 2')
    A('s_lshl_b32 s30, s30, 1')
    for k in range(4):
        A(f's_add_u32 s31, s30, {k}')
        A(f'v_xor_b32 {v(T)}, s31, {v(T+3)}')
        A(f'v_lshl_add_u32 {v(RA+k)}, {v(T)}, 5, {v(T+4)}')
    for qt in range(4):
        A(f's_xor_b32 s31, {s(SKQ)}, {qt}')
        A('s_add_u32 s31, s31, s68')
        A('s_lshl_b32 s31, s31, 10')
        A(f's_add_u32 s31, s31, {BBASE}')
        A(f'v_add_u32 {v(RB+qt)}, s31, {v(VB)}')
    A(f'v_and_b32 {v(T+0)}, 15, {v(L)}')
    A(f'v_lshrrev_b32 {v(T+1)}, 4, {v(L)}')
    A(f'v_lshlrev_b32 {v(T+1)}, 3, {v(T+1)}')
    A(f'v_lshl_add_u32 {v(T+5)}, {v(T+0)}, 10, {v(T+1)}')
    A('s_waitcnt lgkmcnt(0)')
    A(f's_mov_b32 {s(SRD_XO)}, s32\ns_mov_b32 {s(SRD_XO+1)}, s33\ns_mov_b32 {s(SRD_XO+2)}, 0x200000')
    A(f's_mov_b32 {s(SRD_B2)}, s36\ns_mov_b32 {s(SRD_B2+1)}, s37\ns_mov_b32 {s(SRD_B2+2)}, 1024\ns_mov_b32 {s(SRD_B2+3)}, 0x20000')
    xl = []
    for nt in range(4):
        xl.append(f'buffer_load_dwordx2 {v(XR+2*nt,2)}, {v(T+5)}, {s(SRD_XO,4)}, s66 offen offset:{32*nt}')
        xl.append(f'buffer_load_dwordx2 {v(XR+8+2*nt,2)}, {v(T+1)}, {s(SRD_B2,4)}, s67 offen offset:{32*nt}')
    for i in range(64):
        A(f'v_mov_b32 {v(ACC+i)}, 0')
    A(f's_bcnt1_i32_b32 s34, {s(SALL)}')
    A('s_cselect_b32 s34, s34, 11')
    A('s_lshr_b32 s35, s34, 1')
    A(f's_waitcnt vmcnt({vm.wait_for([("A", 0), ("B", 0)])})')
    A(publish('L_pub'))
    A('s_barrier')
    if st_:
        A('s_memrealtime s[54:55]')
    rtag = lambda i: 0 if i < 12 else (i - 8) // 4
    for x in read_list(0):
        A(x)

    def stage(st, more, issue, extra=()):
        lds = [('p', rtag(i)) for i in range(24)]
        mf = []
        for nt in range(4):
            for qt in range(4):
                for kk in range(2):
                    c = v(ACC + 4 * (4 * nt + qt), 4)
                    mf.append(f'{MFMA} {c}, {v(AF+32*(st&1)+4*(4*kk+nt),4)}, {v(BF+32*(st&1)+4*(4*kk+qt),4)}, {c}')
        fill = [[] for _ in mf]
        dpos = [4, 8, 12, 16, 20, 24, 28, 31]
        if more is not None:
            fill[0].append((f's_waitcnt vmcnt({more})', None))
            fill[0].append(('s_barrier', None))
            rpos = [g for g in range(1, 32) if g not in dpos]
            for i, x in enumerate(read_list(st + 1)):
                fill[rpos[min(i, len(rpos) - 1)]].append((x, 'L'))
        if issue:
            for i, (pre, x) in enumerate(a_list(st + AH) + b_list(st + AH)):
                for k, y in enumerate(pre or []):
                    fill[dpos[i] - len(pre) + k].append((y, None))
                fill[dpos[i]].insert(0, (x, None))
        for g, x in extra:
            fill[g].append((x, None))
        for g, (m, fl) in enumerate(zip(mf, fill)):
            if g % 8 == 0:
                idx = max(i for i, tg in enumerate(lds) if tg == ('p', g // 8))
                A(f's_waitcnt lgkmcnt({min(len(lds) - 1 - idx, 15)})')
            A(m)
            for x, tag in fl:
                A(x)
                if tag:
                    lds.append('n')
    A.label('L_t_loop')
    for st in range(4):
        stage(st + 4, 8, True)
    A('s_sub_u32 s35, s35, 1')
    A('s_cmp_lg_u32 s35, 0')
    A('s_cbranch_scc1 L_t_loop')
    A(LOOK)
    for x in xl:
        A(x)
    A('s_bitcmp1_b32 s34, 0')
    A('s_cbranch_scc0 L_t_done')
    stage(20, 8 + 1 + 8, False)
    stage(21, None, False)
    A.label('L_t_done')
    A('s_waitcnt vmcnt(8)')
    if st_:
        A('s_memrealtime s[58:59]')
    A(f'v_cmp_eq_u32 vcc, 1, {v(T+6)}')
    A(f's_mov_b32 {s(SFO)}, s69')
    A(f's_and_b32 s29, {s(SHEAD)}, 0x13')
    A('s_lshl_b32 s30, 0x1111, s29')
    A(f's_mov_b32 {s(SHAVE)}, vcc_lo')
    A(poll('x', 's30'))
    for j in (1, 2, 3):
        A(f's_xor_b32 s31, s2, {j}')
        A('s_mul_i32 s31, s31, 49152')
        A(f's_add_u32 s31, s31, {s(SM0)}')
        A(f's_add_u32 s31, s31, {(j-1)*16384}')
        for nt in range(4):
            for r in range(4):
                A(f'v_min_u32 {v(ACC+4*(4*nt+j)+r)}, -2, {v(ACC+4*(4*nt+j)+r)}')
            A(f'buffer_store_dwordx4 {v(ACC+4*(4*nt+j),4)}, {v(VB)}, {s(SRD_XC,4)}, s31 offen offset:{1024*nt} sc1')
    A('s_mul_i32 s49, s2, 49152')
    A(f's_add_u32 s49, s49, {s(SM0)}')
    A('s_add_u32 s50, s49, 16384')
    A('s_add_u32 s51, s49, 32768')
    A(f's_mov_b32 {s(SRD_XO)}, s38\ns_mov_b32 {s(SRD_XO+1)}, s39')
    A('s_mov_b32 s67, 0xbfb8aa3b')
    for j in (1, 2, 3):
        A(f's_cmp_eq_u32 {s(SKQ)}, {[i for i in range(4) if (CFG["tab"] >> (4 * i)) & 3 == 3][0] ^ j}')
        A(f's_cselect_b64 s[{30+2*j}:{31+2*j}], -1, 0')
    R = AF
    XU, BU = BF + 32, BF + 48
    A('s_waitcnt vmcnt(12)')
    for j in range(16):
        A(f'v_and_b32 {v(XU+j)}, 0xffff0000, {v(XR+(j>>1))}' if j & 1 else f'v_lshlrev_b32 {v(XU+j)}, 16, {v(XR+(j>>1))}')
        A(f'v_and_b32 {v(BU+j)}, 0xffff0000, {v(XR+8+(j>>1))}' if j & 1 else f'v_lshlrev_b32 {v(BU+j)}, 16, {v(XR+8+(j>>1))}')
    A.label('L_x_poll')
    for j in (1, 2, 3):
        for nt in range(4):
            A(f'buffer_load_dwordx4 {v(R+16*(j-1)+4*nt,4)}, {v(VB)}, {s(SRD_XC,4)}, s{48+j} offen offset:{1024*nt} sc1')
    for j in range(3):
        A(f's_waitcnt vmcnt({8-4*j})')
        b = R + 16 * j
        A(f'v_max3_u32 {v(T+6)}, {v(b)}, {v(b+1)}, {v(b+2) if j == 0 else v(T+6)}')
        rest = list(range(3 if j == 0 else 2, 16))
        while rest:
            x = rest.pop(0)
            y = rest.pop(0) if rest else x
            A(f'v_max3_u32 {v(T+6)}, {v(b+x)}, {v(b+y)}, {v(T+6)}')
    A(f'v_cmp_eq_u32 vcc, -1, {v(T+6)}')
    A(f's_sub_u32 {s(SLIM)}, {s(SLIM)}, 16')
    A('s_cbranch_scc1 L_x_go')
    A('s_cbranch_vccnz L_x_poll')
    A.label('L_x_go')
    if st_:
        A('s_memrealtime s[78:79]')
    G = BF
    own = lambda i: ACC + 16 * (i >> 2) + (i & 3)
    for i in range(16):
        A(f'v_cndmask_b32 {v(G+i)}, {v(own(i))}, {v(R+i)}, s[32:33]')
    for i in range(16):
        A(f'v_cndmask_b32 {v(G+i)}, {v(G+i)}, {v(R+16+i)}, s[34:35]')
    for i in range(16):
        A(f'v_cndmask_b32 {v(G+i)}, {v(G+i)}, {v(R+32+i)}, s[36:37]')
    for i in range(0, 16, 2):
        A(pk('add', R + i, [R + i, own(i)]))
        A(pk('add', R + 16 + i, [R + 16 + i, R + 32 + i]))
    for i in range(0, 16, 2):
        A(pk('add', R + i, [R + i, R + 16 + i]))
        A(pk('add', BU + i, [BU + i, G + i]))
    for i in range(0, 16, 2):
        A(pk('add', R + i, [R + i, G + i]) + ' neg_lo:[0,1] neg_hi:[0,1]')
        A(pk('mul', G + 16 + i, [BU + i, ('bs', 67)]))
    for i in range(16):
        A(f'v_exp_f32 {v(G+16+i)}, {v(G+16+i)}')
    for i in range(0, 16, 2):
        A(pk('add', G + 16 + i, [G + 16 + i, '1.0']))
        A(pk('mul', R + i, [R + i, BU + i]))
    for i in range(16):
        A(f'v_rcp_f32 {v(G+16+i)}, {v(G+16+i)}')
    for nt in range(4):
        for i in (4 * nt, 4 * nt + 2):
            A(pk('fma', R + i, [R + i, G + 16 + i, XU + i]))
        for k in range(2):
            A(f'v_cvt_pk_bf16_f32 {v(G+2*nt+k)}, {v(R+4*nt+2*k)}, {v(R+4*nt+2*k+1)}')
        A(f'buffer_store_dwordx2 {v(G+2*nt,2)}, {v(T+5)}, {s(SRD_XO,4)}, s66 offen offset:{32*nt}' + o.get('outmod', ''))
```

```python
import sys
from asmlib import Asm, v, a, s, check, fix, stamp_begin, stamp_end
from gen_attn16 import *
from gen_p1 import *
import gen_k3b as gen_k3
import gen_tail
NAME = 'recurrent_scan__mha_block_cached__mixer_channel_mlp__prompt_kernel'

VLIST = sorted([39 + 4 * i for i in range(20)] + [41 + 8 * i for i in range(7)] + [45 + 8 * i for i in range(5)])
KLIST = [77, 85, 93, 101, 105, 109, 113, 117, 119, 123, 127, 131, 135, 139, 143, 147]
PLAN = dict(vpos=lambda n: VLIST[n], kpos=lambda n: KLIST[n], km=4, kd=lambda i: [5, 9, 23, 27][i], vm=28, vd=lambda i: [31, 35, 37, 33][i])
PLANM = dict(sum='mfma', vpos=lambda n: 37 + 2 * n, kpos=lambda n: 101 + 2 * n, km=5, kd=lambda i: 7 + 4 * i, vm=22, vd=lambda i: 23 + 4 * i)
def planx(mx, dstart=6, dgap=4, dend=40):
    H = 32 + 32 + mx
    NG = 2 * H
    load = [0] * NG
    for g0 in (12, H + 12):
        for n, (kt, ql) in enumerate([(kt, ql) for kt in range(4) for ql in range(2)]):
            for r in range(4):
                ge = g0 + 8 * n + 2 * r
                load[ge % NG] += 2
                if not (mx == 4 or ql == 0):
                    load[(ge + 1) % NG] += 1
                if r & 1:
                    load[(ge + 3) % NG] += 1
    mem = [0] * NG

    def place(wins, gap=1):
        out = []; last = -99
        for i, (lo, hi) in enumerate(wins):
            lo = max(lo, last + gap)
            hi = max(lo, min([hi] + [h - gap * (k + 1) for k, (_, h) in enumerate(wins[i + 1:])]))
            free = [g for g in range(lo, hi + 1) if load[g % NG] + mem[g % NG] < 2 and not mem[g % NG]]
            g = free[0] if free else min(range(lo, hi + 1), key=lambda g: (mem[g % NG], load[g % NG], g))
            mem[g % NG] += 1; out.append(g); last = g
        return out
    d = place([(dstart, dend)] * 8, dgap)
    vp = place([(36 + 4 * (n >> 2), H + 32 + 4 * (n >> 2) - 8) for n in range(32)])
    kp = place([(H + 8 + 8 * (n >> 2), NG + 8 * (n >> 2) - 8) for n in range(16)])
    over = sum(max(0, load[g] + mem[g] - 2) for g in range(NG))
    return dict(sum='mfma', mx=mx, vpos=lambda n: vp[n], kpos=lambda n: kp[n], km=d[0] - 1, kd=lambda i: d[i], vm=d[4] - 1, vd=lambda i: d[4 + i], dbg=(d, vp, kp, over))


HEADER = open('recurrent_scan__mha_block_cached__mixer_channel_mlp__prompt.s.ref').read().split('; Override')[0]


def srd(A, d, lo, hi, off, nbytes):
    if off is None:
        A(f's_mov_b32 s{d}, s{lo}\ns_mov_b32 s{d+1}, s{hi}')
    else:
        A(f's_add_u32 s{d}, s{lo}, {off}\ns_addc_u32 s{d+1}, s{hi}, 0')
    A(f's_mov_b32 s{d+2}, {nbytes}\ns_mov_b32 s{d+3}, 0x20000')


def k2(A, o):
    cold = []
    gen_tail.DYN[0] = 0
    gen_tail.CFG.update(o.get('cfg', dict(tab=0x2013, cut=(11, 22), first=0x0f0f0f0f)))
    fused = o.get('fused')
    name = NAME if fused else 'attn_kernel'
    nxt = 'L_attn_finish' if fused else 'out_kernel'
    st = o.get('stamp')
    A(f'.globl {name}\n.p2align 8\n.type {name},@function')
    A.label(name)
    A('s_cmp_ge_u32 s2, 256')
    A('s_cbranch_scc1 L_k2_end')
    if st:
        stamp_begin(A, 92)
    A('s_load_dwordx8 s[32:39], s[0:1], 0')
    A('s_load_dwordx4 s[68:71], s[0:1], 48')
    A('s_load_dwordx2 s[72:73], s[0:1], 96')
    coop = o.get('coop')
    if coop:
        A('s_load_dwordx2 s[66:67], s[0:1], 88')
    A(f'v_lshrrev_b32 {v(T0)}, 6, v0')
    A('s_and_b32 s26, s2, 7')
    A('s_lshl_b32 s26, s26, 2')
    A('s_bfe_u32 s27, s2, 0x20003')
    A(f'v_readfirstlane_b32 {s(SW)}, {v(T0)}')
    A(f's_add_u32 {s(SHEAD)}, s26, s27')
    A(f's_lshr_b32 {s(SQB)}, s2, 5')
    split = o.get('split')
    if split:
        A(f's_mov_b32 {s(SFLIP)}, 0')
        A(f's_lshr_b32 {s(SXP)}, s26, 1')
        A(f's_add_u32 {s(SXP)}, {s(SXP)}, s27')
        A('s_bitcmp1_b32 s2, 0')
        A(f's_cselect_b32 {s(SXP)}, 11, {s(SXP)}')
        A(f's_cmp_lt_u32 {s(SXP)}, 11')
        A(f's_cselect_b32 {s(SXP)}, {s(SXP)}, 0x40000')
        A(f's_add_u32 {s(SXP)}, {s(SXP)}, 32')
    else:
        A(f's_and_b32 {s(SFLIP)}, {s(SHEAD)}, 1')
        A(f's_lshl_b32 {s(SFLIP)}, {s(SFLIP)}, 5')
        A(f's_lshr_b32 {s(SXP)}, {s(SHEAD)}, 1')
        A(f's_add_u32 {s(SXP)}, {s(SXP)}, 32')
    A(f's_lshl_b32 {s(SM0)}, {s(SW)}, 12')
    A(f's_lshl_b32 {s(SM1)}, {s(SW)}, 11')
    A(f's_lshl_b32 {s(SXM)}, {s(SW)}, 13')
    A(f's_lshl_b32 {s(SXO)}, {s(SQB)}, 18')
    A(f's_lshl_b32 s26, {s(SW)}, 16')
    A(f's_add_u32 {s(SXO)}, {s(SXO)}, s26')
    A(f's_lshl_b32 s26, {s(SFLIP)}, 10')
    A(f's_add_u32 {s(SXO)}, {s(SXO)}, s26')
    rot = o.get('rot', 0)
    if rot == 0:
        A(f's_mov_b32 {s(SROT)}, 0')
    elif rot == 1:
        A(f's_lshl_b32 {s(SROT)}, s27, 1')
    elif rot == 2:
        A(f's_lshl_b32 {s(SROT)}, s27, 1')
        A(f's_and_b32 s26, {s(SQB)}, 1')
        A(f's_add_u32 {s(SROT)}, {s(SROT)}, s26')
    elif rot == 4:
        A(f's_xor_b32 {s(SROT)}, s27, {s(SQB)}')
        A(f's_and_b32 {s(SROT)}, {s(SROT)}, 1')
        A(f's_lshl_b32 {s(SROT)}, {s(SROT)}, 2')
    elif rot == 5:
        A(f's_xor_b32 {s(SROT)}, s27, {s(SQB)}')
        A(f's_and_b32 {s(SROT)}, {s(SROT)}, 3')
        A(f's_lshl_b32 {s(SROT)}, {s(SROT)}, 1')
    elif rot == 3:
        A(f's_lshl_b32 {s(SROT)}, s27, 1')
        A(f's_and_b32 s26, {s(SQB)}, 4')
        A(f's_add_u32 {s(SROT)}, {s(SROT)}, s26')
    A(f's_lshl_b32 {s(SWQO)}, {s(SW)}, 17')
    A(f's_lshl_b32 s26, {s(SHEAD)}, 8')
    A(f's_add_u32 {s(SWQO)}, {s(SWQO)}, s26')
    A(f's_mul_i32 {s(SW1O)}, {s(SW)}, {16*2752}')
    A(f's_mov_b32 {s(SOFF)}, {s(SM0)}')
    A(f'v_and_b32 {v(LANE)}, 63, v0')
    if not o.get('nocpf'):
        A('s_getpc_b64 s[56:57]')
        A.label('L_code0')
        A('s_mov_b32 s58, L_attn_exact-L_code0')
        A('s_mov_b32 s59, 0x20000')
        A('s_lshr_b32 s26, s2, 3')
        A('s_lshl_b32 s26, s26, 2')
        A(f's_add_u32 s26, s26, {s(SW)}')
        A('s_mul_i32 s26, s26, 768')
        A(f'v_mul_u32_u24 {v(PT+8)}, 12, {v(LANE)}')
        A(f'buffer_load_dwordx3 {v(PT+10,3)}, {v(PT+8)}, s[56:59], s26 offen')
    p1_lane_setup(A, o.get('exp'))
    A('s_waitcnt lgkmcnt(0)')
    srd(A, SRD_X, 32, 33, None, 0 if o.get('kill') == 'x' else 2 << 20)
    srd(A, SRD_WQ, 38, 39, None, 0 if o.get('kill') in ('wq', 'w') else 4 << 20)
    srd(A, SRD_W1, 68, 69, None, 0 if o.get('kill') in ('w1', 'w') else 512 * 2752)
    vm = VM()
    vm.add('code')

    def run(lst, tag):
        for pre, ins in lst:
            A(pre + ('s_nop 0\n' if pre else '') + ins); vm.add(tag)
    if coop:
        stat_loads(A, vm)
    run(x_dma(0), ('x', 0)); run(w_dma(0), ('W', 0))
    mode = o.get('pmode', 0)
    if o.get('tlb'):
        A(f'v_lshlrev_b32 {v(PT+9)}, {o["tlb"]}, {v(LANE)}')
        A(f's_lshl_b32 s26, {s(SHEAD)}, 8')
        A(f's_lshl_b32 s27, {s(SW)}, {o["tlb"] + 6}')
        A('s_add_u32 s26, s26, s27')
        A(f'buffer_load_dword {v(PT+12)}, {v(PT+9)}, {s(SRD_WQ,4)}, s26 offen'); vm.add('pf')
        A(f'buffer_load_dword {v(PT+12)}, {v(PT+9)}, {s(SRD_W1,4)}, s27 offen'); vm.add('pf')
    if mode & 1:
        run(x_dma(1), ('x', 1)); run(w_dma(1), ('W', 1))
    if mode & 2:
        P0, P1, P2, PD = PT + 8, PT + 9, PT + 10, PT + 11
        A(f'v_lshlrev_b32 {v(P0)}, 6, {v(LANE)}')
        A(f'v_lshrrev_b32 {v(P1)}, 2, {v(LANE)}')
        A(f'v_and_b32 {v(P2)}, 3, {v(LANE)}')
        A(f'v_lshlrev_b32 {v(P2)}, 6, {v(P2)}')
        A(f'v_lshl_add_u32 {v(P1)}, {v(P1)}, 13, {v(P2)}')
        A('s_bfe_u32 s26, s2, 0x20003')
        A('s_lshl_b32 s26, s26, 16')
        A(f's_lshl_b32 s27, {s(SQB)}, 18')
        A('s_add_u32 s26, s26, s27')
        A(f's_lshl_b32 s27, {s(SW)}, 14')
        A('s_add_u32 s26, s26, s27')
        for i in range(4):
            A(f'buffer_load_dword {v(PD)}, {v(P0)}, {s(SRD_X,4)}, s26 offen'); vm.add('pf')
            A('s_add_u32 s26, s26, 4096')
        A(f's_lshl_b32 s27, {s(SQB)}, 19')
        A(f's_add_u32 s27, s27, {s(SWQO)}')
        A(f'buffer_load_dword {v(PD)}, {v(P1)}, {s(SRD_WQ,4)}, s27 offen'); vm.add('pf')
        A(f's_mul_i32 s27, {s(SQB)}, {64*2752}')
        A(f's_add_u32 s27, s27, {s(SW1O)}')
        A(f'buffer_load_dword {v(PD)}, {v(VW1)}, {s(SRD_W1,4)}, s27 offen'); vm.add('pf')
        A(f'buffer_load_dword {v(PD)}, {v(VW1+1)}, {s(SRD_W1,4)}, s27 offen offset:1024'); vm.add('pf')
    p1_read_setup(A)
    B = Asm()
    lane_setup(B, rot=True)
    B(f's_lshl_b32 s26, {s(SHEAD)}, 19')
    B('s_add_u32 s27, s26, 16384')
    srd(B, SRD_K, 34, 35, 's27', 524288 - 16384)
    srd(B, SRD_K0, 34, 35, 's26', 16384)
    srd(B, SRD_V, 36, 37, 's26', 524288)
    srd(B, SRD_WS, 72, 73, None, 16 << 20)
    srd(B, SRD_H, 72, 73, WS_H, 43 * 128 * 1024)
    srd(B, SRD_B1, 70, 71, None, 2752)
    B(f'v_lshrrev_b32 {v(PT)}, 4, {v(LANE)}')
    B(f'v_lshlrev_b32 {v(PT)}, 3, {v(PT)}')
    B(f's_lshl_b32 s26, {s(SHEAD)}, 6')
    B(f's_lshl_b32 s27, {s(SXP)}, 6')
    side = []
    for l in B.lines:
        if l.startswith('s_addc'):
            side[-1] = (side[-1][0] + '\n' + l, None)
        else:
            side.append((l, None))
    for u in range(4):
        side.append((f'buffer_load_dwordx2 {v(B1R+2*u,2)}, {v(PT)}, {s(SRD_B1,4)}, s{26+(u>>1)} offen offset:{32*(u&1)}', 'b1'))
    def front(vm, side):
        phase1(A, vm, diag=bool(st), side=side, early=mode & 1, last=p1_hidden())
        assert not side
        if st:
            A('v_writelane_b32 v123, s92, 8')
            A('s_lshl_b32 s26, s2, 2\ns_add_u32 s26, s26, s20\ns_lshl_b32 s26, s26, 8\ns_add_u32 s26, s26, 0x3100000\ns_mov_b32 s14, 0x4000000')
            A(f'v_lshlrev_b32 v122, 2, {v(LANE)}')
            A('buffer_store_dword v123, v122, s[12:15], s26 offen'); vm.add('diag')
            A('s_memrealtime s[80:81]')
        p1_finish(A, vm, o.get('stmod', ''))
    if split:
        import copy
        A(f's_cmp_lt_u32 {s(SXP)}, 43')
        A('s_cbranch_scc0 L_light')
        MODE.update(nq=4, nt=12)
        front(copy.deepcopy(vm), list(side))
        A('s_branch L_front_done')
        A.label('L_light')
        MODE.update(nq=4, nt=10)
        front(vm, list(side))
        A.label('L_front_done')
    else:
        MODE.update(nq=2, nt=12)
        front(vm, side)
    if st:
        A('s_memrealtime s[82:83]')
    A(gen_tail.role('s27'))
    c1, c2 = gen_tail.CFG['cut']
    A('s_mov_b32 s61, 0')
    A(f's_cmp_eq_u32 s27, 1\ns_cselect_b32 s61, {c1 << 17}, s61')
    A(f's_cmp_eq_u32 s27, 2\ns_cselect_b32 s61, {c2 << 17}, s61')
    A('s_cmp_eq_u32 s27, 3')
    A('s_cselect_b32 s26, 64, 32')
    A('s_load_dwordx2 s[40:41], s[0:1], s26')
    A(f's_cselect_b32 s42, {1376*1024}, s42')
    A('s_lshr_b32 s26, s2, 3')
    A('s_lshl_b32 s26, s26, 2')
    A(f's_add_u32 s26, s26, {s(SW)}')
    A(f's_mul_i32 s26, s26, {1024 * max(c1, 11)}')
    A('s_add_u32 s61, s61, s26')
    A(f's_add_u32 s44, {s(SRD_WS)}, {gen_k3.WS_X}')
    A(f's_addc_u32 s45, {s(SRD_WS+1)}, 0')
    A(f's_mov_b32 s46, {gen_k3.X_BYTES}')
    A('s_mul_i32 s62, s2, 49152')
    A(f's_add_u32 s62, s62, {s(SM0)}')
    A(f'v_lshlrev_b32 {v(LS2+7)}, 4, {v(LANE)}')
    for i in range(4):
        A(f'v_mov_b32 {v(T0+12+i)}, -1')
    pf = []
    poison = []
    for i in range(12):
        pf.append(f'buffer_store_dwordx4 {v(T0+12,4)}, {v(LS2+7)}, s[44:47], s62 offen offset:{1024*(i&3)} sc1' + ('\ns_add_u32 s62, s62, 16384' if i & 3 == 3 else ''))
    if o.get('touch'):
        sh = o['touch']
        A(f'v_lshlrev_b32 {v(T0+11)}, {sh}, {v(LANE)}')
        for i in range((11264 + (64 << sh) - 1) // (64 << sh)):
            pf.append(f'buffer_load_dword {v(T0+16)}, {v(T0+11)}, s[40:43], s61 offen\ns_add_u32 s61, s61, {64 << sh}')
    elif not o.get('nopf'):
        for i in range(max(c1, 11)):
            pf.append(f'buffer_load_dwordx4 {v(T0+16,4)}, {v(LS2+7)}, s[40:43], s61 offen offset:{1024*(i&3)}' + ('\ns_add_u32 s61, s61, 4096' if i & 3 == 3 else ''))
    if not o.get('nocpf'):
        A('s_getpc_b64 s[56:57]')
        A.label('L_code1')
        A(f's_add_u32 s56, s56, {nxt}-L_code1')
        A('s_addc_u32 s57, s57, 0')
        A(f's_mov_b32 s58, {"L_attn_exact" if fused else "L_code_end"}-{nxt}')
        A('s_lshr_b32 s63, s2, 3')
        A('s_lshl_b32 s63, s63, 2')
        A(f's_add_u32 s63, s63, {s(SW)}')
        A('s_lshl_b32 s63, s63, 8')
        A(f'v_lshlrev_b32 {v(LS2+6)}, 2, {v(LANE)}')
        pf.append(f'buffer_load_dword {v(T0+16)}, {v(LS2+6)}, s[56:59], s63 offen')
    pf = pf[12:] + pf[:12]
    A(f's_mov_b32 {s(STHR)}, {o.get("thr", 0x5d800000)}')
    A(f's_mov_b64 {s(SARM,2)}, -1')
    A(f's_mov_b32 {s(SRD_K0+2)}, 524288')
    if fused:
        A('s_load_dwordx2 s[16:17], s[0:1], 88')
        A('s_movk_i32 s18, 256')
        A(f'v_and_b32 v125, 7, {v(LANE)}')
        A('v_lshlrev_b32 v125, 2, v125')
        gen_tail.flag_setup(A, SRD_WS, SRD_WS + 1)
        A(gen_tail.flag_store(0, 124, 125))
    plan = o.get('plan', PLAN)
    opts = dict(plan, first_vm=vm.wait_for([('kv', 0)]), stmod=o.get('stmod', ''), opened=o.get('open', 1))
    if opts['opened']:
        attn_open(A, K0_LDS, opts)
    else:
        attn_start(A, K0_LDS, ms=plan.get('sum') == 'mfma')
    if fused:
        opts['pre_finish'] = gen_tail.tail_loads
        opts['pre_bar'] = gen_tail.snap_write
        opts['x29'] = [(4, gen_tail.ready_load())]
        opts['x31'] = gen_tail.presetup()
        opts['x32'] = [(20, gen_tail.first_look(LS2 + 6))]
        opts['after0'] = 's_waitcnt vmcnt(8)\ns_barrier\n' + gen_tail.signal_ready('L_sig_h')
    if st:
        A('s_memrealtime s[98:99]')
    if o.get('pstamp'):
        opts['pstamp'] = 1
        A('s_mov_b32 s70, 0')
    attn_loop(A, opts, pf)
    if o.get('pstamp'):
        A('s_lshl_b32 s26, s2, 2\ns_add_u32 s26, s26, s20\ns_lshl_b32 s26, s26, 8\ns_add_u32 s26, s26, 0x3200000')
        A(f'v_lshlrev_b32 v122, 2, {v(LANE)}')
        A('buffer_store_dword v103, v122, s[12:15], s26 offen')
    if st:
        A('s_memrealtime s[100:101]')
    attn_store(A, opts)
    if fused:
        del gen_tail.COLD[:]
        gen_tail.tail(A, o)
        cold += gen_tail.COLD
    if st and fused:
        A('s_waitcnt lgkmcnt(0)')
        A('s_sub_u32 s78, s78, s58\ns_sub_u32 s58, s58, s54\ns_sub_u32 s54, s54, s52\ns_sub_u32 s52, s52, s100')
        A('v_mov_b32 v16, s52\nv_mov_b32 v17, s54\nv_mov_b32 v18, s58\nv_mov_b32 v19, s78')
    if st:
        A(f's_lshl_b32 s85, {s(SW)}, 6')
        A('v_mov_b32 v0, s85')
        A('s_waitcnt lgkmcnt(0)')
        A('s_sub_u32 s100, s100, s98\ns_sub_u32 s98, s98, s82\ns_sub_u32 s88, s82, s80\ns_sub_u32 s86, s80, s92')
        stamp_end(A, 0, 0, 92)
        A('v_mov_b32 v8, s86\nv_mov_b32 v9, s88\nv_mov_b32 v10, s98\nv_mov_b32 v11, s100')
        A('s_add_u32 s84, s84, 0x8000')
        A('buffer_store_dwordx4 v[8:11], v4, s[80:83], s84 offen')
        if fused:
            A('s_add_u32 s84, s84, 0x10000')
            A('buffer_store_dwordx4 v[16:19], v4, s[80:83], s84 offen')
    A.label('L_k2_end')
    A('s_endpgm')
    A('\n'.join(cold)) if cold else None
    attn_exact(A, SRD_K0, o.get('stmod', ''))


def build(o):
    A = Asm()
    for l in HEADER.strip().split('\n'):
        A.lines.append(l)
    fused = o.get('fused')
    if fused and o.get('plain'):
        A('; @launch grid=(256,1,1) block=(256,1,1) lds=163840')
    elif fused:
        A(f'; @launch kernel={NAME} grid=(256,1,1) block=(256,1,1) lds=163840')
    else:
        A('; @launch kernel=attn_kernel grid=(256,1,1) block=(256,1,1) lds=163840')
        A('; @launch kernel=out_kernel grid=(256,1,1) block=(256,1,1) lds=163840')
    A('.amdgcn_target "amdgcn-amd-amdhsa--gfx950"\n.text')
    k2(A, o)
    if not fused:
        gen_k3.k3(A, opts=dict(o.get('k3', {}), **(dict(stamp=1) if o.get('stamp') else {})))
    A.label('L_code_end')
    A('.section .rodata,"a"\n.p2align 6')
    A(f'.amdhsa_kernel {NAME if fused else "attn_kernel"}\n.amdhsa_next_free_vgpr 512\n.amdhsa_next_free_sgpr 102\n.amdhsa_accum_offset 256')
    A('.amdhsa_group_segment_fixed_size 0\n.amdhsa_kernarg_size 104\n.amdhsa_user_sgpr_count 2\n.amdhsa_user_sgpr_kernarg_segment_ptr 1\n.amdhsa_system_sgpr_workgroup_id_x 1\n.end_amdhsa_kernel')
    if not fused:
        A('.p2align 6')
        gen_k3.k3_desc(A)
    A.lines, n = fix(A.lines)
    p = check(A.lines)
    print(len(A.lines), 'lines; nops', n, 'hazards', p[:8])
    txt = A.text()
    if o.get('kvnt'):
        import re
        txt = re.sub(r'(buffer_load_dwordx4 v9[2-7], s\[(?:4:7|8:11)\], s23 offen offset:\d+) lds', r'\1 ' + o['kvnt'] + ' lds', txt)
    if o.get('cyc'):
        for r in ('86:87', '88:89', '98:99', '100:101', '52:53', '54:55', '58:59', '78:79'):
            txt = txt.replace(f's_memrealtime s[{r}]', f's_memtime s[{r}]')
        txt = txt.replace('s_sub_u32 s86, s86, s90', 's_sub_u32 s86, s86, s92')
    return txt


if __name__ == '__main__':
    two = dict(stmod=' sc1', k3={}, pmode=1, plan=PLANM)
    best = dict(two, fused=1, rot=4, plan=planx(4, 6, 8, 80), hide=1)
    variants = {'best': best, 'exact': dict(best, thr=0)}
    for n, o in variants.items():
        open(f'all_{n}_stamp.s', 'w').write(build(dict(o, stamp=1)))
    open('all.s', 'w').write(build(best))
    open('alt1.s', 'w').write(build(dict(best, plain=1, outmod=' sc1')))
    open('recurrent_scan__mha_block_cached__mixer_channel_mlp__prompt.s', 'w').write(build(dict(best, plain=1)))
```
